```python
import torch

def _softmax(x, axis=-1):
    return torch.softmax(x, dim=axis)
def _gelu(x):
    return torch.nn.functional.gelu(x, approximate="tanh")
def _silu(x):
    return torch.nn.functional.silu(x)
def _sigmoid(x):
    return torch.sigmoid(x)
def _layernorm(x, axis=-1, eps=1e-5):
    m = x.mean(dim=axis, keepdim=True)
    v = x.var(dim=axis, keepdim=True, unbiased=False)
    return (x - m) / torch.sqrt(v + eps)
def _scatter_add(tgt, idx, src, axis=0):
    return tgt.clone().index_add_(axis, idx, src)
def _segment_sum(src, seg, n):
    out = torch.zeros((n,) + src.shape[1:], dtype=src.dtype)
    return out.index_add_(0, seg, src)
def _pad(x, pw):
    flat = tuple(v for pair in reversed(pw) for v in pair)
    return torch.nn.functional.pad(x, flat)

kernel_name = 'gated_mix__mha_block_cached__geglu_ffn__decode'

def setup_inputs():

    _w = (lambda a: (lambda t: t.to(torch.bfloat16) if t.is_floating_point() else t)(torch.as_tensor(a)))
    def _A_setup():
        B, Sq, D = 8, 1, 1024
        H, Sk, Dh = 32, 4096, 128
        return {
            "x": _w((lambda *s: torch.randn(*s, dtype=torch.bfloat16) * 0.05)(B, Sq, D)),
            "k_cache": _w((lambda *s: torch.randn(*s, dtype=torch.bfloat16) * 6.4)(B, H, Sk, Dh)),
            "v_cache": _w((lambda *s: torch.randn(*s, dtype=torch.bfloat16) * 0.4)(B, H, Sk, Dh)),
            "wq": _w((lambda *s: torch.randn(*s, dtype=torch.bfloat16) * 6.4)(D, H * Dh) * (D ** -0.5)),
            "wo": _w((lambda *s: torch.randn(*s, dtype=torch.bfloat16) * 0.4)(H * Dh, D) * ((H * Dh) ** -0.5)),
        }
    _A_in = _A_setup()

    def _B_setup():
        B, S, D, F = 8, 1, 1024, 3584
        return {
            "x": _w((lambda *s: torch.randn(*s, dtype=torch.bfloat16) * 0.05)(B, S, D)),
            "w_gate": _w((lambda *s: torch.randn(*s, dtype=torch.bfloat16) * 0.05)(D, F)),
            "w_up": _w((lambda *s: torch.randn(*s, dtype=torch.bfloat16) * 0.05)(D, F)),
            "w_down": _w((lambda *s: torch.randn(*s, dtype=torch.bfloat16) * 0.05)(F, D)),
        }
    _B_in = _B_setup()

    return {
        "A_x": _A_in["x"],
        "A_k_cache": _A_in["k_cache"],
        "A_v_cache": _A_in["v_cache"],
        "A_wq": _A_in["wq"],
        "A_wo": _A_in["wo"],
        "B_x": _B_in["x"],
        "B_w_gate": _B_in["w_gate"],
        "B_w_up": _B_in["w_up"],
        "B_w_down": _B_in["w_down"],
        "gate_w": _w((lambda *s: torch.randn(*s, dtype=torch.bfloat16) * 0.05)(1024) * 16.0),
    }

def reference(A_x, A_k_cache, A_v_cache, A_wq, A_wo, B_x, B_w_gate, B_w_up, B_w_down, gate_w):
    def _A_ref(x, k_cache, v_cache, wq, wo):
        B, Sq, D = x.shape
        H, Dh = 32, 128
        q = (lambda x, *d: x.permute(*d))((x @ wq).reshape(B, Sq, H, Dh), 0, 2, 1, 3)
        scores = torch.einsum("bhqd,bhkd->bhqk", q, k_cache) * (Dh ** -0.5)
        p = _softmax(scores, axis=-1)
        o = torch.einsum("bhqk,bhkd->bhqd", p, v_cache)
        return (lambda x, *d: x.permute(*d))(o, 0, 2, 1, 3).reshape(B, Sq, H * Dh) @ wo

    def _B_ref(x, w_gate, w_up, w_down):
        return (_gelu(x @ w_gate) * (x @ w_up)) @ w_down

    x = A_x
    g = _sigmoid((x * gate_w).sum(-1, keepdims=True))
    a = _A_ref(x, A_k_cache, A_v_cache, A_wq, A_wo)
    b = _B_ref(x, B_w_gate, B_w_up, B_w_down)
    return g * a + (1 - g) * b
```

```python
import sys, struct

NAME = "gated_mix__mha_block_cached__geglu_ffn__decode"
OPT = dict(stamps=0)
for a in sys.argv[2:]:
    k, v = a.split('=')
    OPT[k] = int(v)

def f32(x):
    return "0x%08x" % struct.unpack('<I', struct.pack('<f', x))[0]

WS_H = 0x0
WS_O = 0x10000
WS_PA = 0x100000
WS_PB = 0x200000
WS_SIZE = 0x300000
WS_STAMP = 0x400000
L_QP = 0
L_CNT = 2048
L_ML = 2304
L_ACC = 4096
L_F1 = 12288
L_TD = L_F1 + 65536
L_TO = L_TD + 32768
LDS_BYTES = L_TO + 32768

HUGE = 0x7ffffff0
LOG2E = 1.4426950408889634
SCALE = 128 ** -0.5

class K:
    def __init__(self):
        self.L = []
        self.vmq = []
    def __call__(self, s):
        self.L.append("    " + s)
    def label(self, s):
        self.L.append(s + ":")
    def c(self, s):
        self.L.append("    ; " + s)
    def vm(self, s, tag):
        self(s)
        self.vmq.append(tag)
        assert len(self.vmq) <= 63, "too many outstanding vm ops"
    def wait(self, tag):
        idx = max(i for i, t in enumerate(self.vmq) if t == tag)
        n = len(self.vmq) - 1 - idx
        self("s_waitcnt vmcnt(%d)" % n)
        self.vmq = self.vmq[idx + 1:]
    def wait_all(self):
        self("s_waitcnt vmcnt(0)")
        self.vmq = []

k = K()
A = k

def srd(d, base, nbytes, addlo=None, addhi=None):
    if addlo is None:
        A(f"s_mov_b32 s{d}, s{base}")
        A(f"s_mov_b32 s{d+1}, s{base+1}")
    else:
        A(f"s_add_u32 s{d}, s{base}, {addlo}")
        A(f"s_addc_u32 s{d+1}, s{base+1}, {addhi}")
    if isinstance(nbytes, str):
        A(f"s_mov_b32 s{d+2}, {nbytes}")
    else:
        A(f"s_mov_b32 s{d+2}, 0x{nbytes:x}")
    A(f"s_mov_b32 s{d+3}, 0x00020000")

def stamp(idx):
    if not OPT['stamps']:
        return
    A("s_memrealtime s[96:97]")
    A("s_waitcnt lgkmcnt(0)")
    A("v_mov_b32 v255, s96")
    A(f"v_mov_b32 v254, {idx*4}")
    k.vm("buffer_store_dword v255, v254, s[92:95], s98 offen", "stamp")

A("s_cmp_ge_u32 s2, 256")
A("s_cbranch_scc1 L_end")
A("s_load_dwordx16 s[16:31], s[0:1], 0")
A("s_load_dwordx8 s[32:39], s[0:1], 64")
A("s_load_dwordx2 s[40:41], s[0:1], 96")
A("v_lshrrev_b32 v1, 6, v0")
A("v_and_b32 v2, 63, v0")
A("v_readfirstlane_b32 s3, v1")
A("s_and_b32 s4, s2, 7")
A("s_lshr_b32 s5, s2, 3")
A("s_and_b32 s6, s5, 3")
A("s_lshl_b32 s7, s4, 2")
A("s_add_u32 s6, s6, s7")
A("s_lshr_b32 s7, s5, 2")
A("s_mov_b32 s8, 0xffff0000")
A("v_and_b32 v3, 15, v2")
A("v_lshrrev_b32 v4, 4, v2")
A("s_cmp_ge_u32 s3, 4")
A("s_cbranch_scc1 L_aux")

RK, RV = 64, 128
VQ = 8
VS = 16
VACC = 32
VM, VL, VMN, VAL = 40, 41, 42, 43
VT = 44
A("s_lshl_b32 s9, s7, 5")
A("s_add_u32 s9, s9, s6")
A("s_lshl_b32 s10, s9, 20")
A("s_lshr_b32 s11, s9, 12")
A("v_lshlrev_b32 v5, 4, v2")
A("s_lshl_b32 s12, s3, 14")
A("v_add_u32 v5, s12, v5")
A("s_mov_b32 s52, 0")
A("s_mov_b32 s53, 4096")
A("s_mov_b32 s54, 8192")
A("s_mov_b32 s55, 12288")
A("s_waitcnt lgkmcnt(0)")
srd(44, 18, 0x100000, "s10", "s11")
srd(48, 20, 0x100000, "s10", "s11")
if OPT['stamps']:
    srd(92, 40, WS_STAMP + 0x100000)
    A("s_lshl_b32 s98, s2, 3")
    A("s_add_u32 s98, s98, s3")
    A("s_lshl_b32 s98, s98, 7")
    A(f"s_add_u32 s98, s98, 0x{WS_STAMP:x}")

def ldk(i):
    return f"buffer_load_dwordx4 v[{RK+4*i}:{RK+4*i+3}], v5, s[44:47], s{52+i//4} offen offset:{(i%4)*1024} nt"
def ldv(i):
    return f"buffer_load_dwordx4 v[{RV+4*i}:{RV+4*i+3}], v5, s[48:51], s{52+i//4} offen offset:{(i%4)*1024} nt"

for i in range(16):
    A(ldk(i))
for i in range(16):
    A(ldv(i))
for i in range(4):
    A(f"s_add_u32 s{52+i}, s{52+i}, 0x10000")
for e in range(8):
    A(f"v_mov_b32 v{VACC+e}, 0")
A(f"v_mov_b32 v{VM}, 0xff800000")
A(f"v_mov_b32 v{VL}, 0")
A(f"s_mov_b32 s13, {f32(SCALE)}")
A(f"s_mov_b32 s14, {f32(LOG2E)}")
A("s_mov_b32 s15, 0")
A("v_lshlrev_b32 v6, 5, v3")
if OPT['stamps']:
    A("s_memrealtime s[96:97]")
    A("s_waitcnt lgkmcnt(0)")
    A("s_mov_b32 s99, s96")
A("s_barrier")
for w in range(4):
    A(f"ds_read_b128 v[{VS+8*(w&1)}:{VS+8*(w&1)+3}], v6 offset:{L_QP+w*512}" if w < 2 else
      f"ds_read_b128 v[{VT+8*(w&1)}:{VT+8*(w&1)+3}], v6 offset:{L_QP+w*512}")
    A(f"ds_read_b128 v[{VS+8*(w&1)+4}:{VS+8*(w&1)+7}], v6 offset:{L_QP+w*512+16}" if w < 2 else
      f"ds_read_b128 v[{VT+8*(w&1)+4}:{VT+8*(w&1)+7}], v6 offset:{L_QP+w*512+16}")
A("s_waitcnt lgkmcnt(0)")
for e in range(8):
    A(f"v_add_f32 v{VS+e}, v{VS+e}, v{VS+8+e}")
    A(f"v_add_f32 v{VT+e}, v{VT+e}, v{VT+8+e}")
for e in range(8):
    A(f"v_add_f32 v{VS+e}, v{VS+e}, v{VT+e}")
for r in range(4):
    A(f"v_cvt_pk_bf16_f32 v{VQ+r}, v{VS+2*r}, v{VS+2*r+1}")
if OPT['stamps']:
    A("s_memrealtime s[96:97]")
    A("s_waitcnt lgkmcnt(0)")
    A("s_mov_b32 s100, s96")

A(".p2align 6")
k.label("L_loop")
for grp in range(4):
    for i in range(4 * grp, 4 * grp + 4):
        A("s_waitcnt vmcnt(31)")
        A(f"v_dot2_f32_bf16 v{VS+i}, v{RK+4*i}, v{VQ}, 0")
        for r in range(1, 4):
            A(f"v_dot2_f32_bf16 v{VS+i}, v{RK+4*i+r}, v{VQ+r}, v{VS+i}")
        A(ldk(i))
    for rot in (8, 4, 2, 1):
        for i in range(4 * grp, 4 * grp + 4):
            A(f"v_add_f32_dpp v{VS+i}, v{VS+i}, v{VS+i} row_ror:{rot} row_mask:0xf bank_mask:0xf")
for t in range(8):
    A(f"v_cvt_pk_bf16_f32 v{VT+t}, v{VS+2*t}, v{VS+2*t+1}")
for t in range(8):
    A(f"v_lshlrev_b32 v{VS+2*t}, 16, v{VT+t}")
    A(f"v_and_b32 v{VS+2*t+1}, s8, v{VT+t}")
for i in range(16):
    A(f"v_mul_f32 v{VS+i}, s13, v{VS+i}")
for t in range(8):
    A(f"v_cvt_pk_bf16_f32 v{VT+t}, v{VS+2*t}, v{VS+2*t+1}")
for t in range(8):
    A(f"v_lshlrev_b32 v{VS+2*t}, 16, v{VT+t}")
    A(f"v_and_b32 v{VS+2*t+1}, s8, v{VT+t}")
A(f"v_max3_f32 v{VT}, v{VS}, v{VS+1}, v{VM}")
A(f"v_max3_f32 v{VT+1}, v{VS+2}, v{VS+3}, v{VS+4}")
A(f"v_max3_f32 v{VT+2}, v{VS+5}, v{VS+6}, v{VS+7}")
A(f"v_max3_f32 v{VT+3}, v{VS+8}, v{VS+9}, v{VS+10}")
A(f"v_max3_f32 v{VT+4}, v{VS+11}, v{VS+12}, v{VS+13}")
A(f"v_max3_f32 v{VT}, v{VT}, v{VS+14}, v{VS+15}")
A(f"v_max3_f32 v{VT+1}, v{VT+1}, v{VT+2}, v{VT+3}")
A(f"v_max3_f32 v{VMN}, v{VT}, v{VT+1}, v{VT+4}")
A(f"v_sub_f32 v{VAL}, v{VM}, v{VMN}")
A(f"v_mul_f32 v{VAL}, s14, v{VAL}")
A(f"v_exp_f32 v{VAL}, v{VAL}")
A(f"v_mov_b32 v{VM}, v{VMN}")
for i in range(16):
    A(f"v_sub_f32 v{VS+i}, v{VS+i}, v{VMN}")
for i in range(16):
    A(f"v_mul_f32 v{VS+i}, s14, v{VS+i}")
for i in range(16):
    A(f"v_exp_f32 v{VS+i}, v{VS+i}")
A(f"v_mul_f32 v{VL}, v{VL}, v{VAL}")
for e in range(8):
    A(f"v_mul_f32 v{VACC+e}, v{VACC+e}, v{VAL}")
for t in range(8):
    A(f"v_add_f32 v{VT+t}, v{VS+2*t}, v{VS+2*t+1}")
for t in range(4):
    A(f"v_add_f32 v{VT+t}, v{VT+t}, v{VT+t+4}")
A(f"v_add_f32 v{VT}, v{VT}, v{VT+2}")
A(f"v_add_f32 v{VT+1}, v{VT+1}, v{VT+3}")
A(f"v_add_f32 v{VT}, v{VT}, v{VT+1}")
A(f"v_add_f32 v{VL}, v{VL}, v{VT}")
for i in range(16):
    A("s_waitcnt vmcnt(31)")
    tb = VT + 8 * (i & 1)
    for r in range(4):
        A(f"v_lshlrev_b32 v{tb+2*r}, 16, v{RV+4*i+r}")
        A(f"v_and_b32 v{tb+2*r+1}, s8, v{RV+4*i+r}")
    A(ldv(i))
    for e in range(8):
        A(f"v_fmac_f32 v{VACC+e}, v{VS+i}, v{tb+e}")
for i in range(4):
    A(f"s_add_u32 s{52+i}, s{52+i}, 0x10000")
A("s_add_u32 s15, s15, 1")
A("s_cmp_lt_u32 s15, 16")
A("s_cbranch_scc1 L_loop")
A("s_lshl_b32 s12, s3, 2")
A("v_add_u32 v7, s12, v4")
A("v_lshlrev_b32 v9, 9, v7")
A("v_add_u32 v9, v9, v6")
A(f"ds_write_b128 v9, v[{VACC}:{VACC+3}] offset:{L_ACC}")
A(f"ds_write_b128 v9, v[{VACC+4}:{VACC+7}] offset:{L_ACC+16}")
A("v_lshlrev_b32 v7, 3, v7")
A("v_cmp_eq_u32 vcc, 0, v3")
A("s_and_saveexec_b64 s[56:57], vcc")
A(f"ds_write_b64 v7, v[{VM}:{VL}] offset:{L_ML}")
A("s_mov_b64 exec, s[56:57]")
A("s_waitcnt lgkmcnt(0)")
A("s_barrier")
if OPT['stamps']:
    A("s_memrealtime s[96:97]")
    A("s_waitcnt lgkmcnt(0)")
    A("v_mov_b32 v60, s99")
    A("v_mov_b32 v61, s100")
    A("v_mov_b32 v62, s96")
    A("v_mov_b32 v63, 0")
    A("v_mov_b32 v59, 0")
    A("buffer_store_dwordx4 v[60:63], v59, s[92:95], s98 offen")
A("s_endpgm")

k.vmq = []
k.label("L_aux")
A("s_sub_u32 s9, s3, 4")
A("v_cmp_gt_u32 vcc, 8, v3")
A(f"v_mov_b32 v5, 0x{HUGE:x}")
A("v_lshlrev_b32 v6, 17, v3")
A("v_lshl_add_u32 v6, v4, 4, v6")
A("v_cndmask_b32 v6, v5, v6, vcc")
A("v_mul_u32_u24 v7, 7168, v3")
A("v_lshl_add_u32 v7, v4, 3, v7")
A("v_cndmask_b32 v7, v5, v7, vcc")
A("v_lshlrev_b32 v8, 2, v2")
A("s_lshl_b32 s10, s9, 21")
A("s_lshl_b32 s11, s6, 8")
A("s_add_u32 s10, s10, s11")
A("v_lshlrev_b32 v9, 19, v4")
A("v_lshl_add_u32 v9, v3, 4, v9")
A("v_add_u32 v9, s10, v9")
A("s_lshl_b32 s10, s7, 11")
A("s_lshl_b32 s11, s9, 9")
A("s_add_u32 s10, s10, s11")
A("v_lshlrev_b32 v10, 7, v4")
A("v_add_u32 v10, s10, v10")
A("s_lshl_b32 s72, s7, 2")
A("s_add_u32 s72, s72, s9")
A("s_lshl_b32 s72, s72, 12")
A("s_lshl_b32 s10, s6, 7")
A("s_add_u32 s72, s72, s10")
A(f"s_add_u32 s72, s72, 0x{WS_PA:x}")
A("s_lshl_b32 s73, s4, 2")
A("s_add_u32 s73, s73, s9")
A("s_lshl_b32 s73, s73, 12")
A("s_lshl_b32 s10, s5, 7")
A("s_add_u32 s73, s73, s10")
A(f"s_add_u32 s73, s73, 0x{WS_PB:x}")
A("s_lshl_b32 s74, s6, 3")
A("s_add_u32 s74, s74, s7")
A("s_lshl_b32 s74, s74, 8")
A(f"s_add_u32 s74, s74, 0x{WS_O:x}")
A("s_mul_i32 s75, s4, 28")
A("s_add_u32 s75, s75, s5")
A("s_lshl_b32 s75, s75, 5")
A("s_cmp_lt_u32 s5, 28")
A("s_cselect_b32 s76, 1, 0")
A("s_cselect_b32 s77, 0x700000, 0")
A("s_cselect_b32 s78, 0x%x, 0" % WS_SIZE)
A("v_mov_b32 v12, -1")
A("v_mov_b32 v13, -1")
A("v_mov_b32 v14, -1")
A("v_mov_b32 v15, -1")
A("s_waitcnt lgkmcnt(0)")
srd(52, 40, WS_SIZE)
srd(80, 40, "s78")
srd(44, 22, 0x800000)
srd(48, 16, 0x4000)
if OPT['stamps']:
    srd(92, 40, WS_STAMP + 0x100000)
    A("s_lshl_b32 s98, s2, 3")
    A("s_add_u32 s98, s98, s3")
    A("s_lshl_b32 s98, s98, 7")
    A(f"s_add_u32 s98, s98, 0x{WS_STAMP:x}")
k.vm("buffer_store_dwordx4 v[12:15], v6, s[52:55], s72 offen sc1", "poison")
k.vm("buffer_store_dwordx4 v[12:15], v6, s[52:55], s72 offen offset:64 sc1", "poison")
k.vm("buffer_store_dwordx4 v[12:15], v6, s[80:83], s73 offen sc1", "poison")
k.vm("buffer_store_dwordx4 v[12:15], v6, s[80:83], s73 offen offset:64 sc1", "poison")
k.vm("buffer_store_dword v12, v8, s[52:55], s74 offen sc1", "poison")
k.vm("buffer_store_dwordx2 v[12:13], v7, s[80:83], s75 offen sc1", "poison")
XP = 16
QA = 48
QT = 56
WR = 64
for t in range(8):
    k.vm(f"buffer_load_dwordx4 v[{XP+4*t}:{XP+4*t+3}], v10, s[48:51], 0 offen offset:{16*t}", "x")
A("s_mov_b32 s10, 0")
def ldwq(i):
    slot = i % 48
    k.vm(f"buffer_load_dwordx4 v[{WR+4*slot}:{WR+4*slot+3}], v9, s[44:47], s10 offen nt", f"wq{i}")
    A("s_add_u32 s10, s10, 8192")
for i in range(48):
    ldwq(i)
srd(56, 28, "s77")
srd(60, 30, "s77")
srd(64, 32, "s77")
srd(68, 24, 0x800000)
A("s_mov_b32 s84, 0x05040100")
A("s_mov_b32 s85, 0x07060302")
for e in range(8):
    A(f"v_mov_b32 v{QA+e}, 0")
A("v_lshrrev_b32 v11, 1, v2")
A("v_mul_u32_u24 v11, 7168, v11")
A("v_and_b32 v5, 1, v2")
A("v_lshl_add_u32 v11, v5, 4, v11")
A("v_add_u32 v11, s75, v11")
A("s_mul_i32 s86, s9, %d" % (256 * 7168))
A("v_lshrrev_b32 v12, 2, v2")
A("v_lshlrev_b32 v12, 11, v12")
A("v_and_b32 v5, 3, v2")
A("v_lshl_add_u32 v12, v5, 4, v12")
A("s_lshl_b32 s11, s9, 6")
A("v_add_u32 v12, s11, v12")
A("s_lshl_b32 s87, s5, 18")
A("s_lshl_b32 s11, s4, 8")
A("s_add_u32 s87, s87, s11")
A("s_lshl_b32 s88, s6, 18")
A("s_lshl_b32 s11, s7, 8")
A("s_add_u32 s88, s88, s11")
A("s_lshl_b32 s89, s9, 13")
A("v_and_b32 v5, 7, v3")
A("v_lshlrev_b32 v13, 11, v5")
A("v_lshl_add_u32 v13, v4, 4, v13")
A("s_lshl_b32 s11, s9, 9")
A("v_add_u32 v13, s11, v13")
A("v_lshlrev_b32 v14, 8, v5")
A("v_lshl_add_u32 v14, v4, 4, v14")
A("v_mul_u32_u24 v15, 7168, v5")
A("v_lshl_add_u32 v15, v4, 4, v15")
A("v_mov_b32 v5, 0")
A(f"ds_write_b32 v5, v5 offset:{L_CNT}")

dma = []
for i in range(8):
    dma.append(("s[56:59]", "v11", "s86", i * 32 * 7168, L_F1 + i * 1024, "f1"))
for i in range(8):
    dma.append(("s[60:63]", "v11", "s86", i * 32 * 7168, L_F1 + 32768 + i * 1024, "f1"))
for i in range(8):
    dma.append(("s[64:67]", "v12", "s87", i * 16 * 2048, L_TD + i * 1024, "td"))
for i in range(8):
    dma.append(("s[68:71]", "v12", "s88", i * 16 * 2048, L_TO + i * 1024, "to"))
def issue_dma(d):
    s, v, so, goff, loff, tag = d
    A(f"s_add_u32 m0, s89, {loff}")
    A(f"s_add_u32 s11, {so}, {goff}")
    k.vm(f"buffer_load_dwordx4 {v}, {s}, s11 offen nt lds", tag)

di = 0
for t in range(32):
    k.wait(f"wq{2*t+1}")
    s0, s1 = WR + 4 * ((2 * t) % 48), WR + 4 * ((2 * t + 1) % 48)
    for r in range(4):
        A(f"v_perm_b32 v{QT+2*r}, v{s1+r}, v{s0+r}, s84")
        A(f"v_perm_b32 v{QT+2*r+1}, v{s1+r}, v{s0+r}, s85")
    if t < 8:
        ldwq(48 + 2 * t)
        ldwq(48 + 2 * t + 1)
    else:
        for _ in range(2):
            if di < len(dma):
                issue_dma(dma[di]); di += 1
    for e in range(8):
        A(f"v_dot2c_f32_bf16 v{QA+e}, v{QT+e}, v{XP+t}")
assert di == len(dma)
A("s_nop 3")
for e in range(4):
    A(f"v_permlane32_swap_b32 v{QA+e}, v{QA+e+4}")
for e in range(4):
    A(f"v_add_f32 v{QA+e}, v{QA+e}, v{QA+e+4}")
A("s_nop 1")
for e in range(2):
    A(f"v_permlane16_swap_b32 v{QA+e}, v{QA+e+2}")
for e in range(2):
    A(f"v_add_f32 v{QA+e}, v{QA+e}, v{QA+e+2}")
A("v_lshlrev_b32 v5, 5, v3")
A("v_lshl_add_u32 v5, v4, 3, v5")
A("s_lshl_b32 s11, s9, 9")
A("v_add_u32 v5, s11, v5")
A(f"ds_write_b64 v5, v[{QA}:{QA+1}] offset:{L_QP}")
A("s_waitcnt lgkmcnt(0)")
A("s_barrier")
stamp(0)
XF = 16
for s in range(8):
    k.vm(f"buffer_load_dwordx4 v[{XF+4*s}:{XF+4*s+3}], v13, s[48:51], 0 offen offset:{64*s}", "xf")
srd(44, 38, 256)
A("v_lshlrev_b32 v48, 8, v4")
A("v_bfe_u32 v5, v2, 2, 2")
A("v_lshl_add_u32 v48, v5, 5, v48")
A("v_and_b32 v50, 3, v2")
A("v_lshl_add_u32 v48, v50, 3, v48")
A("v_add_u32 v48, s89, v48")
A("v_lshlrev_b32 v49, 9, v4")
A("v_lshl_add_u32 v49, v5, 6, v49")
A("v_lshl_add_u32 v49, v50, 3, v49")
A(f"s_add_u32 s11, s89, {L_TD}")
A("v_add_u32 v49, s11, v49")
k.wait_all()
stamp(1)
TOF, TDF = 64, 96
for base, lo in ((TOF, L_TO - L_TD), (TDF, 0)):
    for nb in range(2):
        for kk in range(4):
            r = base + (nb * 4 + kk) * 4
            A(f"ds_read_b64_tr_b16 v[{r}:{r+1}], v49 offset:{lo + kk*2048 + nb*32}")
            A(f"ds_read_b64_tr_b16 v[{r+2}:{r+3}], v49 offset:{lo + kk*2048 + 256 + nb*32}")
A("v_lshlrev_b32 v5, 4, v2")
A("s_cmp_eq_u32 s76, 0")
A("s_cbranch_scc1 L_noF1")
FW = 128
DG, DU = 52, 56
for s in range(8):
    for m, lo in ((0, L_F1), (1, L_F1 + 32768)):
        r = FW + (s * 2 + m) * 4
        A(f"ds_read_b64_tr_b16 v[{r}:{r+1}], v48 offset:{lo + s*1024}")
        A(f"ds_read_b64_tr_b16 v[{r+2}:{r+3}], v48 offset:{lo + s*1024 + 128}")
A("s_waitcnt lgkmcnt(0)")
for s in range(8):
    for m, D in ((0, DG), (1, DU)):
        r = FW + (s * 2 + m) * 4
        c = "0" if s == 0 else f"v[{D}:{D+3}]"
        A(f"v_mfma_f32_16x16x32_bf16 v[{D}:{D+3}], v[{r}:{r+3}], v[{XF+4*s}:{XF+4*s+3}], {c}")
A("s_lshl_b32 s11, s9, 11")
A("v_add_u32 v50, s11, v5")
A("s_nop 7")
A(f"ds_write_b128 v50, v[{DG}:{DG+3}] offset:{L_ACC}")
A(f"ds_write_b128 v50, v[{DU}:{DU+3}] offset:{L_ACC+1024}")
k.label("L_noF1")
A("v_mov_b32 v50, 0")
A("v_mov_b32 v51, 1")
A("s_waitcnt lgkmcnt(0)")
A("s_mov_b64 s[10:11], exec")
A("s_mov_b64 exec, 1")
A(f"ds_add_rtn_u32 v60, v50, v51 offset:{L_CNT}")
A("s_waitcnt lgkmcnt(0)")
A("v_readfirstlane_b32 s12, v60")
A("s_mov_b64 exec, s[10:11]")
A("s_cmp_lg_u32 s12, 3")
A("s_cbranch_scc1 L_notlast")
A("s_mov_b64 exec, 1")
A("buffer_atomic_add v51, off, s[44:47], 0 sc1")
A("s_mov_b64 exec, -1")
A("s_cmp_eq_u32 s76, 0")
A("s_cbranch_scc1 L_notlast")
for w in range(4):
    A(f"ds_read_b128 v[{FW+8*w}:{FW+8*w+3}], v5 offset:{L_ACC + w*2048}")
    A(f"ds_read_b128 v[{FW+8*w+4}:{FW+8*w+7}], v5 offset:{L_ACC + w*2048 + 1024}")
A("s_waitcnt lgkmcnt(0)")
for e in range(8):
    A(f"v_add_f32 v{FW+e}, v{FW+e}, v{FW+8+e}")
    A(f"v_add_f32 v{FW+16+e}, v{FW+16+e}, v{FW+24+e}")
for e in range(8):
    A(f"v_add_f32 v{FW+e}, v{FW+e}, v{FW+16+e}")
for t in range(4):
    A(f"v_cvt_pk_bf16_f32 v{FW+8+t}, v{FW+2*t}, v{FW+2*t+1}")
for t in range(4):
    A(f"v_lshlrev_b32 v{FW+2*t}, 16, v{FW+8+t}")
    A(f"v_and_b32 v{FW+2*t+1}, s8, v{FW+8+t}")
A(f"s_mov_b32 s10, {f32(0.044715)}")
A(f"s_mov_b32 s11, {f32(-2.0*0.7978845608028654*LOG2E)}")
for e in range(4):
    A(f"v_mul_f32 v{FW+8+e}, v{FW+e}, v{FW+e}")
for e in range(4):
    A(f"v_fma_f32 v{FW+8+e}, v{FW+8+e}, s10, 1.0")
for e in range(4):
    A(f"v_mul_f32 v{FW+8+e}, v{FW+8+e}, v{FW+e}")
for e in range(4):
    A(f"v_mul_f32 v{FW+8+e}, s11, v{FW+8+e}")
for e in range(4):
    A(f"v_exp_f32 v{FW+8+e}, v{FW+8+e}")
A("s_nop 0")
for e in range(4):
    A(f"v_add_f32 v{FW+8+e}, 1.0, v{FW+8+e}")
for e in range(4):
    A(f"v_rcp_f32 v{FW+8+e}, v{FW+8+e}")
A("s_nop 0")
for e in range(4):
    A(f"v_mul_f32 v{FW+e}, v{FW+e}, v{FW+8+e}")
for t in range(2):
    A(f"v_cvt_pk_bf16_f32 v{FW+8+t}, v{FW+2*t}, v{FW+2*t+1}")
for t in range(2):
    A(f"v_lshlrev_b32 v{FW+2*t}, 16, v{FW+8+t}")
    A(f"v_and_b32 v{FW+2*t+1}, s8, v{FW+8+t}")
for e in range(4):
    A(f"v_mul_f32 v{FW+e}, v{FW+e}, v{FW+4+e}")
for t in range(2):
    A(f"v_cvt_pk_bf16_f32 v{FW+8+t}, v{FW+2*t}, v{FW+2*t+1}")

def sanitize(regs, repl):
    A(f"v_mov_b32 v5, {repl}")
    for r in regs:
        A(f"v_cmp_eq_u32 vcc, -1, v{r}")
        A("s_nop 1")
        A(f"v_cndmask_b32 v{r}, v{r}, v5, vcc")

sanitize([FW + 8, FW + 9], "0x7fc07fc0")
A(f"buffer_store_dwordx2 v[{FW+8}:{FW+9}], v7, s[80:83], s75 offen sc1")
k.label("L_notlast")
stamp(2)

SPIN_MAX = 200000
A("s_mov_b32 s12, 0")
k.label("L_rdy")
A("buffer_load_dword v5, off, s[44:47], 0 sc1")
A("s_waitcnt vmcnt(0)")
A("v_readfirstlane_b32 s10, v5")
A("s_cmp_ge_u32 s10, 256")
A("s_cbranch_scc1 L_rdy_done")
A("s_sleep 8")
A("s_add_u32 s12, s12, 1")
A(f"s_cmp_lt_u32 s12, {SPIN_MAX}")
A("s_cbranch_scc1 L_rdy")
k.label("L_rdy_done")
k.vmq = []
stamp(3)

def poll4(name, dst, voffs, soff, step, sleep=2):
    A("s_mov_b32 s12, 0")
    k.label(f"L_{name}")
    for t in range(4):
        A(f"buffer_load_dwordx4 v[{dst+4*t}:{dst+4*t+3}], {voffs[t]}, s[52:55], {soff} offen offset:{step*t} sc1")
    A("s_waitcnt vmcnt(0)")
    A(f"v_max3_u32 v60, v{dst}, v{dst+1}, v{dst+2}")
    A(f"v_max3_u32 v61, v{dst+3}, v{dst+4}, v{dst+5}")
    A(f"v_max3_u32 v62, v{dst+6}, v{dst+7}, v{dst+8}")
    A(f"v_max3_u32 v63, v{dst+9}, v{dst+10}, v{dst+11}")
    A(f"v_max3_u32 v60, v60, v{dst+12}, v{dst+13}")
    A(f"v_max3_u32 v61, v61, v{dst+14}, v{dst+15}")
    A("v_max3_u32 v60, v60, v61, v62")
    A("v_max_u32 v60, v60, v63")
    A("v_cmp_eq_u32 vcc, -1, v60")
    A(f"s_cbranch_vccz L_{name}_done")
    A("s_mov_b64 exec, vcc")
    A(f"s_sleep {sleep}")
    A("s_add_u32 s12, s12, 1")
    A(f"s_cmp_lt_u32 s12, {SPIN_MAX}")
    A(f"s_cbranch_scc1 L_{name}")
    k.label(f"L_{name}_done")
    A("s_mov_b64 exec, -1")
    k.vmq = []

def tile_gemm_publish(frag, xf, srdst, soff):
    D0, D1 = 52, 56
    A("s_nop 3")
    for kk in range(4):
        for nb, D in ((0, D0), (1, D1)):
            r = frag + (nb * 4 + kk) * 4
            c = "0" if kk == 0 else f"v[{D}:{D+3}]"
            A(f"v_mfma_f32_16x16x32_bf16 v[{D}:{D+3}], v[{r}:{r+3}], v[{xf+4*kk}:{xf+4*kk+3}], {c}")
    A("s_nop 7")
    sanitize(list(range(D0, D0 + 8)), "0x7fc00000")
    A(f"buffer_store_dwordx4 v[{D0}:{D0+3}], v6, {srdst}, {soff} offen sc1")
    A(f"buffer_store_dwordx4 v[{D1}:{D1+3}], v6, {srdst}, {soff} offen offset:64 sc1")

def reduce_slots(src, out):
    for e in range(4):
        A(f"v_add_f32 v{src+e}, v{src+e}, v{src+4+e}")
        A(f"v_add_f32 v{src+8+e}, v{src+8+e}, v{src+12+e}")
    for e in range(4):
        A(f"v_add_f32 v{src+e}, v{src+e}, v{src+8+e}")
    A("s_nop 1")
    for e in range(4):
        A(f"v_add_f32_dpp v{src+e}, v{src+e}, v{src+e} row_ror:8 row_mask:0xf bank_mask:0xf")
    A("s_nop 1")
    for e in range(2):
        A(f"v_permlane32_swap_b32 v{src+e}, v{src+e+2}")
    for e in range(2):
        A(f"v_add_f32 v{src+e}, v{src+e}, v{src+e+2}")
    A("s_nop 1")
    A(f"v_permlane16_swap_b32 v{src}, v{src+1}")
    A(f"v_add_f32 v{out}, v{src}, v{src+1}")

def round_bf16(r, tmp):
    A(f"v_cvt_pk_bf16_f32 v{tmp}, v{r}, v{r}")
    A(f"v_and_b32 v{r}, s8, v{tmp}")

GX = 128
A("s_cmp_eq_u32 s76, 0")
A("s_cbranch_scc1 L_noF2")
A("s_lshl_b32 s13, s5, 8")
poll4("pollH", GX, ["v15"] * 4, "s13", 64, sleep=8)
A("s_waitcnt lgkmcnt(0)")
tile_gemm_publish(TDF, GX, "s[80:83]", "s73")
k.label("L_noF2")
stamp(4)
VG, VB, VOUT = 44, 45, 46
A("s_cmp_lg_u32 s9, 0")
A("s_cbranch_scc1 L_wait2")
srd(56, 34, 2048)
A("s_lshr_b32 s13, s2, 5")
A("s_lshl_b32 s13, s13, 11")
A("v_lshlrev_b32 v5, 5, v2")
A(f"buffer_load_dwordx4 v[{GX}:{GX+3}], v5, s[48:51], s13 offen")
A(f"buffer_load_dwordx4 v[{GX+4}:{GX+7}], v5, s[48:51], s13 offen offset:16")
A(f"buffer_load_dwordx4 v[{GX+8}:{GX+11}], v5, s[56:59], 0 offen")
A(f"buffer_load_dwordx4 v[{GX+12}:{GX+15}], v5, s[56:59], 0 offen offset:16")
A("s_waitcnt vmcnt(0)")
A(f"v_mov_b32 v{VG}, 0")
for r in range(8):
    A(f"v_lshlrev_b32 v60, 16, v{GX+r}")
    A(f"v_and_b32 v61, s8, v{GX+r}")
    A(f"v_lshlrev_b32 v62, 16, v{GX+8+r}")
    A(f"v_and_b32 v63, s8, v{GX+8+r}")
    A("v_mul_f32 v60, v60, v62")
    A("v_mul_f32 v61, v61, v63")
    A("v_cvt_pk_bf16_f32 v60, v60, v61")
    A("v_lshlrev_b32 v61, 16, v60")
    A("v_and_b32 v60, s8, v60")
    A(f"v_add_f32 v{VG}, v{VG}, v61")
    A(f"v_add_f32 v{VG}, v{VG}, v60")
for rot in (8, 4, 2, 1):
    A("s_nop 1")
    A(f"v_add_f32_dpp v{VG}, v{VG}, v{VG} row_ror:{rot} row_mask:0xf bank_mask:0xf")
A(f"v_mov_b32 v60, v{VG}")
A("s_nop 1")
A(f"v_permlane32_swap_b32 v{VG}, v60")
A(f"v_add_f32 v{VG}, v{VG}, v60")
A(f"v_mov_b32 v60, v{VG}")
A("s_nop 1")
A(f"v_permlane16_swap_b32 v{VG}, v60")
A(f"v_add_f32 v{VG}, v{VG}, v60")
round_bf16(VG, 60)
A(f"s_mov_b32 s10, {f32(-LOG2E)}")
A(f"v_mul_f32 v{VG}, s10, v{VG}")
A(f"v_exp_f32 v{VG}, v{VG}")
A("s_nop 0")
A(f"v_add_f32 v{VG}, 1.0, v{VG}")
A(f"v_rcp_f32 v{VG}, v{VG}")
A("s_nop 0")
round_bf16(VG, 60)
A("v_lshlrev_b32 v40, 4, v2")
A(f"v_mov_b32 v5, 0x{HUGE:x}")
A("v_cmp_gt_u32 vcc, 32, v2")
A("s_nop 1")
A("v_cndmask_b32 v41, v5, v40, vcc")
A("s_lshl_b32 s14, s2, 12")
A(f"s_add_u32 s15, s14, 0x{WS_PB:x}")
A(f"s_add_u32 s14, s14, 0x{WS_PA:x}")
poll4("pollB", GX, ["v40", "v40", "v40", "v41"], "s15", 1024, sleep=8)
reduce_slots(GX, VB)
round_bf16(VB, 60)
A(f"v_sub_f32 v60, 1.0, v{VG}")
round_bf16(60, 61)
A(f"v_mul_f32 v{VB}, v{VB}, v60")
round_bf16(VB, 61)
A("v_lshlrev_b32 v42, 3, v3")
A("v_lshl_add_u32 v42, v4, 1, v42")
A("v_cmp_gt_u32 vcc, 8, v3")
A("s_nop 1")
A("v_cndmask_b32 v42, v5, v42, vcc")
srd(56, 36, 16384)
A("s_lshl_b32 s13, s2, 6")
A("v_lshlrev_b32 v43, 3, v3")
A("v_lshlrev_b32 v47, 3, v2")
stamp(5)
k.label("L_wait2")
A("s_lshl_b32 s90, s6, 11")
A(f"s_add_u32 s90, s90, 0x{WS_O:x}")
A("s_barrier")
stamp(6)
A("s_cmp_lg_u32 s9, 0")
A("s_cbranch_scc1 L_gatherO")
CA = 144
A(f"ds_read_b64 v[60:61], v43 offset:{L_ML}")
for s in range(16):
    A(f"ds_read_b64 v[{CA+2*s}:{CA+2*s+1}], v47 offset:{L_ACC + s*512}")
A("s_waitcnt lgkmcnt(15)")
A("v_mov_b32 v62, v60")
for rot in (8, 4, 2, 1):
    A("s_nop 1")
    A(f"v_max_f32_dpp v62, v62, v62 row_ror:{rot} row_mask:0xf bank_mask:0xf")
A(f"s_mov_b32 s10, {f32(LOG2E)}")
A("v_sub_f32 v60, v60, v62")
A("v_mul_f32 v60, s10, v60")
A("v_exp_f32 v60, v60")
A("s_nop 0")
A("v_mul_f32 v61, v61, v60")
for rot in (8, 4, 2, 1):
    A("s_nop 1")
    A(f"v_add_f32_dpp v61, v61, v61 row_ror:{rot} row_mask:0xf bank_mask:0xf")
A("v_rcp_f32 v61, v61")
A("s_nop 0")
A("v_mul_f32 v60, v60, v61")
A("s_waitcnt lgkmcnt(0)")
A("s_nop 0")
A(f"v_mul_f32_dpp v62, v60, v{CA} row_newbcast:0 row_mask:0xf bank_mask:0xf")
A(f"v_mul_f32_dpp v63, v60, v{CA+1} row_newbcast:0 row_mask:0xf bank_mask:0xf")
for s in range(1, 16):
    A(f"v_fmac_f32_dpp v62, v60, v{CA+2*s} row_newbcast:{s} row_mask:0xf bank_mask:0xf")
    A(f"v_fmac_f32_dpp v63, v60, v{CA+2*s+1} row_newbcast:{s} row_mask:0xf bank_mask:0xf")
A("v_cvt_pk_bf16_f32 v62, v62, v63")
sanitize([62], "0x7fc07fc0")
A("buffer_store_dword v62, v8, s[52:55], s74 offen sc1")
k.label("L_gatherO")
stamp(7)
poll4("pollO", GX, ["v14"] * 4, "s90", 64, sleep=1)
stamp(8)
tile_gemm_publish(TOF, GX, "s[52:55]", "s72")
A("s_cmp_lg_u32 s9, 0")
A("s_cbranch_scc1 L_end")
stamp(9)
poll4("pollA", GX, ["v40"] * 4, "s14", 1024, sleep=1)
stamp(10)
reduce_slots(GX, VOUT)
round_bf16(VOUT, 60)
A(f"v_mul_f32 v{VOUT}, v{VOUT}, v{VG}")
round_bf16(VOUT, 60)
A(f"v_add_f32 v{VOUT}, v{VOUT}, v{VB}")
A(f"v_cvt_pk_bf16_f32 v{VOUT}, v{VOUT}, v{VOUT}")
A(f"buffer_store_short v{VOUT}, v42, s[56:59], s13 offen")
stamp(11)
k.label("L_end")
A("s_endpgm")

body = "\n".join(k.L)
ref = open('cdna_kernels/%s.s.ref' % NAME).read().split('\n')
head = [l for l in ref if l.startswith(';') and '@launch' not in l]
out = "\n".join(head) + "\n"
out += f"; @launch grid=(256,1,1) block=(512,1,1) lds={LDS_BYTES}\n"
out += f""".amdgcn_target "amdgcn-amd-amdhsa--gfx950"
.text
.globl {NAME}_kernel
.p2align 8
.type {NAME}_kernel,@function
{NAME}_kernel:
{body}
.section .rodata,"a"
.p2align 6
.amdhsa_kernel {NAME}_kernel
  .amdhsa_next_free_vgpr 256
  .amdhsa_next_free_sgpr 102
  .amdhsa_accum_offset 256
  .amdhsa_group_segment_fixed_size 0
  .amdhsa_kernarg_size 104
  .amdhsa_user_sgpr_count 2
  .amdhsa_user_sgpr_kernarg_segment_ptr 1
  .amdhsa_system_sgpr_workgroup_id_x 1
  .amdhsa_float_denorm_mode_32 3
.end_amdhsa_kernel
"""
open(sys.argv[1], 'w').write(out)
```

```python
import sys, struct

NAME = "gated_mix__mha_block_cached__geglu_ffn__decode"
OPT = dict(stamps=0, nokv=0, map=1, slpO=1, slpA=1, slpG=1, prio=3, npre=1, D=8, nocomp=0, noaux=0)
for a in sys.argv[2:]:
    kk_, v_ = a.split('=')
    assert kk_ in OPT, kk_
    OPT[kk_] = int(v_)

def f32(x):
    return "0x%08x" % struct.unpack('<I', struct.pack('<f', x))[0]

WS_H = 0x0
WS_O = 0x10000
WS_MB = 0x20000
WS_PA = 0x100000
WS_QI = 0x300000
WS_SIZE = 0x600000
WS_STAMP = 0x800000
L_Q = 0
L_CNT = 256
L_ML = 512
L_ACC = 4096
L_T = 12288
LDS_BYTES = L_T + 4 * 32768

HUGE = 0x7ffffff0
LOG2E = 1.4426950408889634
SCALE = 128 ** -0.5
SPIN_MAX = 200000

class K:
    def __init__(self):
        self.L = []
    def __call__(self, s):
        self.L.append("    " + s)
    def label(self, s):
        self.L.append(s + ":")
k = K()
A = k

def srd(d, base, nbytes, addlo=None, addhi=None):
    if addlo is None:
        A(f"s_mov_b32 s{d}, s{base}")
        A(f"s_mov_b32 s{d+1}, s{base+1}")
    else:
        A(f"s_add_u32 s{d}, s{base}, {addlo}")
        A(f"s_addc_u32 s{d+1}, s{base+1}, {addhi}")
    A(f"s_mov_b32 s{d+2}, {nbytes}" if isinstance(nbytes, str) else f"s_mov_b32 s{d+2}, 0x{nbytes:x}")
    A(f"s_mov_b32 s{d+3}, 0x00020000")

def stamp_setup():
    if not OPT['stamps']:
        return
    srd(92, 40, WS_STAMP + 0x100000)
    A("s_lshl_b32 s98, s2, 3")
    A("s_add_u32 s98, s98, s3")
    A("s_lshl_b32 s98, s98, 7")
    A(f"s_add_u32 s98, s98, 0x{WS_STAMP:x}")

def stamp(idx):
    if not OPT['stamps']:
        return
    A("s_memrealtime s[96:97]")
    A("s_waitcnt lgkmcnt(0)")
    A(f"v_writelane_b32 v255, s96, {idx}")

def stamp_dump():
    if not OPT['stamps']:
        return
    A("v_lshlrev_b32 v254, 2, v2")
    A("v_cmp_gt_u32 vcc, 32, v2")
    A("s_and_saveexec_b64 s[96:97], vcc")
    A("buffer_store_dword v255, v254, s[92:95], s98 offen")
    A("s_mov_b64 exec, s[96:97]")

A("s_cmp_ge_u32 s2, 256")
A("s_cbranch_scc1 L_end")
A("s_load_dwordx16 s[16:31], s[0:1], 0")
A("s_load_dwordx8 s[32:39], s[0:1], 64")
A("s_load_dwordx2 s[40:41], s[0:1], 96")
A("v_lshrrev_b32 v1, 6, v0")
A("v_and_b32 v2, 63, v0")
A("v_readfirstlane_b32 s3, v1")
if OPT['map'] == 0:
    A("s_lshr_b32 s6, s2, 3")
    A("s_and_b32 s7, s2, 7")
elif OPT['map'] == 1:
    A("s_lshr_b32 s6, s2, 3")
    A("s_add_u32 s7, s2, s6")
    A("s_and_b32 s7, s7, 7")
else:
    A("s_and_b32 s6, s2, 31")
    A("s_lshr_b32 s7, s2, 5")
A("s_mov_b32 s8, 0xffff0000")
A("v_and_b32 v3, 15, v2")
A("v_lshrrev_b32 v4, 4, v2")
if OPT['stamps']:
    A("v_mov_b32 v255, 0")
A("s_cmp_ge_u32 s3, 4")
A("s_cbranch_scc1 L_aux")

NB = 8
NPRE = OPT['npre']
NBLK = 1024 // (4 * NB)
RK = 64
RV = RK + 4 * NB
XB = RV + 4 * NB
VQ = 8
VS = 16
VACC = 32
VM, VL, VMN, VAL = 40, 41, 42, 43
VT = 44
STEP = 4 * NB * 1024
A("s_lshl_b32 s9, s7, 5")
A("s_add_u32 s9, s9, s6")
A("s_lshl_b32 s10, s9, 20")
A("v_lshlrev_b32 v5, 4, v2")
A(f"s_mul_i32 s12, s3, {NB*1024}")
A("v_add_u32 v5, s12, v5")
NS = NB // 4
DD = OPT['D']
for i in range(NS):
    A(f"s_mov_b32 s{52+i}, {4096*i}")
    A(f"s_mov_b32 s{56+i}, {4096*i + STEP}")
A("v_mov_b32 v6, 0")
A("v_mov_b32 v7, 0")
A(f"ds_write_b64 v6, v[6:7] offset:{L_CNT}")
A(f"ds_write_b32 v6, v6 offset:{L_CNT+8}")
A("s_waitcnt lgkmcnt(0)")
srd(44, 18, 0 if OPT['nokv'] else 0x100000, "s10", "0")
srd(48, 20, 0 if OPT['nokv'] else 0x100000, "s10", "0")
stamp_setup()
A("s_barrier")

def ldk(base, i, so=52):
    A(f"buffer_load_dwordx4 v[{base+4*i}:{base+4*i+3}], v5, s[44:47], s{so+i//4} offen offset:{(i%4)*1024} nt")
def ldv(base, i, so=52):
    A(f"buffer_load_dwordx4 v[{base+4*i}:{base+4*i+3}], v5, s[48:51], s{so+i//4} offen offset:{(i%4)*1024} nt")
def adv():
    for i in range(NS):
        A(f"s_add_u32 s{52+i}, s{52+i}, 0x{STEP:x}")
        A(f"s_add_u32 s{56+i}, s{56+i}, 0x{STEP:x}")
def issue_after(sq, first=False):
    t = sq + DD
    if first and t < 2 * NB:
        return False
    so = 52 if t < 2 * NB else 56
    t %= 2 * NB
    if t < NB:
        ldk(RK, t, so)
    else:
        ldv(RV, t - NB, so)
    return True

def kphase(base, waits, issue):
    for grp in range(NB // 4):
        for i in range(4 * grp, 4 * grp + 4):
            A(f"s_waitcnt vmcnt({waits(i)})")
            A(f"v_dot2_f32_bf16 v{VS+i}, v{base+4*i}, v{VQ}, 0")
            for r in range(1, 4 if not OPT['nocomp'] else 1):
                A(f"v_dot2_f32_bf16 v{VS+i}, v{base+4*i+r}, v{VQ+r}, v{VS+i}")
            if not (issue and issue_after(i, issue == 'first')) and i % 4 == 3:
                A("s_nop 0")
        for rot in (8, 4, 2, 1) if not OPT['nocomp'] else ():
            for i in range(4 * grp, 4 * grp + 4):
                A(f"v_add_f32_dpp v{VS+i}, v{VS+i}, v{VS+i} row_ror:{rot} row_mask:0xf bank_mask:0xf")

def softmax():
    if OPT['nocomp']:
        return
    H = NB // 2
    for t in range(H):
        A(f"v_cvt_pk_bf16_f32 v{VT+t}, v{VS+2*t}, v{VS+2*t+1}")
    for t in range(H):
        A(f"v_lshlrev_b32 v{VS+2*t}, 16, v{VT+t}")
        A(f"v_and_b32 v{VS+2*t+1}, s8, v{VT+t}")
    for i in range(NB):
        A(f"v_mul_f32 v{VS+i}, s13, v{VS+i}")
    for t in range(H):
        A(f"v_cvt_pk_bf16_f32 v{VT+t}, v{VS+2*t}, v{VS+2*t+1}")
    for t in range(H):
        A(f"v_lshlrev_b32 v{VS+2*t}, 16, v{VT+t}")
        A(f"v_and_b32 v{VS+2*t+1}, s8, v{VT+t}")
    assert NB == 8
    A(f"v_max3_f32 v{VT}, v{VS}, v{VS+1}, v{VM}")
    A(f"v_max3_f32 v{VT+1}, v{VS+2}, v{VS+3}, v{VS+4}")
    A(f"v_max3_f32 v{VT+2}, v{VS+5}, v{VS+6}, v{VS+7}")
    A(f"v_max3_f32 v{VMN}, v{VT}, v{VT+1}, v{VT+2}")
    A(f"v_sub_f32 v{VAL}, v{VM}, v{VMN}")
    A(f"v_mul_f32 v{VAL}, s14, v{VAL}")
    A(f"v_exp_f32 v{VAL}, v{VAL}")
    A(f"v_mov_b32 v{VM}, v{VMN}")
    for i in range(NB):
        A(f"v_sub_f32 v{VS+i}, v{VS+i}, v{VMN}")
    for i in range(NB):
        A(f"v_mul_f32 v{VS+i}, s14, v{VS+i}")
    for i in range(NB):
        A(f"v_exp_f32 v{VS+i}, v{VS+i}")
    A(f"v_mul_f32 v{VL}, v{VL}, v{VAL}")
    for e in range(8):
        A(f"v_mul_f32 v{VACC+e}, v{VACC+e}, v{VAL}")
    for t in range(4):
        A(f"v_add_f32 v{VT+t}, v{VS+2*t}, v{VS+2*t+1}")
    A(f"v_add_f32 v{VT}, v{VT}, v{VT+2}")
    A(f"v_add_f32 v{VT+1}, v{VT+1}, v{VT+3}")
    A(f"v_add_f32 v{VT}, v{VT}, v{VT+1}")
    A(f"v_add_f32 v{VL}, v{VL}, v{VT}")

def vphase(base, waits, issue):
    for i in range(NB):
        A(f"s_waitcnt vmcnt({waits(i)})")
        tb = VT + 8 * (i & 1)
        for r in range(4 if not OPT['nocomp'] else 1):
            A(f"v_lshlrev_b32 v{tb+2*r}, 16, v{base+4*i+r}")
            A(f"v_and_b32 v{tb+2*r+1}, s8, v{base+4*i+r}")
        if issue:
            issue_after(NB + i)
        for e in range(8 if not OPT['nocomp'] else 1):
            A(f"v_fmac_f32 v{VACC+e}, v{VS+i}, v{tb+e}")

stamp(0)
for p in range(NPRE + 1):
    kb = XB + p * 8 * NB if p < NPRE else RK
    vb = kb + 4 * NB
    for i in range(NB):
        ldk(kb, i)
    for i in range(NB):
        ldv(vb, i)
    if p < NPRE:
        adv()
for e in range(8):
    A(f"v_mov_b32 v{VACC+e}, 0")
A(f"v_mov_b32 v{VM}, 0xff800000")
A(f"v_mov_b32 v{VL}, 0")
A(f"s_mov_b32 s13, {f32(SCALE)}")
A(f"s_mov_b32 s14, {f32(LOG2E)}")
A(f"s_mov_b32 s15, {NPRE}")
A("v_lshlrev_b32 v6, 4, v3")
stamp(1)
A("v_mov_b32 v7, 0")
k.label("L_qwait")
A(f"ds_read_b32 v12, v7 offset:{L_CNT+8}")
A("s_waitcnt lgkmcnt(0)")
A("v_readfirstlane_b32 s12, v12")
A("s_nop 1")
A("s_cmp_eq_u32 s12, 4")
A("s_cbranch_scc1 L_qdone")
A("s_sleep 1")
A("s_branch L_qwait")
k.label("L_qdone")
A(f"ds_read_b128 v[{VQ}:{VQ+3}], v6 offset:{L_Q}")
A("v_lshlrev_b32 v6, 5, v3")
A("s_waitcnt lgkmcnt(0)")
stamp(2)
tot = (NPRE + 1) * 2 * NB
for p in range(NPRE):
    kb = XB + p * 8 * NB
    kphase(kb, lambda i: tot - 1 - (2 * NB * p + i), False)
    softmax()
    vphase(kb + 4 * NB, lambda i: tot - 1 - (2 * NB * p + NB + i), False)
kphase(RK, lambda i: 2 * NB - 1 - i + max(0, i - (2 * NB - DD)), 'first')
A("s_branch L_mid")
A(".p2align 6")
k.label("L_loop")
kphase(RK, lambda i: DD - 1, True)
k.label("L_mid")
softmax()
vphase(RV, lambda i: DD - 1, True)
adv()
A("s_add_u32 s15, s15, 1")
A(f"s_cmp_lt_u32 s15, {NBLK}")
A("s_cbranch_scc1 L_loop")
A("s_lshl_b32 s12, s3, 2")
A("v_add_u32 v7, s12, v4")
A("v_lshlrev_b32 v9, 9, v7")
A("v_add_u32 v9, v9, v6")
A(f"ds_write_b128 v9, v[{VACC}:{VACC+3}] offset:{L_ACC}")
A(f"ds_write_b128 v9, v[{VACC+4}:{VACC+7}] offset:{L_ACC+16}")
A("v_lshlrev_b32 v7, 3, v7")
A("v_cmp_eq_u32 vcc, 0, v3")
A("s_and_saveexec_b64 s[60:61], vcc")
A(f"ds_write_b64 v7, v[{VM}:{VL}] offset:{L_ML}")
A("s_mov_b64 exec, s[60:61]")
A("s_waitcnt lgkmcnt(0)")
A("s_barrier")
stamp(3)
stamp_dump()
A("s_endpgm")


S_WQ, S_X, S_WS, S_WG, S_WU, S_WD, S_WO, S_WSF, S_DBG = 44, 48, 52, 56, 60, 64, 68, 72, 76
def R4(n): return f"s[{n}:{n+3}]"
sW = "s9"
s_PAst, s_Ost, s_QIst, s_hasF, s_QIin, s_MB, s_Hst = "s80", "s82", "s83", "s84", "s85", "s86", "s87"
s_TQ, s_TF, s_TO, s_LDS, s_Oin, s_last, s_PAin = "s88", "s89", "s90", "s91", "s42", "s43", "s14"
sHI = "s[4:5]"
vHUGE, vPst, vQst, vL4, vTQ, vTO, vTF, vXF, vOg, vHg = "v1", "v6", "v7", "v8", "v9", "v10", "v12", "v13", "v14", "v15"
vL16, vOut, vML, vAcc, vHst, vTr23, vTr01, vIn, vPair = "v40", "v42", "v43", "v0", "v47", "v48", "v49", "v50", "v51"
XF = 16
PZ = 32
TF0, TF1, TF2 = 64, 96, 128
GX = 192
D0, D1 = 52, 56
VG, VOUT = 44, 46

k.label("L_aux")
if OPT['prio']:
    A(f"s_setprio {OPT['prio']}")
A(f"s_sub_u32 {sW}, s3, 4")
A(f"v_cmp_lt_u32 {sHI}, 7, v3")
A("v_and_b32 v5, 7, v3")
A("v_lshrrev_b32 v11, 3, v3")
A("v_lshlrev_b32 v11, 6, v11")
A("v_lshl_add_u32 v11, v4, 4, v11")
A(f"v_mul_u32_u24 {vQst}, 12288, v5")
A(f"v_add_u32 {vQst}, {vQst}, v11")
A(f"v_lshl_add_u32 {vPst}, v5, 18, v11")
A(f"v_lshlrev_b32 {vL4}, 2, v2")
A(f"s_mul_i32 {s_QIst}, s6, 98304")
A("s_lshl_b32 s12, s7, 9")
A(f"s_add_u32 {s_QIst}, {s_QIst}, s12")
A(f"s_lshl_b32 s12, {sW}, 7")
A(f"s_add_u32 {s_QIst}, {s_QIst}, s12")
A(f"s_add_u32 {s_QIst}, {s_QIst}, 0x{WS_QI:x}")
A("s_lshl_b32 s15, s6, 3")
A("s_add_u32 s15, s15, s7")
A(f"s_lshl_b32 {s_MB}, s15, 7")
A(f"s_add_u32 {s_MB}, {s_MB}, 0x{WS_MB:x}")
A(f"s_lshl_b32 {s_PAst}, s7, 2")
A(f"s_add_u32 {s_PAst}, {s_PAst}, {sW}")
A(f"s_lshl_b32 {s_PAst}, {s_PAst}, 13")
A("s_lshl_b32 s10, s6, 8")
A(f"s_add_u32 {s_PAst}, {s_PAst}, s10")
A(f"s_add_u32 {s_PAst}, {s_PAst}, 0x{WS_PA:x}")
A(f"s_lshl_b32 {s_Ost}, s15, 8")
A(f"s_add_u32 {s_Ost}, {s_Ost}, 0x{WS_O:x}")
A(f"s_mul_i32 {s_Hst}, s7, 7168")
A(f"s_add_u32 {s_Hst}, {s_Hst}, s10")
A(f"s_lshl_b32 s11, {sW}, 6")
A(f"s_add_u32 {s_Hst}, {s_Hst}, s11")
A(f"v_mov_b32 {vHUGE}, 0x{HUGE:x}")
A(f"v_lshlrev_b32 {vPair}, 3, v5")
A("v_lshrrev_b32 v62, 1, v4")
A(f"v_lshl_add_u32 {vPair}, v62, 2, {vPair}")
A("v_and_b32 v62, 0x18, v2")
A("v_cmp_eq_u32 vcc, 0, v62")
for r in range(4):
    A(f"v_mov_b32 v{PZ+r}, -1")
A(f"v_cndmask_b32 {vHst}, {vHUGE}, {vPair}, vcc")
A("v_mov_b32 v60, 0")
A("v_mov_b32 v61, 0")
A("s_cmp_lt_u32 s6, 28")
A(f"s_cselect_b32 {s_hasF}, 1, 0")
A("s_cselect_b32 s12, 0x700000, 0")
A("s_cselect_b32 s13, 0x%x, 0" % WS_SIZE)
A(f"s_add_u32 s81, {s_QIst}, 4096")
A(f"s_add_u32 s15, {s_QIst}, 8192")
A("s_waitcnt lgkmcnt(0)")
srd(S_WS, 40, WS_SIZE)
srd(S_WSF, 40, "s13")
P = f"v[{PZ}:{PZ+3}]"
A(f"buffer_store_dwordx4 {P}, {vQst}, {R4(S_WS)}, {s_QIst} offen sc1")
A(f"buffer_store_dwordx2 v[60:61], off, {R4(S_WS)}, {s_MB} sc1")
A(f"buffer_store_dwordx4 {P}, {vQst}, {R4(S_WSF)}, s81 offen sc1")
A(f"buffer_store_dwordx4 {P}, {vQst}, {R4(S_WSF)}, s15 offen sc1")
A(f"buffer_store_dwordx4 {P}, {vPst}, {R4(S_WS)}, {s_PAst} offen sc1")
A(f"buffer_store_dwordx4 {P}, {vPst}, {R4(S_WS)}, {s_PAst} offen offset:128 sc1")
A(f"buffer_store_dword v{PZ}, {vL4}, {R4(S_WS)}, {s_Ost} offen sc1")
A(f"buffer_store_dword v{PZ}, {vHst}, {R4(S_WSF)}, {s_Hst} offen sc1")
A(f"v_lshlrev_b32 {vXF}, 11, v5")
A(f"v_lshl_add_u32 {vXF}, v4, 4, {vXF}")
A(f"v_lshrrev_b32 {vTO}, 2, v2")
A("v_and_b32 v11, 3, v2")
A("v_lshlrev_b32 v11, 4, v11")
A("v_add_u32 v11, s11, v11")
A(f"v_lshl_add_u32 {vTQ}, {vTO}, 13, v11")
A(f"s_lshl_b32 {s_TQ}, s7, 20")
A(f"s_add_u32 {s_TQ}, {s_TQ}, s10")
A(f"s_mul_i32 {s_TF}, s7, {128 * 7168}")
A(f"s_add_u32 {s_TF}, {s_TF}, s10")
A(f"s_lshl_b32 {s_LDS}, {sW}, 13")
A(f"s_add_u32 {s_LDS}, {s_LDS}, {L_T}")
A("s_lshl_b32 s10, s7, 8")
srd(S_X, 16, 0x4000)
srd(S_WQ, 22, 0x800000)
for kk in range(4):
    A(f"buffer_load_dwordx4 v[{XF+4*kk}:{XF+4*kk+3}], {vXF}, {R4(S_X)}, s10 offen offset:{64*kk}")
def dma(sr, v, so, goff, loff):
    A(f"s_add_u32 m0, {s_LDS}, {loff}")
    A(f"s_add_u32 s11, {so}, {goff}")
    A(f"buffer_load_dwordx4 {v}, {R4(sr)}, s11 offen nt lds")
for i in range(8):
    dma(S_WQ, vTQ, s_TQ, i * 16 * 8192, i * 1024)
srd(S_WG, 28, "s12")
srd(S_WU, 30, "s12")
srd(S_WD, 32, "s12")
A(f"v_mul_u32_u24 {vTF}, 7168, {vTO}")
A(f"v_add_u32 {vTF}, {vTF}, v11")
for i in range(8):
    dma(S_WG, vTF, s_TF, i * 16 * 7168, 32768 + i * 1024)
for i in range(8):
    dma(S_WU, vTF, s_TF, i * 16 * 7168, 65536 + i * 1024)
A("s_barrier")
stamp_setup()
stamp(0)
A(f"v_lshl_add_u32 {vTO}, {vTO}, 11, v11")
A(f"v_lshlrev_b32 {vOut}, 3, v5")
A(f"v_lshl_add_u32 {vOut}, v4, 1, {vOut}")
A(f"v_cndmask_b32 {vOut}, {vOut}, {vHUGE}, {sHI}")
A(f"v_lshlrev_b32 {vL16}, 4, v2")
A(f"v_lshlrev_b32 {vML}, 3, v3")
A(f"v_lshlrev_b32 {vAcc}, 3, v2")
A(f"v_lshlrev_b32 {vOg}, 8, v5")
A(f"v_lshl_add_u32 {vOg}, v4, 4, {vOg}")
A(f"v_mul_u32_u24 {vHg}, 7168, v5")
A(f"v_lshl_add_u32 {vHg}, v4, 4, {vHg}")
A(f"v_lshrrev_b32 {vIn}, 3, v2")
A(f"v_lshlrev_b32 {vIn}, 9, {vIn}")
A(f"v_lshl_add_u32 {vIn}, v5, 4, {vIn}")
A(f"v_lshlrev_b32 {vTr01}, 9, v4")
A("v_bfe_u32 v5, v2, 2, 2")
A(f"v_lshl_add_u32 {vTr01}, v5, 6, {vTr01}")
A("v_and_b32 v5, 3, v2")
A(f"v_lshl_add_u32 {vTr01}, v5, 3, {vTr01}")
A(f"v_add_u32 {vTr01}, {s_LDS}, {vTr01}")
A(f"v_add_u32 {vTr23}, 0x10000, {vTr01}")
A("v_mov_b32 v61, 1")
A(f"s_lshl_b32 {s_PAin}, s2, 13")
A(f"s_add_u32 {s_PAin}, {s_PAin}, 0x{WS_PA:x}")
A("s_lshl_b32 s12, s6, 3")
A("s_add_u32 s12, s12, s7")
A(f"s_mul_i32 {s_QIin}, s12, 12288")
A(f"s_lshl_b32 s12, {sW}, 7")
A(f"s_add_u32 {s_QIin}, {s_QIin}, s12")
A(f"s_add_u32 {s_QIin}, {s_QIin}, 0x{WS_QI:x}")
A(f"s_lshl_b32 {s_Oin}, s6, 11")
A(f"s_add_u32 {s_Oin}, {s_Oin}, 0x{WS_O:x}")
A(f"s_lshl_b32 {s_TO}, s6, 18")
A(f"s_add_u32 {s_TO}, {s_TO}, s10")
srd(S_WO, 24, 0x800000)
srd(S_DBG, 38, 256)

def tr_reads(base, vaddr, lo):
    for nb in range(2):
        for kk in range(4):
            r = base + (nb * 4 + kk) * 4
            A(f"ds_read_b64_tr_b16 v[{r}:{r+1}], {vaddr} offset:{lo + kk*2048 + nb*32}")
            A(f"ds_read_b64_tr_b16 v[{r+2}:{r+3}], {vaddr} offset:{lo + kk*2048 + 256 + nb*32}")
def tile_gemm(frag, xf, dst):
    for kk in range(4):
        for nb, D in ((0, D0), (1, D1)):
            r = frag + (nb * 4 + kk) * 4
            c = "0" if kk == 0 else f"v[{D}:{D+3}]"
            A(f"v_mfma_f32_16x16x32_bf16 v[{D}:{D+3}], v[{r}:{r+3}], v[{xf+4*kk}:{xf+4*kk+3}], {c}")
    A("s_nop 7")
    for e in range(4):
        A(f"v_cndmask_b32 v{dst+e}, v{D0+e}, v{D1+e}, {sHI}")
    for e in range(4):
        A(f"v_min_u32 v{dst+e}, -2, v{dst+e}")
def pair_reduce(r):
    for e in range(4):
        A(f"v_add_f32_dpp v{r+e}, v{r+e}, v{r+e} row_ror:8 row_mask:0xf bank_mask:0xf")
    A("s_nop 1")
    for e in range(2):
        A(f"v_permlane32_swap_b32 v{r+e}, v{r+e+2}")
    for e in range(2):
        A(f"v_add_f32 v{r+e}, v{r+e}, v{r+e+2}")
    for e in range(2):
        A(f"v_mov_b32 v{r+e+2}, v{r+e}")
    A("s_nop 1")
    for e in range(2):
        A(f"v_permlane16_swap_b32 v{r+e}, v{r+e+2}")
    for e in range(2):
        A(f"v_add_f32 v{r+e}, v{r+e}, v{r+e+2}")
def poll_mb(name, dword, sleep):
    A("s_mov_b32 s12, 0")
    k.label(f"L_{name}")
    A(f"buffer_load_dword v62, off, {R4(S_WS)}, {s_MB} offset:{4*dword} sc1")
    A("s_waitcnt vmcnt(0)")
    A("v_readfirstlane_b32 s10, v62")
    A("s_nop 1")
    A("s_cmp_lg_u32 s10, 0")
    A(f"s_cbranch_scc1 L_{name}_done")
    A(f"s_sleep {sleep}")
    A("s_add_u32 s12, s12, 1")
    A(f"s_cmp_lt_u32 s12, {SPIN_MAX}")
    A(f"s_cbranch_scc1 L_{name}")
    k.label(f"L_{name}_done")
def polln(name, dst, loads, sleep=2):
    n = len(loads)
    A("s_mov_b32 s12, 0")
    k.label(f"L_{name}")
    for t, (vo, sr, so, im) in enumerate(loads):
        A(f"buffer_load_dwordx4 v[{dst+4*t}:{dst+4*t+3}], {vo}, {R4(sr)}, {so} offen offset:{im} sc1")
    A("s_waitcnt vmcnt(0)")
    regs = [f"v{dst+i}" for i in range(4 * n)]
    tmp = ["v60", "v61", "v62", "v63"]
    acc = []
    i = 0
    while len(acc) < 4 and i + 3 <= len(regs):
        A(f"v_max3_u32 {tmp[len(acc)]}, {regs[i]}, {regs[i+1]}, {regs[i+2]}")
        acc.append(tmp[len(acc)]); i += 3
    j = 0
    while i < len(regs):
        if i + 2 <= len(regs):
            A(f"v_max3_u32 {acc[j]}, {acc[j]}, {regs[i]}, {regs[i+1]}"); i += 2
        else:
            A(f"v_max_u32 {acc[j]}, {acc[j]}, {regs[i]}"); i += 1
        j = (j + 1) % len(acc)
    A(f"v_max3_u32 {acc[0]}, {acc[0]}, {acc[1]}, {acc[2]}")
    A(f"v_max_u32 {acc[0]}, {acc[0]}, {acc[3]}")
    A("v_cmp_eq_u32 vcc, -1, v60")
    A(f"s_cbranch_vccz L_{name}_done")
    A("s_mov_b64 exec, vcc")
    if sleep:
        A(f"s_sleep {sleep}")
    A("s_add_u32 s12, s12, 1")
    A(f"s_cmp_lt_u32 s12, {SPIN_MAX}")
    A(f"s_cbranch_scc1 L_{name}")
    k.label(f"L_{name}_done")
    A("s_mov_b64 exec, -1")
def round_bf16(r, tmp):
    A(f"v_cvt_pk_bf16_f32 v{tmp}, v{r}, v{r}")
    A(f"v_and_b32 v{r}, s8, v{tmp}")

A("s_waitcnt vmcnt(28)")
stamp(1)
A("s_lshl_b32 s13, s6, 2")
A("s_mov_b64 exec, 1")
A(f"ds_add_rtn_u32 v62, v60, v61 offset:{L_CNT}")
A("s_waitcnt lgkmcnt(0)")
A("v_readfirstlane_b32 s12, v62")
A("s_nop 1")
A("s_cmp_eq_u32 s12, 3")
A(f"s_cselect_b32 {s_last}, 1, 0")
A("s_cbranch_scc0 L_nl0")
A(f"buffer_atomic_add v61, off, {R4(S_DBG)}, s13 sc0 sc1")
A("s_branch L_nl0b")
k.label("L_nl0")
A(f"buffer_load_dword v63, off, {R4(S_X)}, 0")
k.label("L_nl0b")
A("s_mov_b64 exec, -1")
A("s_waitcnt vmcnt(17)")
stamp(2)
tr_reads(TF0, vTr01, 0)
A("s_waitcnt lgkmcnt(0)")
tile_gemm(TF0, XF, 36)
A(f"buffer_store_dwordx4 v[36:39], {vQst}, {R4(S_WS)}, {s_QIst} offen sc1")
A("s_waitcnt vmcnt(10)")
tr_reads(TF1, vTr01, 32768)
A("s_waitcnt vmcnt(1)")
tr_reads(TF2, vTr23, 0)
A(f"s_cmp_eq_u32 {s_last}, 0")
A("s_cbranch_scc1 L_nl0c")
A("v_readfirstlane_b32 s12, v61")
A("v_mov_b32 v61, 1")
A("s_cmp_lg_u32 s12, 7")
A("s_cbranch_scc1 L_nl0c")
A("v_lshlrev_b32 v62, 7, v2")
A("s_lshl_b32 s13, s6, 10")
A(f"s_add_u32 s13, s13, 0x{WS_MB:x}")
A("s_mov_b64 exec, 0xff")
A(f"buffer_store_dword v61, v62, {R4(S_WS)}, s13 offen sc1")
A("s_mov_b64 exec, 1")
A("v_mov_b32 v41, 1")
A(f"buffer_atomic_add v41, off, {R4(S_DBG)}, 0 offset:128 sc0 sc1")
A(f"s_mov_b32 {s_last}, 2")
A("s_mov_b64 exec, -1")
k.label("L_nl0c")
A("s_waitcnt lgkmcnt(0)")
tile_gemm(TF1, XF, 36)
A(f"buffer_store_dwordx4 v[36:39], {vQst}, {R4(S_WSF)}, s81 offen sc1")
tile_gemm(TF2, XF, PZ)
A(f"buffer_store_dwordx4 v[{PZ}:{PZ+3}], {vQst}, {R4(S_WSF)}, s15 offen sc1")
stamp(3)
poll_mb("go1", 0, OPT['slpG'])
stamp(4)
A(f"s_add_u32 s10, {s_QIin}, 4096")
A(f"s_add_u32 s11, {s_QIin}, 8192")
polln("pollQ", GX, [(vIn, S_WS, s_QIin, 0), (vIn, S_WSF, "s10", 0), (vIn, S_WSF, "s11", 0)], sleep=1)
pair_reduce(GX)
A(f"v_cvt_pk_bf16_f32 v{GX}, v{GX}, v{GX+1}")
A(f"s_lshl_b32 s12, {sW}, 6")
A(f"v_add_u32 v62, s12, {vPair}")
A(f"ds_write_b32 v62, v{GX} offset:{L_Q}")
pair_reduce(GX + 4)
pair_reduce(GX + 8)
G0, U0, T0 = GX + 4, GX + 8, GX + 12
A(f"v_cvt_pk_bf16_f32 v{T0}, v{G0}, v{G0+1}")
A(f"v_cvt_pk_bf16_f32 v{T0+1}, v{U0}, v{U0+1}")
A(f"v_lshlrev_b32 v{G0}, 16, v{T0}")
A(f"v_and_b32 v{G0+1}, s8, v{T0}")
A(f"v_lshlrev_b32 v{U0}, 16, v{T0+1}")
A(f"v_and_b32 v{U0+1}, s8, v{T0+1}")
A(f"s_mov_b32 s10, {f32(0.044715)}")
A(f"s_mov_b32 s11, {f32(-2.0*0.7978845608028654*LOG2E)}")
for e in range(2):
    A(f"v_mul_f32 v{T0+e}, v{G0+e}, v{G0+e}")
for e in range(2):
    A(f"v_fma_f32 v{T0+e}, v{T0+e}, s10, 1.0")
for e in range(2):
    A(f"v_mul_f32 v{T0+e}, v{T0+e}, v{G0+e}")
for e in range(2):
    A(f"v_mul_f32 v{T0+e}, s11, v{T0+e}")
for e in range(2):
    A(f"v_exp_f32 v{T0+e}, v{T0+e}")
A("s_nop 0")
for e in range(2):
    A(f"v_add_f32 v{T0+e}, 1.0, v{T0+e}")
for e in range(2):
    A(f"v_rcp_f32 v{T0+e}, v{T0+e}")
A("s_nop 0")
for e in range(2):
    A(f"v_mul_f32 v{G0+e}, v{G0+e}, v{T0+e}")
A(f"v_cvt_pk_bf16_f32 v{T0}, v{G0}, v{G0+1}")
A(f"v_lshlrev_b32 v{G0}, 16, v{T0}")
A(f"v_and_b32 v{G0+1}, s8, v{T0}")
for e in range(2):
    A(f"v_mul_f32 v{G0+e}, v{G0+e}, v{U0+e}")
A(f"v_cvt_pk_bf16_f32 v{T0}, v{G0}, v{G0+1}")
A(f"v_min_u32 v{T0}, -2, v{T0}")
A(f"buffer_store_dword v{T0}, {vHst}, {R4(S_WSF)}, {s_Hst} offen sc1")
A(f"s_cmp_lg_u32 {s_last}, 2")
A("s_cbranch_scc1 L_nl1")
A("v_readfirstlane_b32 s12, v41")
A("s_nop 1")
A("s_cmp_lg_u32 s12, 31")
A("s_cbranch_scc1 L_nl1")
A("v_mov_b32 v61, 1")
A("v_lshlrev_b32 v62, 7, v2")
for t in range(4):
    A(f"s_mov_b32 s13, 0x{WS_MB + t*8192:x}")
    A(f"buffer_store_dword v61, v62, {R4(S_WS)}, s13 offen offset:4 sc1")
k.label("L_nl1")
A("v_mov_b32 v60, 0")
A("v_mov_b32 v61, 1")
A("s_mov_b64 exec, 1")
A("s_waitcnt lgkmcnt(0)")
A(f"ds_add_u32 v60, v61 offset:{L_CNT+8}")
A("s_mov_b64 exec, -1")
A("s_setprio 0")
stamp(5)
if OPT['noaux'] == 1:
    A("s_barrier")
    stamp(11)
    A("s_branch L_fin")
for i in range(8):
    dma(S_WD, vTO, s_TO, i * 16 * 2048, 98304 + i * 1024)
for i in range(8):
    dma(S_WO, vTO, s_TO, i * 16 * 2048, i * 1024)
srd(S_WG, 34, 2048)
srd(S_WU, 36, 16384)
A("s_lshr_b32 s13, s2, 5")
A("s_lshl_b32 s13, s13, 11")
A("v_lshlrev_b32 v5, 5, v2")
A(f"buffer_load_dwordx4 v[{GX}:{GX+3}], v5, {R4(S_X)}, s13 offen")
A(f"buffer_load_dwordx4 v[{GX+4}:{GX+7}], v5, {R4(S_X)}, s13 offen offset:16")
A(f"buffer_load_dwordx4 v[{GX+8}:{GX+11}], v5, {R4(S_WG)}, 0 offen")
A(f"buffer_load_dwordx4 v[{GX+12}:{GX+15}], v5, {R4(S_WG)}, 0 offen offset:16")
A("s_waitcnt vmcnt(0)")
stamp(6)
if OPT['noaux'] == 2:
    A("s_barrier")
    stamp(11)
    A("s_branch L_fin")
tr_reads(TF0, vTr01, 0)
tr_reads(TF1, vTr23, 32768)
A(f"v_mov_b32 v{VG}, 0")
for r in range(8):
    A(f"v_lshlrev_b32 v60, 16, v{GX+r}")
    A(f"v_and_b32 v61, s8, v{GX+r}")
    A(f"v_lshlrev_b32 v62, 16, v{GX+8+r}")
    A(f"v_and_b32 v63, s8, v{GX+8+r}")
    A("v_mul_f32 v60, v60, v62")
    A("v_mul_f32 v61, v61, v63")
    A("v_cvt_pk_bf16_f32 v60, v60, v61")
    A("v_lshlrev_b32 v61, 16, v60")
    A("v_and_b32 v60, s8, v60")
    A(f"v_add_f32 v{VG}, v{VG}, v61")
    A(f"v_add_f32 v{VG}, v{VG}, v60")
for rot in (8, 4, 2, 1):
    A("s_nop 1")
    A(f"v_add_f32_dpp v{VG}, v{VG}, v{VG} row_ror:{rot} row_mask:0xf bank_mask:0xf")
A(f"v_mov_b32 v60, v{VG}")
A("s_nop 1")
A(f"v_permlane32_swap_b32 v{VG}, v60")
A(f"v_add_f32 v{VG}, v{VG}, v60")
A(f"v_mov_b32 v60, v{VG}")
A("s_nop 1")
A(f"v_permlane16_swap_b32 v{VG}, v60")
A(f"v_add_f32 v{VG}, v{VG}, v60")
round_bf16(VG, 60)
A(f"s_mov_b32 s10, {f32(-LOG2E)}")
A(f"v_mul_f32 v{VG}, s10, v{VG}")
A(f"v_exp_f32 v{VG}, v{VG}")
A("s_nop 0")
A(f"v_add_f32 v{VG}, 1.0, v{VG}")
A(f"v_rcp_f32 v{VG}, v{VG}")
A("s_nop 0")
round_bf16(VG, 60)
A(f"v_sub_f32 v60, 1.0, v{VG}")
round_bf16(60, 61)
A(f"v_cndmask_b32 v{VG}, v{VG}, v60, {sHI}")
A("s_lshl_b32 s13, s6, 8")
polln("pollH", GX, [(vHg, S_WSF, "s13", 64 * t) for t in range(4)], sleep=16)
A("s_waitcnt lgkmcnt(0)")
A("s_nop 2")
tile_gemm(TF1, GX, PZ)
stamp(9)
poll_mb("go2", 1, 16)
stamp(8)
A("s_lshl_b32 s13, s2, 6")
A(f"s_mov_b32 s10, {f32(LOG2E)}")
A(f"s_setprio {OPT['prio']}")
A("s_barrier")
stamp(11)
A(f"buffer_store_dwordx4 v[{PZ}:{PZ+3}], {vPst}, {R4(S_WS)}, {s_PAst} offen offset:128 sc1")
A(f"s_cmp_lg_u32 {sW}, 0")
A("s_cbranch_scc1 L_gatherO")
CA = 96
A(f"ds_read_b64 v[60:61], {vML} offset:{L_ML}")
for s_ in range(16):
    A(f"ds_read_b64 v[{CA+2*s_}:{CA+2*s_+1}], {vAcc} offset:{L_ACC + s_*512}")
A("s_waitcnt lgkmcnt(15)")
A("v_max_f32_dpp v62, v60, v60 row_ror:8 row_mask:0xf bank_mask:0xf")
for rot in (4, 2, 1):
    A("s_nop 1")
    A(f"v_max_f32_dpp v62, v62, v62 row_ror:{rot} row_mask:0xf bank_mask:0xf")
A("v_sub_f32 v60, v60, v62")
A("v_mul_f32 v60, s10, v60")
A("v_exp_f32 v60, v60")
A("s_nop 0")
A("v_mul_f32 v61, v61, v60")
for rot in (8, 4, 2, 1):
    A("s_nop 1")
    A(f"v_add_f32_dpp v61, v61, v61 row_ror:{rot} row_mask:0xf bank_mask:0xf")
A("v_rcp_f32 v61, v61")
A("s_nop 0")
A("v_mul_f32 v60, v60, v61")
A("s_waitcnt lgkmcnt(0)")
A("s_nop 0")
A(f"v_mul_f32_dpp v62, v60, v{CA} row_newbcast:0 row_mask:0xf bank_mask:0xf")
A(f"v_mul_f32_dpp v63, v60, v{CA+1} row_newbcast:0 row_mask:0xf bank_mask:0xf")
for s_ in range(1, 16):
    A(f"v_fmac_f32_dpp v62, v60, v{CA+2*s_} row_newbcast:{s_} row_mask:0xf bank_mask:0xf")
    A(f"v_fmac_f32_dpp v63, v60, v{CA+2*s_+1} row_newbcast:{s_} row_mask:0xf bank_mask:0xf")
A("v_cvt_pk_bf16_f32 v62, v62, v63")
A("v_min_u32 v62, -2, v62")
A(f"buffer_store_dword v62, {vL4}, {R4(S_WS)}, {s_Ost} offen sc1")
k.label("L_gatherO")
stamp(12)
polln("pollO", GX, [(vOg, S_WS, s_Oin, 64 * t) for t in range(4)], sleep=OPT['slpO'])
stamp(13)
A("s_nop 3")
tile_gemm(TF0, GX, 36)
A(f"buffer_store_dwordx4 v[36:39], {vPst}, {R4(S_WS)}, {s_PAst} offen sc1")
A(f"s_cmp_lg_u32 {sW}, 0")
A("s_cbranch_scc1 L_fin")
stamp(14)
A(f"s_add_u32 s11, {s_PAin}, 4096")
polln("pollA", GX, [(vL16, S_WS, s_PAin if t < 4 else "s11", 1024 * (t % 4)) for t in range(8)], sleep=OPT['slpA'])
stamp(15)
for st_ in (16, 8, 4):
    for e in range(st_):
        A(f"v_add_f32 v{GX+e}, v{GX+e}, v{GX+e+st_}")
A("s_nop 0")
for e in range(2):
    A(f"v_permlane32_swap_b32 v{GX+e}, v{GX+e+2}")
for e in range(2):
    A(f"v_add_f32 v{GX+e}, v{GX+e}, v{GX+e+2}")
A("s_nop 1")
A(f"v_permlane16_swap_b32 v{GX}, v{GX+1}")
A(f"v_add_f32 v{VOUT}, v{GX}, v{GX+1}")
round_bf16(VOUT, 60)
A(f"v_mul_f32 v{VOUT}, v{VOUT}, v{VG}")
round_bf16(VOUT, 60)
A("s_nop 1")
A(f"v_add_f32_dpp v{VOUT}, v{VOUT}, v{VOUT} row_ror:8 row_mask:0xf bank_mask:0xf")
A(f"v_cvt_pk_bf16_f32 v{VOUT}, v{VOUT}, v{VOUT}")
A(f"buffer_store_short v{VOUT}, {vOut}, {R4(S_WU)}, s13 offen")
stamp(16)
k.label("L_fin")
stamp_dump()
k.label("L_end")
A("s_endpgm")

body = "\n".join(k.L)
ref = open('cdna_kernels/%s.s.ref' % NAME).read().split('\n')
head = [l for l in ref if l.startswith(';') and '@launch' not in l]
out = "\n".join(head) + "\n"
out += f"; @launch grid=(256,1,1) block=(512,1,1) lds={LDS_BYTES}\n"
out += f""".amdgcn_target "amdgcn-amd-amdhsa--gfx950"
.text
.globl {NAME}_kernel
.p2align 8
.type {NAME}_kernel,@function
{NAME}_kernel:
{body}
.section .rodata,"a"
.p2align 6
.amdhsa_kernel {NAME}_kernel
  .amdhsa_next_free_vgpr 256
  .amdhsa_next_free_sgpr 102
  .amdhsa_accum_offset 256
  .amdhsa_group_segment_fixed_size 0
  .amdhsa_kernarg_size 104
  .amdhsa_user_sgpr_count 2
  .amdhsa_user_sgpr_kernarg_segment_ptr 1
  .amdhsa_system_sgpr_workgroup_id_x 1
  .amdhsa_float_denorm_mode_32 3
.end_amdhsa_kernel
"""
open(sys.argv[1], 'w').write(out)
```

```python
import sys, struct

NAME = "gated_mix__mha_block_cached__geglu_ffn__decode"
OPT = dict(stamps=0, nokv=0, slpO=1, slpA=1, slpG=1, prio=3, npre=1, D=8, nocomp=0, noaux=0, empty=0, bar0late=0, D2=0, NE=0, DE=16)
for a in sys.argv[2:]:
    kk_, v_ = a.split('=')
    assert kk_ in OPT, kk_
    OPT[kk_] = int(v_)

def f32(x):
    return "0x%08x" % struct.unpack('<I', struct.pack('<f', x))[0]

WS_H = 0x0
WS_O = 0x10000
WS_MB = 0x20000
WS_Q = 0x80000
WS_PA = 0x100000
WS_GU = 0x200000
WS_SIZE = 0x2b0000
WS_STAMP = 0x800000
L_Q = 0
L_CNT = 256
L_ML = 512
L_ACC = 4096
L_T = 12288
LDS_BYTES = L_T + 4 * 32768

HUGE = 0x7ffffff0
LOG2E = 1.4426950408889634
SCALE = 128 ** -0.5
SPIN_MAX = 200000

class K:
    def __init__(self):
        self.L = []
    def __call__(self, s):
        self.L.append("    " + s)
    def label(self, s):
        self.L.append(s + ":")
k = K()
A = k

def srd(d, base, nbytes, addlo=None, addhi=None):
    if addlo is None:
        A(f"s_mov_b32 s{d}, s{base}")
        A(f"s_mov_b32 s{d+1}, s{base+1}")
    else:
        A(f"s_add_u32 s{d}, s{base}, {addlo}")
        A(f"s_addc_u32 s{d+1}, s{base+1}, {addhi}")
    A(f"s_mov_b32 s{d+2}, {nbytes}" if isinstance(nbytes, str) else f"s_mov_b32 s{d+2}, 0x{nbytes:x}")
    A(f"s_mov_b32 s{d+3}, 0x00020000")

def stamp_setup():
    if not OPT['stamps']:
        return
    srd(92, 40, WS_STAMP + 0x100000)
    A("s_lshl_b32 s98, s2, 3")
    A("s_add_u32 s98, s98, s3")
    A("s_lshl_b32 s98, s98, 7")
    A(f"s_add_u32 s98, s98, 0x{WS_STAMP:x}")
    A("v_writelane_b32 v255, s100, 31")

def stamp(idx):
    if not OPT['stamps']:
        return
    A("s_memrealtime s[96:97]")
    A("s_waitcnt lgkmcnt(0)")
    A(f"v_writelane_b32 v255, s96, {idx}")

def stamp_dump():
    if not OPT['stamps']:
        return
    A("v_lshlrev_b32 v254, 2, v2")
    A("v_cmp_gt_u32 vcc, 32, v2")
    A("s_and_saveexec_b64 s[96:97], vcc")
    A("buffer_store_dword v255, v254, s[92:95], s98 offen")
    A("s_mov_b64 exec, s[96:97]")

if OPT['stamps']:
    A("s_memrealtime s[100:101]")
A("s_cmp_ge_u32 s2, %d" % (0 if OPT['empty'] else 256))
A("s_cbranch_scc1 L_end")
A("s_load_dwordx16 s[16:31], s[0:1], 0")
A("s_load_dwordx8 s[32:39], s[0:1], 64")
A("s_load_dwordx2 s[40:41], s[0:1], 96")
A("v_lshrrev_b32 v1, 6, v0")
A("v_and_b32 v2, 63, v0")
A("v_readfirstlane_b32 s3, v1")
A("s_and_b32 s10, s2, 7")
A("s_lshr_b32 s11, s2, 3")
A("s_and_b32 s6, s11, 3")
A("s_lshl_b32 s7, s10, 2")
A("s_add_u32 s6, s6, s7")
A("s_lshr_b32 s7, s11, 2")
A("s_mul_i32 s15, s10, 7")
A("s_add_u32 s15, s15, s7")
A("s_and_b32 s99, s11, 3")
A("s_mov_b32 s8, 0xffff0000")
A("v_and_b32 v3, 15, v2")
A("v_lshrrev_b32 v4, 4, v2")
if OPT['stamps']:
    A("v_mov_b32 v255, 0")
A("s_cmp_ge_u32 s3, 4")
A("s_cbranch_scc1 L_aux")

NB = 8
NPRE = OPT['npre']
NBLK = 1024 // (4 * NB)
RK = 64
RV = RK + 4 * NB
XB = RV + 4 * NB
VQ = 8
VS = 16
VACC = 32
VM, VL, VMN, VAL = 40, 41, 42, 43
VT = 44
STEP = 4 * NB * 1024
A("s_lshl_b32 s9, s7, 5")
A("s_add_u32 s9, s9, s6")
A("s_lshl_b32 s10, s9, 20")
A("v_lshlrev_b32 v5, 4, v2")
A(f"s_mul_i32 s12, s3, {NB*1024}")
A("v_add_u32 v5, s12, v5")
NS = NB // 4
DD = OPT['D']
DCUR = [DD]
for i in range(NS):
    A(f"s_mov_b32 s{52+i}, {4096*i}")
    A(f"s_mov_b32 s{56+i}, {4096*i + STEP}")
A("v_mov_b32 v6, 0")
A("v_mov_b32 v7, 0")
A(f"ds_write_b64 v6, v[6:7] offset:{L_CNT}")
A(f"ds_write_b64 v6, v[6:7] offset:{L_CNT+8}")
A("s_waitcnt lgkmcnt(0)")
srd(44, 18, 0 if OPT['nokv'] else 0x100000, "s10", "0")
srd(48, 20, 0 if OPT['nokv'] else 0x100000, "s10", "0")
stamp_setup()
A("s_barrier")

def ldk(base, i, so=52):
    A(f"buffer_load_dwordx4 v[{base+4*i}:{base+4*i+3}], v5, s[44:47], s{so+i//4} offen offset:{(i%4)*1024} nt")
def ldv(base, i, so=52):
    A(f"buffer_load_dwordx4 v[{base+4*i}:{base+4*i+3}], v5, s[48:51], s{so+i//4} offen offset:{(i%4)*1024} nt")
def adv():
    for i in range(NS):
        A(f"s_add_u32 s{52+i}, s{52+i}, 0x{STEP:x}")
        A(f"s_add_u32 s{56+i}, s{56+i}, 0x{STEP:x}")
def issue_after(sq, first=False):
    t = sq + DCUR[0]
    if first and t < 2 * NB:
        return False
    so = 52 if t < 2 * NB else 56
    t %= 2 * NB
    if t < NB:
        ldk(RK, t, so)
    else:
        ldv(RV, t - NB, so)
    return True

def kphase(base, waits, issue):
    for grp in range(NB // 4):
        for i in range(4 * grp, 4 * grp + 4):
            A(f"s_waitcnt vmcnt({waits(i)})")
            A(f"v_dot2_f32_bf16 v{VS+i}, v{base+4*i}, v{VQ}, 0")
            for r in range(1, 4 if not OPT['nocomp'] else 1):
                A(f"v_dot2_f32_bf16 v{VS+i}, v{base+4*i+r}, v{VQ+r}, v{VS+i}")
            if not (issue and issue_after(i, issue == 'first')) and i % 4 == 3:
                A("s_nop 0")
        for rot in (8, 4, 2, 1) if not OPT['nocomp'] else ():
            for i in range(4 * grp, 4 * grp + 4):
                A(f"v_add_f32_dpp v{VS+i}, v{VS+i}, v{VS+i} row_ror:{rot} row_mask:0xf bank_mask:0xf")

def softmax():
    if OPT['nocomp']:
        return
    H = NB // 2
    for t in range(H):
        A(f"v_cvt_pk_bf16_f32 v{VT+t}, v{VS+2*t}, v{VS+2*t+1}")
    for t in range(H):
        A(f"v_lshlrev_b32 v{VS+2*t}, 16, v{VT+t}")
        A(f"v_and_b32 v{VS+2*t+1}, s8, v{VT+t}")
    for i in range(NB):
        A(f"v_mul_f32 v{VS+i}, s13, v{VS+i}")
    for t in range(H):
        A(f"v_cvt_pk_bf16_f32 v{VT+t}, v{VS+2*t}, v{VS+2*t+1}")
    for t in range(H):
        A(f"v_lshlrev_b32 v{VS+2*t}, 16, v{VT+t}")
        A(f"v_and_b32 v{VS+2*t+1}, s8, v{VT+t}")
    assert NB == 8
    A(f"v_max3_f32 v{VT}, v{VS}, v{VS+1}, v{VM}")
    A(f"v_max3_f32 v{VT+1}, v{VS+2}, v{VS+3}, v{VS+4}")
    A(f"v_max3_f32 v{VT+2}, v{VS+5}, v{VS+6}, v{VS+7}")
    A(f"v_max3_f32 v{VMN}, v{VT}, v{VT+1}, v{VT+2}")
    A(f"v_sub_f32 v{VAL}, v{VM}, v{VMN}")
    A(f"v_mul_f32 v{VAL}, s14, v{VAL}")
    A(f"v_exp_f32 v{VAL}, v{VAL}")
    A(f"v_mov_b32 v{VM}, v{VMN}")
    for i in range(NB):
        A(f"v_sub_f32 v{VS+i}, v{VS+i}, v{VMN}")
    for i in range(NB):
        A(f"v_mul_f32 v{VS+i}, s14, v{VS+i}")
    for i in range(NB):
        A(f"v_exp_f32 v{VS+i}, v{VS+i}")
    A(f"v_mul_f32 v{VL}, v{VL}, v{VAL}")
    for e in range(8):
        A(f"v_mul_f32 v{VACC+e}, v{VACC+e}, v{VAL}")
    for t in range(4):
        A(f"v_add_f32 v{VT+t}, v{VS+2*t}, v{VS+2*t+1}")
    A(f"v_add_f32 v{VT}, v{VT}, v{VT+2}")
    A(f"v_add_f32 v{VT+1}, v{VT+1}, v{VT+3}")
    A(f"v_add_f32 v{VT}, v{VT}, v{VT+1}")
    A(f"v_add_f32 v{VL}, v{VL}, v{VT}")

def vphase(base, waits, issue):
    for i in range(NB):
        A(f"s_waitcnt vmcnt({waits(i)})")
        tb = VT + 8 * (i & 1)
        for r in range(4 if not OPT['nocomp'] else 1):
            A(f"v_lshlrev_b32 v{tb+2*r}, 16, v{base+4*i+r}")
            A(f"v_and_b32 v{tb+2*r+1}, s8, v{base+4*i+r}")
        if issue:
            issue_after(NB + i, issue == 'first')
        for e in range(8 if not OPT['nocomp'] else 1):
            A(f"v_fmac_f32 v{VACC+e}, v{VS+i}, v{tb+e}")

stamp(0)
for p in range(NPRE + 1):
    kb = XB + p * 8 * NB if p < NPRE else RK
    vb = kb + 4 * NB
    for i in range(NB):
        ldk(kb, i)
    for i in range(NB):
        ldv(vb, i)
    if p < NPRE:
        adv()
for e in range(8):
    A(f"v_mov_b32 v{VACC+e}, 0")
A(f"v_mov_b32 v{VM}, 0xff800000")
A(f"v_mov_b32 v{VL}, 0")
A(f"s_mov_b32 s13, {f32(SCALE)}")
A(f"s_mov_b32 s14, {f32(LOG2E)}")
A(f"s_mov_b32 s15, {NPRE}")
A("v_lshlrev_b32 v6, 4, v3")
stamp(1)
A("v_mov_b32 v7, 0")
k.label("L_qwait")
A(f"ds_read_b32 v12, v7 offset:{L_CNT+8}")
A("s_waitcnt lgkmcnt(0)")
A("v_readfirstlane_b32 s12, v12")
A("s_nop 1")
A("s_cmp_lg_u32 s12, 0")
A("s_cbranch_scc1 L_qdone")
A("s_sleep 1")
A("s_branch L_qwait")
k.label("L_qdone")
A(f"ds_read_b128 v[{VQ}:{VQ+3}], v6 offset:{L_Q}")
A("v_lshlrev_b32 v6, 5, v3")
A("s_waitcnt lgkmcnt(0)")
stamp(2)
tot = (NPRE + 1) * 2 * NB
for p in range(NPRE):
    kb = XB + p * 8 * NB
    kphase(kb, lambda i: tot - 1 - (2 * NB * p + i), False)
    softmax()
    vphase(kb + 4 * NB, lambda i: tot - 1 - (2 * NB * p + NB + i), False)
def stream_loop(D, tag):
    DCUR[0] = D
    first_wait = lambda sq: 2 * NB - 1 - sq + max(0, sq - (2 * NB - D))
    kphase(RK, first_wait, 'first')
    if D >= NB:
        A(f"s_branch L_mid{tag}")
    else:
        softmax()
        vphase(RV, lambda i: first_wait(NB + i), 'first')
        adv()
        A("s_add_u32 s15, s15, 1")
    A(".p2align 6")
    k.label(f"L_loop{tag}")
    kphase(RK, lambda i: D - 1, True)
    k.label(f"L_mid{tag}")
    softmax()
    vphase(RV, lambda i: D - 1, True)
    adv()
    A("s_add_u32 s15, s15, 1")
    A(f"s_cmp_lt_u32 s15, {NBLK - OPT['NE']}")
    A(f"s_cbranch_scc1 L_loop{tag}")
    if OPT['NE']:
        DE = OPT['DE']
        for t in range(D, DE):
            if t < NB:
                ldk(RK, t, 52)
            else:
                ldv(RV, t - NB, 52)
        if tag == "b":
            A("s_branch L_loopE")
            return
        DCUR[0] = DE
        k.label("L_loopE")
        kphase(RK, lambda i: DE - 1, True)
        softmax()
        vphase(RV, lambda i: DE - 1, True)
        adv()
        A("s_add_u32 s15, s15, 1")
        A(f"s_cmp_lt_u32 s15, {NBLK}")
        A("s_cbranch_scc1 L_loopE")
if OPT['D2']:
    A("s_getreg_b32 s12, hwreg(HW_REG_XCC_ID)")
    A("s_and_b32 s12, s12, 1")
    A("s_cmp_eq_u32 s12, 0")
    A("s_cbranch_scc1 L_even")
    stream_loop(OPT['D2'], "b")
    A("s_branch L_sdone")
    k.label("L_even")
stream_loop(DD, "a")
k.label("L_sdone")
A("s_lshl_b32 s12, s3, 2")
A("v_add_u32 v7, s12, v4")
A("v_lshlrev_b32 v9, 9, v7")
A("v_add_u32 v9, v9, v6")
A(f"ds_write_b128 v9, v[{VACC}:{VACC+3}] offset:{L_ACC}")
A(f"ds_write_b128 v9, v[{VACC+4}:{VACC+7}] offset:{L_ACC+16}")
A("v_lshlrev_b32 v7, 3, v7")
A("v_cmp_eq_u32 vcc, 0, v3")
A("s_and_saveexec_b64 s[60:61], vcc")
A(f"ds_write_b64 v7, v[{VM}:{VL}] offset:{L_ML}")
A("s_mov_b64 exec, s[60:61]")
A("s_waitcnt lgkmcnt(0)")
A("s_barrier")
stamp(3)
stamp_dump()
A("s_endpgm")


S_WQ, S_X, S_WS, S_WG, S_WU, S_WD, S_WO, S_WSF, S_DBG = 44, 48, 52, 56, 60, 64, 68, 72, 76
S_WS0, S_WS1 = 16, 20
def R4(n): return f"s[{n}:{n+3}]"
sW = "s9"
s_PAst, s_Ost, s_Qst, s_Hin, s_MB, s_Hst = "s80", "s82", "s83", "s85", "s86", "s87"
s_TQ, s_TF, s_TO, s_LDS, s_Oin, s_last, s_PAin, s_Qin = "s88", "s89", "s90", "s91", "s42", "s43", "s14", "s81"
s_GU, s_XF = "s26", "s27"
sHI = "s[4:5]"
vHUGE, vPst, vQst, vL4, vTQ, vTO, vTF, vXF, vOg, vHg = "v1", "v6", "v7", "v8", "v9", "v10", "v12", "v13", "v14", "v15"
vL16, vOut, vML, vAcc, vHst, vT23, vT01, vR01, vR23, vW01, vW23 = "v40", "v42", "v43", "v0", "v47", "v48", "v49", "v50", "v51", "v11", "v45"
XF = 16
SEL = 24
PZ = 32
DD0 = 208
WF = 96
TF0, TF1 = 160, 64
GX = 192
VG, VOUT = 44, 46

k.label("L_aux")
if OPT['prio']:
    A(f"s_setprio {OPT['prio']}")
A(f"s_sub_u32 {sW}, s3, 4")
A(f"v_cmp_lt_u32 {sHI}, 7, v3")
A("v_and_b32 v5, 7, v3")
A("v_lshrrev_b32 v62, 3, v2")
A("v_lshlrev_b32 v63, 4, v5")
A(f"v_lshl_add_u32 {vTQ}, v62, 13, v63")
A(f"v_mul_u32_u24 {vTF}, 7168, v62")
A(f"v_add_u32 {vTF}, {vTF}, v63")
A(f"v_lshl_add_u32 {vTO}, v62, 11, v63")
A(f"v_lshlrev_b32 {vXF}, 11, v5")
A(f"v_lshl_add_u32 {vXF}, v4, 4, {vXF}")
A("s_lshr_b32 s12, s7, 1")
A("s_lshl_b32 s12, s12, 2")
A(f"s_add_u32 s12, s12, {sW}")
A(f"s_lshl_b32 {s_TQ}, s12, 19")
A("s_lshl_b32 s84, s12, 7")
A("s_lshl_b32 s10, s6, 8")
A(f"s_add_u32 {s_TQ}, {s_TQ}, s10")
A("s_and_b32 s12, s7, 1")
A("s_lshl_b32 s12, s12, 7")
A(f"s_add_u32 {s_TQ}, {s_TQ}, s12")
A(f"s_lshl_b32 {s_LDS}, {sW}, 13")
A(f"s_add_u32 {s_LDS}, {s_LDS}, {L_T}")
A(f"s_cmp_lg_u32 {sW}, 0")
A("s_waitcnt lgkmcnt(0)")
stamp(20)
srd(S_WS, 40, WS_SIZE)
srd(S_X, 16, 0x4000)
srd(S_WQ, 22, 0x800000)
def dma(sr, v, so, goff, loff):
    A(f"s_add_u32 m0, {s_LDS}, {loff}")
    A(f"s_add_u32 s11, {so}, {goff}")
    A(f"buffer_load_dwordx4 {v}, {R4(sr)}, s11 offen nt lds")
def slot_consts():
    A("v_lshrrev_b32 v62, 3, v3")
    A("v_lshlrev_b32 v63, 5, v62")
    A("v_lshl_add_u32 v63, v4, 3, v63")
    A(f"v_mul_u32_u24 {vHst}, 7168, v5")
    A(f"v_add_u32 {vHst}, {vHst}, v63")
    A("v_lshlrev_b32 v62, 6, v62")
    A("v_lshl_add_u32 v62, v4, 4, v62")
    A(f"v_lshl_add_u32 {vPst}, v5, 17, v62")
    A(f"v_lshl_add_u32 {vQst}, v5, 11, v62")
    A(f"v_lshlrev_b32 {vL4}, 2, v2")
    A(f"v_lshlrev_b32 {vL16}, 4, v2")
    A("s_lshl_b32 s12, s6, 3")
    A("s_add_u32 s12, s12, s7")
    A(f"s_lshl_b32 {s_MB}, s12, 7")
    A(f"s_add_u32 {s_MB}, {s_MB}, 0x{WS_MB:x}")
    A(f"s_lshl_b32 {s_Ost}, s12, 8")
    A(f"s_add_u32 {s_Ost}, {s_Ost}, 0x{WS_O:x}")
    A(f"s_lshl_b32 {s_Qin}, s12, 11")
    A(f"s_add_u32 {s_Qin}, {s_Qin}, 0x{WS_Q:x}")
    A(f"s_lshl_b32 {s_Qst}, s6, 14")
    A("s_lshl_b32 s12, s7, 8")
    A(f"s_add_u32 {s_Qst}, {s_Qst}, s12")
    A(f"s_add_u32 {s_Qst}, {s_Qst}, 0x{WS_Q:x}")
    A("s_and_b32 s12, s6, 15")
    A(f"s_lshl_b32 {s_PAst}, s12, 12")
    A("s_lshl_b32 s12, s7, 1")
    A("s_lshr_b32 s13, s6, 4")
    A("s_add_u32 s12, s12, s13")
    A("s_lshl_b32 s12, s12, 8")
    A(f"s_add_u32 {s_PAst}, {s_PAst}, s12")
    A(f"s_add_u32 {s_PAst}, {s_PAst}, 0x{WS_PA:x}")
    A(f"s_lshl_b32 {s_Hst}, s15, 7")
    A(f"s_mul_i32 {s_GU}, s15, 12288")
    A(f"s_add_u32 {s_GU}, {s_GU}, 0x{WS_GU:x}")
    A("s_cmp_lt_u32 s7, 7")
    A("s_cselect_b32 s13, 0x%x, 0" % WS_SIZE)
    srd(S_WSF, 40, "s13")
    A("s_cmp_eq_u32 s99, 0")
    A("s_cselect_b32 s12, s13, 0")
    A("s_cselect_b32 s13, 0, s13")
    srd(S_WS0, 40, "s12")
    srd(S_WS1, 40, "s13")
    A("s_lshl_b32 s12, s99, 12")
    A(f"s_add_u32 s10, {s_GU}, s12")
    A("s_sub_u32 s10, s10, 4096")
    A(f"s_add_u32 s13, {s_PAst}, 0x10000")
A("s_cbranch_scc1 L_a1")
slot_consts()
for r in range(4):
    A(f"v_mov_b32 v{PZ+r}, -1")
A("v_mov_b32 v60, 0")
A("v_mov_b32 v61, 0")
P = f"v[{PZ}:{PZ+3}]"
A(f"buffer_store_dwordx4 {P}, {vQst}, {R4(S_WS)}, {s_Qst} offen sc1")
A(f"buffer_store_dwordx4 {P}, {vQst}, {R4(S_WS)}, {s_Qst} offen offset:128 sc1")
A(f"buffer_store_dwordx2 v[60:61], off, {R4(S_WS)}, {s_MB} sc1")
A(f"buffer_store_dwordx2 v[{PZ}:{PZ+1}], {vHst}, {R4(S_WS0)}, {s_Hst} offen sc1")
A(f"buffer_store_dwordx2 v[{PZ}:{PZ+1}], {vHst}, {R4(S_WS0)}, {s_Hst} offen offset:64 sc1")
for t in range(4):
    A(f"buffer_store_dwordx4 {P}, {vL16}, {R4(S_WS1)}, s10 offen offset:{1024*t} sc1")
for so in (s_PAst, "s13"):
    A(f"buffer_store_dwordx4 {P}, {vPst}, {R4(S_WS)}, {so} offen sc1")
    A(f"buffer_store_dwordx4 {P}, {vPst}, {R4(S_WS)}, {so} offen offset:128 sc1")
A(f"buffer_store_dword v{PZ}, {vL4}, {R4(S_WS)}, {s_Ost} offen sc1")
k.label("L_a1")
stamp(21)
for t in range(2):
    A(f"buffer_load_dwordx4 v[{XF+4*t}:{XF+4*t+3}], {vXF}, {R4(S_X)}, s84 offen offset:{64*t}")
for i in range(8):
    dma(S_WQ, vTQ, s_TQ, i * 8 * 8192, i * 1024)
stamp(22)
if OPT['bar0late']:
    A(f"s_cmp_lg_u32 {sW}, 0")
    A("s_cbranch_scc1 L_a1b")
    A("s_waitcnt vmcnt(10)")
    k.label("L_a1b")
A("s_barrier")
stamp_setup()
stamp(0)
srd(S_DBG, 38, 256)
A("v_mov_b32 v60, 0")
A("v_mov_b32 v61, 1")
A(f"s_cmp_lg_u32 {sW}, 0")
A("s_cbranch_scc1 L_a2")
A("s_waitcnt vmcnt(10)")
A("s_lshl_b32 s13, s6, 2")
A("v_mov_b32 v41, 1")
A("s_mov_b64 exec, 1")
A(f"buffer_atomic_add v41, off, {R4(S_DBG)}, s13 sc0 sc1")
A("s_mov_b64 exec, -1")
k.label("L_a2")
stamp(1)
slot_consts()
A("v_bfe_u32 v62, v2, 2, 2")
A("v_and_b32 v63, 3, v2")
A(f"v_lshlrev_b32 {vT01}, 10, v4")
A(f"v_lshl_add_u32 {vT01}, v62, 7, {vT01}")
A(f"v_lshl_add_u32 {vT01}, v63, 3, {vT01}")
A(f"v_add_u32 {vT01}, {s_LDS}, {vT01}")
A(f"v_add_u32 {vT23}, 0x10000, {vT01}")
A(f"v_add_u32 {vW01}, {s_LDS}, {vL16}")
A(f"v_add_u32 {vW23}, 0x10000, {vW01}")
A(f"v_add_u32 {vR01}, {L_T}, {vL16}")
A(f"v_add_u32 {vR23}, 0x10000, {vR01}")
A(f"s_lshl_b32 s13, {sW}, 11")
A(f"v_add_u32 v39, s13, {vL16}")

def tr_reads(base, vaddr, lo):
    for nb in range(4):
        for kk in range(2):
            r = base + (nb * 2 + kk) * 4
            A(f"ds_read_b64_tr_b16 v[{r}:{r+1}], {vaddr} offset:{lo + kk*4096 + nb*32}")
            A(f"ds_read_b64_tr_b16 v[{r+2}:{r+3}], {vaddr} offset:{lo + kk*4096 + 512 + nb*32}")
def tile_gemm(frag, xf, dst):
    for kk in range(2):
        for nb in range(4):
            r = frag + (nb * 2 + kk) * 4
            D = DD0 + 4 * nb
            c = "0" if kk == 0 else f"v[{D}:{D+3}]"
            A(f"v_mfma_f32_16x16x32_bf16 v[{D}:{D+3}], v[{r}:{r+3}], v[{xf+4*kk}:{xf+4*kk+3}], {c}")
    A("s_nop 5")
    for e in range(4):
        A(f"v_cndmask_b32 v{dst+e}, v{DD0+e}, v{DD0+4+e}, {sHI}")
    for e in range(4):
        A(f"v_cndmask_b32 v{dst+4+e}, v{DD0+8+e}, v{DD0+12+e}, {sHI}")
def put_partial(vaddr, lo):
    A(f"ds_write_b128 {vaddr}, v[{SEL}:{SEL+3}] offset:{lo}")
    A(f"ds_write_b128 {vaddr}, v[{SEL+4}:{SEL+7}] offset:{lo+1024}")
def arrive(cnt_off, lab):
    A("s_mov_b64 exec, 1")
    A("s_waitcnt lgkmcnt(0)")
    A(f"ds_add_rtn_u32 v62, v60, v61 offset:{cnt_off}")
    A("s_waitcnt lgkmcnt(0)")
    A("v_readfirstlane_b32 s12, v62")
    A("s_mov_b64 exec, -1")
    A("s_cmp_lg_u32 s12, 3")
    A(f"s_cbranch_scc1 {lab}")
def sum4(dst, vaddr, lo, stride):
    for w in range(4):
        for t in range(2):
            A(f"ds_read_b128 v[{dst+8*w+4*t}:{dst+8*w+4*t+3}], {vaddr} offset:{lo + w*stride + t*1024}")
def sum4b(dst, clean=True):
    for e in range(8):
        A(f"v_add_f32 v{dst+e}, v{dst+e}, v{dst+8+e}")
        A(f"v_add_f32 v{dst+16+e}, v{dst+16+e}, v{dst+24+e}")
    for e in range(8):
        A(f"v_add_f32 v{dst+e}, v{dst+e}, v{dst+16+e}")
    for e in range(8 if clean else 0):
        A(f"v_min_u32 v{dst+e}, -2, v{dst+e}")
def poll_mb(name, dword, sleep):
    A("s_mov_b32 s12, 0")
    k.label(f"L_{name}")
    A(f"buffer_load_dword v62, off, {R4(S_WS)}, {s_MB} offset:{4*dword} sc1")
    A("s_waitcnt vmcnt(0)")
    A("v_readfirstlane_b32 s10, v62")
    A("s_nop 1")
    A("s_cmp_lg_u32 s10, 0")
    A(f"s_cbranch_scc1 L_{name}_done")
    A(f"s_sleep {sleep}")
    A("s_add_u32 s12, s12, 1")
    A(f"s_cmp_lt_u32 s12, {SPIN_MAX}")
    A(f"s_cbranch_scc1 L_{name}")
    k.label(f"L_{name}_done")
def polln(name, dst, loads, sleep=2):
    n = len(loads)
    A("s_mov_b32 s12, 0")
    k.label(f"L_{name}")
    for t, (vo, sr, so, im) in enumerate(loads):
        A(f"buffer_load_dwordx4 v[{dst+4*t}:{dst+4*t+3}], {vo}, {R4(sr)}, {so} offen offset:{im} sc1")
    A("s_waitcnt vmcnt(0)")
    regs = [f"v{dst+i}" for i in range(4 * n)]
    tmp = ["v60", "v61", "v62", "v63"]
    acc = []
    i = 0
    while len(acc) < 4 and i + 3 <= len(regs):
        A(f"v_max3_u32 {tmp[len(acc)]}, {regs[i]}, {regs[i+1]}, {regs[i+2]}")
        acc.append(tmp[len(acc)]); i += 3
    j = 0
    while i < len(regs):
        if i + 2 <= len(regs):
            A(f"v_max3_u32 {acc[j]}, {acc[j]}, {regs[i]}, {regs[i+1]}"); i += 2
        else:
            A(f"v_max_u32 {acc[j]}, {acc[j]}, {regs[i]}"); i += 1
        j = (j + 1) % len(acc)
    if len(acc) == 4:
        A(f"v_max3_u32 {acc[0]}, {acc[0]}, {acc[1]}, {acc[2]}")
        A(f"v_max_u32 {acc[0]}, {acc[0]}, {acc[3]}")
    else:
        assert len(acc) == 2
        A(f"v_max_u32 {acc[0]}, {acc[0]}, {acc[1]}")
    A("v_cmp_eq_u32 vcc, -1, v60")
    A(f"s_cbranch_vccz L_{name}_done")
    A("s_mov_b64 exec, vcc")
    if sleep:
        A(f"s_sleep {sleep}")
    A("s_add_u32 s12, s12, 1")
    A(f"s_cmp_lt_u32 s12, {SPIN_MAX}")
    A(f"s_cbranch_scc1 L_{name}")
    k.label(f"L_{name}_done")
    A("s_mov_b64 exec, -1")
def round_bf16(r, tmp):
    A(f"v_cvt_pk_bf16_f32 v{tmp}, v{r}, v{r}")
    A(f"v_and_b32 v{r}, s8, v{tmp}")

A(f"s_cmp_lg_u32 {sW}, 0")
A("s_cbranch_scc1 L_a2b")
A("s_waitcnt vmcnt(1)")
A("s_branch L_a2c")
k.label("L_a2b")
A("s_waitcnt vmcnt(0)")
k.label("L_a2c")
stamp(2)
tr_reads(WF, vT01, 0)
A(f"s_mov_b32 {s_last}, 0")
A("s_mov_b32 s84, 0")
A("s_waitcnt lgkmcnt(0)")
tile_gemm(WF, XF, SEL)
put_partial("v39", L_ACC)
arrive(L_CNT, "L_a4")
sum4(WF, vL16, L_ACC, 2048)
A("s_waitcnt lgkmcnt(0)")
sum4b(WF)
A(f"buffer_store_dwordx4 v[{WF}:{WF+3}], {vQst}, {R4(S_WS)}, {s_Qst} offen sc1")
A(f"buffer_store_dwordx4 v[{WF+4}:{WF+7}], {vQst}, {R4(S_WS)}, {s_Qst} offen offset:128 sc1")
A("s_mov_b32 s84, 1")
k.label("L_a4")
stamp(23)
A("s_cmp_lt_u32 s7, 7")
A("s_cselect_b32 s13, 0x700000, 0")
srd(S_WG, 28, "s13")
srd(S_WU, 30, "s13")
srd(S_WD, 32, "s13")
srd(S_WO, 24, 0x800000)
A("s_mov_b32 s28, s10")
A("s_lshl_b32 s12, s99, 2")
A(f"s_add_u32 s12, s12, {sW}")
A(f"s_lshl_b32 {s_XF}, s12, 7")
A(f"s_mul_i32 {s_TF}, s12, {64 * 7168}")
A(f"s_add_u32 {s_TF}, {s_TF}, {s_Hst}")
A("s_lshl_b32 s12, s7, 1")
A("s_lshr_b32 s13, s6, 4")
A("s_add_u32 s12, s12, s13")
A("s_lshl_b32 s12, s12, 2")
A(f"s_add_u32 s12, s12, {sW}")
A(f"s_lshl_b32 {s_TO}, s12, 17")
A("s_and_b32 s13, s6, 15")
A("s_lshl_b32 s29, s13, 7")
A(f"s_add_u32 {s_TO}, {s_TO}, s29")
A(f"s_lshl_b32 {s_Hin}, s12, 7")
A("s_lshr_b32 s13, s12, 1")
A(f"s_lshl_b32 {s_Oin}, s13, 11")
A("s_and_b32 s13, s12, 1")
A("s_lshl_b32 s13, s13, 7")
A(f"s_add_u32 {s_Oin}, {s_Oin}, s13")
A(f"s_add_u32 {s_Oin}, {s_Oin}, 0x{WS_O:x}")
A(f"s_lshl_b32 {s_PAin}, s7, 5")
A(f"s_add_u32 {s_PAin}, {s_PAin}, s6")
A(f"s_lshl_b32 {s_PAin}, {s_PAin}, 12")
A(f"s_add_u32 {s_PAin}, {s_PAin}, 0x{WS_PA:x}")
A("s_lshl_b32 s15, s7, 11")
A("s_add_u32 s15, s15, s29")
A("s_lshr_b32 s13, s6, 4")
A("s_lshl_b32 s13, s13, 6")
A("s_add_u32 s15, s15, s13")
A(f"s_add_u32 s30, {s_PAst}, 0x10000")
A(f"v_mov_b32 {vHUGE}, 0x{HUGE:x}")
A(f"v_lshlrev_b32 {vOut}, 3, v5")
A(f"v_lshl_add_u32 {vOut}, v4, 1, {vOut}")
A(f"v_cndmask_b32 {vOut}, {vOut}, {vHUGE}, {sHI}")
A(f"v_lshlrev_b32 {vML}, 3, v3")
A(f"v_lshlrev_b32 {vAcc}, 3, v2")
A(f"v_lshlrev_b32 {vOg}, 8, v5")
A(f"v_lshl_add_u32 {vOg}, v4, 4, {vOg}")
A(f"v_mul_u32_u24 {vHg}, 7168, v5")
A(f"v_lshl_add_u32 {vHg}, v4, 4, {vHg}")
A(f"s_cmp_lg_u32 {sW}, 0")
A("s_cbranch_scc1 L_a5")
A("s_waitcnt vmcnt(2)")
A("s_cmp_lg_u32 s84, 0")
A("s_cbranch_scc1 L_a4b")
A("s_waitcnt vmcnt(0)")
k.label("L_a4b")
A("v_readfirstlane_b32 s12, v41")
A("s_nop 1")
A("s_cmp_lg_u32 s12, 7")
A("s_cbranch_scc1 L_a3")
A("v_lshlrev_b32 v62, 7, v2")
A("s_lshl_b32 s13, s6, 10")
A(f"s_add_u32 s13, s13, 0x{WS_MB:x}")
A("s_mov_b64 exec, 0xff")
A(f"buffer_store_dword v61, v62, {R4(S_WS)}, s13 offen sc1")
A("s_mov_b64 exec, 1")
A("v_mov_b32 v41, 1")
A(f"buffer_atomic_add v41, off, {R4(S_DBG)}, 0 offset:128 sc0 sc1")
A(f"s_mov_b32 {s_last}, 2")
A("s_mov_b64 exec, -1")
k.label("L_a3")
poll_mb("go1", 0, OPT['slpG'])
stamp(4)
polln("pollQ", GX, [(vL16, S_WS, s_Qin, 1024 * t) for t in range(2)], sleep=1)
for e in range(4):
    A(f"v_add_f32 v{GX+e}, v{GX+e}, v{GX+4+e}")
A("v_and_b32 v63, 31, v2")
A("v_lshlrev_b32 v63, 3, v63")
for e in range(2):
    A(f"v_permlane32_swap_b32 v{GX+e}, v{GX+e+2}")
for e in range(2):
    A(f"v_add_f32 v{GX+e}, v{GX+e}, v{GX+e+2}")
A(f"v_cvt_pk_bf16_f32 v62, v{GX}, v{GX+1}")
A("v_lshrrev_b32 v36, 5, v2")
A("v_lshl_add_u32 v63, v36, 2, v63")
A(f"ds_write_b32 v63, v62 offset:{L_Q}")
A("v_mov_b32 v60, 0")
A("v_mov_b32 v61, 1")
A("s_waitcnt lgkmcnt(0)")
A(f"ds_write_b32 v60, v61 offset:{L_CNT+8}")
A(f"s_cmp_lg_u32 {s_last}, 2")
A("s_cbranch_scc1 L_a5")
A("v_readfirstlane_b32 s12, v41")
A("s_nop 1")
A("s_cmp_lg_u32 s12, 31")
A("s_cbranch_scc1 L_a5")
A("v_lshlrev_b32 v62, 7, v2")
for t in range(4):
    A(f"s_mov_b32 s13, 0x{WS_MB + t*8192:x}")
    A(f"buffer_store_dword v61, v62, {R4(S_WS)}, s13 offen offset:4 sc1")
k.label("L_a5")
A("s_setprio 0")
stamp(5)
if OPT['noaux'] == 1:
    A("s_barrier")
    stamp(11)
    A("s_branch L_fin")
for t in range(2):
    A(f"buffer_load_dwordx4 v[{XF+4*t}:{XF+4*t+3}], {vXF}, {R4(S_X)}, {s_XF} offen offset:{64*t}")
for i in range(8):
    dma(S_WG, vTF, s_TF, i * 8 * 7168, 32768 + i * 1024)
for i in range(8):
    dma(S_WU, vTF, s_TF, i * 8 * 7168, 65536 + i * 1024)
for i in range(8):
    dma(S_WO, vTO, s_TO, i * 8 * 2048, i * 1024)
for i in range(8):
    dma(S_WD, vTO, s_TO, i * 8 * 2048, 98304 + i * 1024)
srd(S_WQ, 34, 2048)
A("s_lshl_b32 s13, s7, 11")
A("v_lshlrev_b32 v5, 5, v2")
A(f"buffer_load_dwordx4 v[{GX}:{GX+3}], v5, {R4(S_X)}, s13 offen")
A(f"buffer_load_dwordx4 v[{GX+4}:{GX+7}], v5, {R4(S_X)}, s13 offen offset:16")
A(f"buffer_load_dwordx4 v[{GX+8}:{GX+11}], v5, {R4(S_WQ)}, 0 offen")
A(f"buffer_load_dwordx4 v[{GX+12}:{GX+15}], v5, {R4(S_WQ)}, 0 offen offset:16")
A("s_waitcnt vmcnt(20)")
tr_reads(WF, vT01, 32768)
tr_reads(WF + 32, vT23, 0)
A("s_waitcnt lgkmcnt(0)")
tile_gemm(WF, XF, SEL)
put_partial(vW01, 32768)
tile_gemm(WF + 32, XF, SEL)
put_partial(vW23, 0)
A("s_mov_b32 s84, 0")
arrive(L_CNT + 4, "L_a6")
sum4(WF, vR01, 32768, 8192)
sum4(WF + 32, vR23, 0, 8192)
A("s_waitcnt lgkmcnt(0)")
sum4b(WF)
sum4b(WF + 32)
for t, r in enumerate((WF, WF + 4, WF + 32, WF + 36)):
    A(f"buffer_store_dwordx4 v[{r}:{r+3}], {vL16}, {R4(S_WS1)}, s28 offen offset:{1024*t} sc1")
A("s_mov_b32 s84, 1")
k.label("L_a6")
stamp(3)
A("s_waitcnt vmcnt(0)")
stamp(6)
tr_reads(TF0, vT01, 0)
tr_reads(TF1, vT23, 32768)
srd(S_WU, 36, 16384)
A(f"v_mov_b32 v{VG}, 0")
for r in range(8):
    A(f"v_lshlrev_b32 v60, 16, v{GX+r}")
    A(f"v_and_b32 v61, s8, v{GX+r}")
    A(f"v_lshlrev_b32 v62, 16, v{GX+8+r}")
    A(f"v_and_b32 v63, s8, v{GX+8+r}")
    A("v_mul_f32 v60, v60, v62")
    A("v_mul_f32 v61, v61, v63")
    A("v_cvt_pk_bf16_f32 v60, v60, v61")
    A("v_lshlrev_b32 v61, 16, v60")
    A("v_and_b32 v60, s8, v60")
    A(f"v_add_f32 v{VG}, v{VG}, v61")
    A(f"v_add_f32 v{VG}, v{VG}, v60")
for rot in (8, 4, 2, 1):
    A("s_nop 1")
    A(f"v_add_f32_dpp v{VG}, v{VG}, v{VG} row_ror:{rot} row_mask:0xf bank_mask:0xf")
A(f"v_mov_b32 v60, v{VG}")
A("s_nop 1")
A(f"v_permlane32_swap_b32 v{VG}, v60")
A(f"v_add_f32 v{VG}, v{VG}, v60")
A(f"v_mov_b32 v60, v{VG}")
A("s_nop 1")
A(f"v_permlane16_swap_b32 v{VG}, v60")
A(f"v_add_f32 v{VG}, v{VG}, v60")
round_bf16(VG, 60)
A(f"s_mov_b32 s10, {f32(-LOG2E)}")
A(f"v_mul_f32 v{VG}, s10, v{VG}")
A(f"v_exp_f32 v{VG}, v{VG}")
A("s_nop 0")
A(f"v_add_f32 v{VG}, 1.0, v{VG}")
A(f"v_rcp_f32 v{VG}, v{VG}")
A("s_nop 0")
round_bf16(VG, 60)
A(f"v_sub_f32 v60, 1.0, v{VG}")
round_bf16(60, 61)
A(f"v_cndmask_b32 v{VG}, v{VG}, v60, {sHI}")
poll_mb("go2", 1, 16)
stamp(8)
A("s_cmp_eq_u32 s84, 0")
A("s_cbranch_scc1 L_a6b")
G0, U0, T0 = WF, WF + 32, WF + 8
for p in range(3):
    A(f"s_add_u32 s13, {s_GU}, {4096*p}")
    polln(f"pollG{p}", GX, [(vL16, S_WS0, "s13", 1024 * t) for t in range(4)], sleep=16)
    for e in range(8):
        A(f"v_add_f32 v{G0+e}, v{G0+e}, v{GX+e}")
        A(f"v_add_f32 v{U0+e}, v{U0+e}, v{GX+8+e}")
for t in range(4):
    A(f"v_cvt_pk_bf16_f32 v{T0+t}, v{G0+2*t}, v{G0+2*t+1}")
    A(f"v_cvt_pk_bf16_f32 v{T0+4+t}, v{U0+2*t}, v{U0+2*t+1}")
for t in range(4):
    A(f"v_lshlrev_b32 v{G0+2*t}, 16, v{T0+t}")
    A(f"v_and_b32 v{G0+2*t+1}, s8, v{T0+t}")
    A(f"v_lshlrev_b32 v{U0+2*t}, 16, v{T0+4+t}")
    A(f"v_and_b32 v{U0+2*t+1}, s8, v{T0+4+t}")
A(f"s_mov_b32 s10, {f32(0.044715)}")
A(f"s_mov_b32 s11, {f32(-2.0*0.7978845608028654*LOG2E)}")
for e in range(8):
    A(f"v_mul_f32 v{T0+e}, v{G0+e}, v{G0+e}")
for e in range(8):
    A(f"v_fma_f32 v{T0+e}, v{T0+e}, s10, 1.0")
for e in range(8):
    A(f"v_mul_f32 v{T0+e}, v{T0+e}, v{G0+e}")
for e in range(8):
    A(f"v_mul_f32 v{T0+e}, s11, v{T0+e}")
for e in range(8):
    A(f"v_exp_f32 v{T0+e}, v{T0+e}")
for e in range(8):
    A(f"v_add_f32 v{T0+e}, 1.0, v{T0+e}")
for e in range(8):
    A(f"v_rcp_f32 v{T0+e}, v{T0+e}")
for e in range(8):
    A(f"v_mul_f32 v{G0+e}, v{G0+e}, v{T0+e}")
for t in range(4):
    A(f"v_cvt_pk_bf16_f32 v{T0+t}, v{G0+2*t}, v{G0+2*t+1}")
for t in range(4):
    A(f"v_lshlrev_b32 v{G0+2*t}, 16, v{T0+t}")
    A(f"v_and_b32 v{G0+2*t+1}, s8, v{T0+t}")
for e in range(8):
    A(f"v_mul_f32 v{G0+e}, v{G0+e}, v{U0+e}")
for t in range(4):
    A(f"v_cvt_pk_bf16_f32 v{PZ+t}, v{G0+2*t}, v{G0+2*t+1}")
for t in range(4):
    A(f"v_min_u32 v{PZ+t}, -2, v{PZ+t}")
A(f"buffer_store_dwordx2 v[{PZ}:{PZ+1}], {vHst}, {R4(S_WS0)}, {s_Hst} offen sc1")
A(f"buffer_store_dwordx2 v[{PZ+2}:{PZ+3}], {vHst}, {R4(S_WS0)}, {s_Hst} offen offset:64 sc1")
k.label("L_a6b")
polln("pollH", GX, [(vHg, S_WSF, s_Hin, 64 * t) for t in range(2)], sleep=16)
A("s_waitcnt lgkmcnt(0)")
A("s_nop 2")
tile_gemm(TF1, GX, SEL)
put_partial(vW23, 32768)
stamp(9)
A(f"s_mov_b32 s10, {f32(LOG2E)}")
A(f"s_setprio {OPT['prio']}")
A("s_waitcnt lgkmcnt(0)")
A("s_barrier")
stamp(11)
A(f"s_cmp_lg_u32 {sW}, 0")
A("s_cbranch_scc1 L_gatherO")
CA = 96
A(f"ds_read_b64 v[60:61], {vML} offset:{L_ML}")
for s_ in range(16):
    A(f"ds_read_b64 v[{CA+2*s_}:{CA+2*s_+1}], {vAcc} offset:{L_ACC + s_*512}")
A("s_waitcnt lgkmcnt(15)")
A("v_max_f32_dpp v62, v60, v60 row_ror:8 row_mask:0xf bank_mask:0xf")
for rot in (4, 2, 1):
    A("s_nop 1")
    A(f"v_max_f32_dpp v62, v62, v62 row_ror:{rot} row_mask:0xf bank_mask:0xf")
A("v_sub_f32 v60, v60, v62")
A("v_mul_f32 v60, s10, v60")
A("v_exp_f32 v60, v60")
A("s_nop 0")
A("v_mul_f32 v61, v61, v60")
for rot in (8, 4, 2, 1):
    A("s_nop 1")
    A(f"v_add_f32_dpp v61, v61, v61 row_ror:{rot} row_mask:0xf bank_mask:0xf")
A("v_rcp_f32 v61, v61")
A("s_nop 0")
A("v_mul_f32 v60, v60, v61")
A("s_waitcnt lgkmcnt(0)")
A("s_nop 0")
A(f"v_mul_f32_dpp v62, v60, v{CA} row_newbcast:0 row_mask:0xf bank_mask:0xf")
A(f"v_mul_f32_dpp v63, v60, v{CA+1} row_newbcast:0 row_mask:0xf bank_mask:0xf")
for s_ in range(1, 16):
    A(f"v_fmac_f32_dpp v62, v60, v{CA+2*s_} row_newbcast:{s_} row_mask:0xf bank_mask:0xf")
    A(f"v_fmac_f32_dpp v63, v60, v{CA+2*s_+1} row_newbcast:{s_} row_mask:0xf bank_mask:0xf")
A("v_cvt_pk_bf16_f32 v62, v62, v63")
A("v_min_u32 v62, -2, v62")
A(f"buffer_store_dword v62, {vL4}, {R4(S_WS)}, {s_Ost} offen sc1")
k.label("L_gatherO")
stamp(12)
A(f"s_cmp_lg_u32 {sW}, 3")
A("s_cbranch_scc1 L_a6c")
sum4(WF, vR23, 32768, 8192)
A("s_waitcnt lgkmcnt(0)")
sum4b(WF)
A(f"buffer_store_dwordx4 v[{WF}:{WF+3}], {vPst}, {R4(S_WS)}, {s_PAst} offen offset:128 sc1")
A(f"buffer_store_dwordx4 v[{WF+4}:{WF+7}], {vPst}, {R4(S_WS)}, s30 offen offset:128 sc1")
k.label("L_a6c")
polln("pollO", GX, [(vOg, S_WS, s_Oin, 64 * t) for t in range(2)], sleep=OPT['slpO'])
stamp(13)
A("v_mov_b32 v60, 0")
A("v_mov_b32 v61, 1")
A("s_nop 1")
tile_gemm(TF0, GX, SEL)
put_partial(vW01, 0)
arrive(L_CNT + 12, "L_a7")
sum4(WF, vR01, 0, 8192)
A("s_waitcnt lgkmcnt(0)")
sum4b(WF)
A(f"buffer_store_dwordx4 v[{WF}:{WF+3}], {vPst}, {R4(S_WS)}, {s_PAst} offen sc1")
A(f"buffer_store_dwordx4 v[{WF+4}:{WF+7}], {vPst}, {R4(S_WS)}, s30 offen sc1")
k.label("L_a7")
A(f"s_cmp_lg_u32 {sW}, 0")
A("s_cbranch_scc1 L_fin")
stamp(14)
polln("pollA", GX, [(vL16, S_WS, s_PAin, 1024 * t) for t in range(4)], sleep=OPT['slpA'])
stamp(15)
for e in range(8):
    A(f"v_add_f32 v{GX+e}, v{GX+e}, v{GX+e+8}")
for e in range(4):
    A(f"v_add_f32 v{GX+e}, v{GX+e}, v{GX+e+4}")
A("s_nop 0")
for e in range(2):
    A(f"v_permlane32_swap_b32 v{GX+e}, v{GX+e+2}")
for e in range(2):
    A(f"v_add_f32 v{GX+e}, v{GX+e}, v{GX+e+2}")
A("s_nop 1")
A(f"v_permlane16_swap_b32 v{GX}, v{GX+1}")
A(f"v_add_f32 v{VOUT}, v{GX}, v{GX+1}")
round_bf16(VOUT, 60)
A(f"v_mul_f32 v{VOUT}, v{VOUT}, v{VG}")
round_bf16(VOUT, 60)
A("s_nop 1")
A(f"v_add_f32_dpp v{VOUT}, v{VOUT}, v{VOUT} row_ror:8 row_mask:0xf bank_mask:0xf")
A(f"v_cvt_pk_bf16_f32 v{VOUT}, v{VOUT}, v{VOUT}")
A(f"buffer_store_short v{VOUT}, {vOut}, {R4(S_WU)}, s15 offen")
stamp(16)
k.label("L_fin")
stamp_dump()
k.label("L_end")
A("s_endpgm")

body = "\n".join(k.L)
ref = open('cdna_kernels/%s.s.ref' % NAME).read().split('\n')
head = [l for l in ref if l.startswith(';') and '@launch' not in l]
out = "\n".join(head) + "\n"
out += f"; @launch grid=(256,1,1) block=(512,1,1) lds={LDS_BYTES}\n"
out += f""".amdgcn_target "amdgcn-amd-amdhsa--gfx950"
.text
.globl {NAME}_kernel
.p2align 8
.type {NAME}_kernel,@function
{NAME}_kernel:
{body}
.section .rodata,"a"
.p2align 6
.amdhsa_kernel {NAME}_kernel
  .amdhsa_next_free_vgpr 256
  .amdhsa_next_free_sgpr 102
  .amdhsa_accum_offset 256
  .amdhsa_group_segment_fixed_size 0
  .amdhsa_kernarg_size 104
  .amdhsa_user_sgpr_count 2
  .amdhsa_user_sgpr_kernarg_segment_ptr 1
  .amdhsa_system_sgpr_workgroup_id_x 1
  .amdhsa_float_denorm_mode_32 3
.end_amdhsa_kernel
"""
open(sys.argv[1], 'w').write(out)
```

```python
import sys, struct

NAME = "gated_mix__mha_block_cached__geglu_ffn__decode"
OPT = dict(stamps=0, nokv=0, slpO=1, slpA=1, slpG=1, prio=3, npre=1, D=8, nocomp=0, noaux=0, empty=0, bar0late=0, D2=0, NE=0, DE=16, kpol=1, vpol=1, wpol=1)
for a in sys.argv[2:]:
    kk_, v_ = a.split('=')
    assert kk_ in OPT, kk_
    OPT[kk_] = int(v_)

POL = {0: '', 1: ' nt', 2: ' sc1', 3: ' sc1 nt', 4: ' sc0 sc1', 5: ' sc0 sc1 nt', 6: ' sc0', 7: ' sc0 nt'}
def f32(x):
    return "0x%08x" % struct.unpack('<I', struct.pack('<f', x))[0]

WS_H = 0x0
WS_O = 0x10000
WS_MB = 0x20000
WS_Q = 0x80000
WS_PA = 0x100000
WS_GU = 0x200000
WS_SIZE = 0x2b0000
WS_STAMP = 0x800000
L_Q = 0
L_CNT = 256
L_ML = 512
L_ACC = 4096
L_T = 12288
LDS_BYTES = L_T + 4 * 32768

HUGE = 0x7ffffff0
LOG2E = 1.4426950408889634
SCALE = 128 ** -0.5
SPIN_MAX = 200000

class K:
    def __init__(self):
        self.L = []
    def __call__(self, s):
        self.L.append("    " + s)
    def label(self, s):
        self.L.append(s + ":")
k = K()
A = k

def srd(d, base, nbytes, addlo=None, addhi=None):
    if addlo is None:
        A(f"s_mov_b32 s{d}, s{base}")
        A(f"s_mov_b32 s{d+1}, s{base+1}")
    else:
        A(f"s_add_u32 s{d}, s{base}, {addlo}")
        A(f"s_addc_u32 s{d+1}, s{base+1}, {addhi}")
    A(f"s_mov_b32 s{d+2}, {nbytes}" if isinstance(nbytes, str) else f"s_mov_b32 s{d+2}, 0x{nbytes:x}")
    A(f"s_mov_b32 s{d+3}, 0x00020000")

def stamp_setup():
    if not OPT['stamps']:
        return
    srd(92, 40, WS_STAMP + 0x100000)
    A("s_lshl_b32 s98, s2, 3")
    A("s_add_u32 s98, s98, s3")
    A("s_lshl_b32 s98, s98, 7")
    A(f"s_add_u32 s98, s98, 0x{WS_STAMP:x}")
    A("v_writelane_b32 v255, s100, 31")

def stamp(idx):
    if not OPT['stamps']:
        return
    A("s_memrealtime s[96:97]")
    A("s_waitcnt lgkmcnt(0)")
    A(f"v_writelane_b32 v255, s96, {idx}")

def stamp_dump():
    if not OPT['stamps']:
        return
    A("v_lshlrev_b32 v254, 2, v2")
    A("v_cmp_gt_u32 vcc, 32, v2")
    A("s_and_saveexec_b64 s[96:97], vcc")
    A("buffer_store_dword v255, v254, s[92:95], s98 offen")
    A("s_mov_b64 exec, s[96:97]")

if OPT['stamps']:
    A("s_memrealtime s[100:101]")
A("s_cmp_ge_u32 s2, %d" % (0 if OPT['empty'] else 256))
A("s_cbranch_scc1 L_end")
A("s_load_dwordx16 s[16:31], s[0:1], 0")
A("s_load_dwordx8 s[32:39], s[0:1], 64")
A("s_load_dwordx2 s[40:41], s[0:1], 96")
A("v_lshrrev_b32 v1, 6, v0")
A("v_and_b32 v2, 63, v0")
A("v_readfirstlane_b32 s3, v1")
A("s_and_b32 s10, s2, 7")
A("s_lshr_b32 s11, s2, 3")
A("s_and_b32 s6, s11, 3")
A("s_lshl_b32 s7, s10, 2")
A("s_add_u32 s6, s6, s7")
A("s_lshr_b32 s7, s11, 2")
A("s_mul_i32 s15, s10, 7")
A("s_add_u32 s15, s15, s7")
A("s_and_b32 s99, s11, 3")
A("s_mov_b32 s8, 0xffff0000")
A("v_and_b32 v3, 15, v2")
A("v_lshrrev_b32 v4, 4, v2")
if OPT['stamps']:
    A("v_mov_b32 v255, 0")
A("s_cmp_ge_u32 s3, 4")
A("s_cbranch_scc1 L_aux")

NB = 8
NPRE = OPT['npre']
NBLK = 1024 // (4 * NB)
RK = 64
RV = RK + 4 * NB
XB = RV + 4 * NB
VQ = 8
VS = 16
VACC = 32
VM, VL, VMN, VAL = 40, 41, 42, 43
VT = 44
STEP = 4 * NB * 1024
A("s_lshl_b32 s9, s7, 5")
A("s_add_u32 s9, s9, s6")
A("s_lshl_b32 s10, s9, 20")
A("v_lshlrev_b32 v5, 4, v2")
A(f"s_mul_i32 s12, s3, {NB*1024}")
A("v_add_u32 v5, s12, v5")
NS = NB // 4
DD = OPT['D']
DCUR = [DD]
for i in range(NS):
    A(f"s_mov_b32 s{52+i}, {4096*i}")
    A(f"s_mov_b32 s{56+i}, {4096*i + STEP}")
A("v_mov_b32 v6, 0")
A("v_mov_b32 v7, 0")
A(f"ds_write_b64 v6, v[6:7] offset:{L_CNT}")
A(f"ds_write_b64 v6, v[6:7] offset:{L_CNT+8}")
A("s_waitcnt lgkmcnt(0)")
srd(44, 18, 0 if OPT['nokv'] else 0x100000, "s10", "0")
srd(48, 20, 0 if OPT['nokv'] else 0x100000, "s10", "0")
stamp_setup()
A("s_barrier")

def ldk(base, i, so=52):
    A(f"buffer_load_dwordx4 v[{base+4*i}:{base+4*i+3}], v5, s[44:47], s{so+i//4} offen offset:{(i%4)*1024}{POL[OPT['kpol']]}")
def ldv(base, i, so=52):
    A(f"buffer_load_dwordx4 v[{base+4*i}:{base+4*i+3}], v5, s[48:51], s{so+i//4} offen offset:{(i%4)*1024}{POL[OPT['vpol']]}")
def adv():
    for i in range(NS):
        A(f"s_add_u32 s{52+i}, s{52+i}, 0x{STEP:x}")
        A(f"s_add_u32 s{56+i}, s{56+i}, 0x{STEP:x}")
def issue_after(sq, first=False):
    t = sq + DCUR[0]
    if first and t < 2 * NB:
        return False
    so = 52 if t < 2 * NB else 56
    t %= 2 * NB
    if t < NB:
        ldk(RK, t, so)
    else:
        ldv(RV, t - NB, so)
    return True

def kphase(base, waits, issue):
    for grp in range(NB // 4):
        for i in range(4 * grp, 4 * grp + 4):
            A(f"s_waitcnt vmcnt({waits(i)})")
            A(f"v_dot2_f32_bf16 v{VS+i}, v{base+4*i}, v{VQ}, 0")
            for r in range(1, 4 if not OPT['nocomp'] else 1):
                A(f"v_dot2_f32_bf16 v{VS+i}, v{base+4*i+r}, v{VQ+r}, v{VS+i}")
            if not (issue and issue_after(i, issue == 'first')) and i % 4 == 3:
                A("s_nop 0")
        for rot in (8, 4, 2, 1) if not OPT['nocomp'] else ():
            for i in range(4 * grp, 4 * grp + 4):
                A(f"v_add_f32_dpp v{VS+i}, v{VS+i}, v{VS+i} row_ror:{rot} row_mask:0xf bank_mask:0xf")

def softmax():
    if OPT['nocomp']:
        return
    H = NB // 2
    for t in range(H):
        A(f"v_cvt_pk_bf16_f32 v{VT+t}, v{VS+2*t}, v{VS+2*t+1}")
    for t in range(H):
        A(f"v_lshlrev_b32 v{VS+2*t}, 16, v{VT+t}")
        A(f"v_and_b32 v{VS+2*t+1}, s8, v{VT+t}")
    for i in range(NB):
        A(f"v_mul_f32 v{VS+i}, s13, v{VS+i}")
    for t in range(H):
        A(f"v_cvt_pk_bf16_f32 v{VT+t}, v{VS+2*t}, v{VS+2*t+1}")
    for t in range(H):
        A(f"v_lshlrev_b32 v{VS+2*t}, 16, v{VT+t}")
        A(f"v_and_b32 v{VS+2*t+1}, s8, v{VT+t}")
    assert NB == 8
    A(f"v_max3_f32 v{VT}, v{VS}, v{VS+1}, v{VM}")
    A(f"v_max3_f32 v{VT+1}, v{VS+2}, v{VS+3}, v{VS+4}")
    A(f"v_max3_f32 v{VT+2}, v{VS+5}, v{VS+6}, v{VS+7}")
    A(f"v_max3_f32 v{VMN}, v{VT}, v{VT+1}, v{VT+2}")
    A(f"v_sub_f32 v{VAL}, v{VM}, v{VMN}")
    A(f"v_mul_f32 v{VAL}, s14, v{VAL}")
    A(f"v_exp_f32 v{VAL}, v{VAL}")
    A(f"v_mov_b32 v{VM}, v{VMN}")
    for i in range(NB):
        A(f"v_sub_f32 v{VS+i}, v{VS+i}, v{VMN}")
    for i in range(NB):
        A(f"v_mul_f32 v{VS+i}, s14, v{VS+i}")
    for i in range(NB):
        A(f"v_exp_f32 v{VS+i}, v{VS+i}")
    A(f"v_mul_f32 v{VL}, v{VL}, v{VAL}")
    for e in range(8):
        A(f"v_mul_f32 v{VACC+e}, v{VACC+e}, v{VAL}")
    for t in range(4):
        A(f"v_add_f32 v{VT+t}, v{VS+2*t}, v{VS+2*t+1}")
    A(f"v_add_f32 v{VT}, v{VT}, v{VT+2}")
    A(f"v_add_f32 v{VT+1}, v{VT+1}, v{VT+3}")
    A(f"v_add_f32 v{VT}, v{VT}, v{VT+1}")
    A(f"v_add_f32 v{VL}, v{VL}, v{VT}")

def vphase(base, waits, issue):
    for i in range(NB):
        A(f"s_waitcnt vmcnt({waits(i)})")
        tb = VT + 8 * (i & 1)
        for r in range(4 if not OPT['nocomp'] else 1):
            A(f"v_lshlrev_b32 v{tb+2*r}, 16, v{base+4*i+r}")
            A(f"v_and_b32 v{tb+2*r+1}, s8, v{base+4*i+r}")
        if issue:
            issue_after(NB + i, issue == 'first')
        for e in range(8 if not OPT['nocomp'] else 1):
            A(f"v_fmac_f32 v{VACC+e}, v{VS+i}, v{tb+e}")

stamp(0)
for p in range(NPRE + 1):
    kb = XB + p * 8 * NB if p < NPRE else RK
    vb = kb + 4 * NB
    for i in range(NB):
        ldk(kb, i)
    for i in range(NB):
        ldv(vb, i)
    if p < NPRE:
        adv()
for e in range(8):
    A(f"v_mov_b32 v{VACC+e}, 0")
A(f"v_mov_b32 v{VM}, 0xff800000")
A(f"v_mov_b32 v{VL}, 0")
A(f"s_mov_b32 s13, {f32(SCALE)}")
A(f"s_mov_b32 s14, {f32(LOG2E)}")
A(f"s_mov_b32 s15, {NPRE}")
A("v_lshlrev_b32 v6, 4, v3")
stamp(1)
A("v_mov_b32 v7, 0")
k.label("L_qwait")
A(f"ds_read_b32 v12, v7 offset:{L_CNT+8}")
A("s_waitcnt lgkmcnt(0)")
A("v_readfirstlane_b32 s12, v12")
A("s_nop 1")
A("s_cmp_lg_u32 s12, 0")
A("s_cbranch_scc1 L_qdone")
A("s_sleep 1")
A("s_branch L_qwait")
k.label("L_qdone")
A(f"ds_read_b128 v[{VQ}:{VQ+3}], v6 offset:{L_Q}")
A("v_lshlrev_b32 v6, 5, v3")
A("s_waitcnt lgkmcnt(0)")
stamp(2)
tot = (NPRE + 1) * 2 * NB
for p in range(NPRE):
    kb = XB + p * 8 * NB
    kphase(kb, lambda i: tot - 1 - (2 * NB * p + i), False)
    softmax()
    vphase(kb + 4 * NB, lambda i: tot - 1 - (2 * NB * p + NB + i), False)
def stream_loop(D, tag):
    DCUR[0] = D
    first_wait = lambda sq: 2 * NB - 1 - sq + max(0, sq - (2 * NB - D))
    kphase(RK, first_wait, 'first')
    if D >= NB:
        A(f"s_branch L_mid{tag}")
    else:
        softmax()
        vphase(RV, lambda i: first_wait(NB + i), 'first')
        adv()
        A("s_add_u32 s15, s15, 1")
    A(".p2align 6")
    k.label(f"L_loop{tag}")
    kphase(RK, lambda i: D - 1, True)
    k.label(f"L_mid{tag}")
    softmax()
    vphase(RV, lambda i: D - 1, True)
    adv()
    A("s_add_u32 s15, s15, 1")
    A(f"s_cmp_lt_u32 s15, {NBLK - OPT['NE']}")
    A(f"s_cbranch_scc1 L_loop{tag}")
    if OPT['NE']:
        DE = OPT['DE']
        for t in range(D, DE):
            if t < NB:
                ldk(RK, t, 52)
            else:
                ldv(RV, t - NB, 52)
        if tag == "b":
            A("s_branch L_loopE")
            return
        DCUR[0] = DE
        k.label("L_loopE")
        kphase(RK, lambda i: DE - 1, True)
        softmax()
        vphase(RV, lambda i: DE - 1, True)
        adv()
        A("s_add_u32 s15, s15, 1")
        A(f"s_cmp_lt_u32 s15, {NBLK}")
        A("s_cbranch_scc1 L_loopE")
if OPT['D2']:
    A("s_getreg_b32 s12, hwreg(HW_REG_XCC_ID)")
    A("s_and_b32 s12, s12, 1")
    A("s_cmp_eq_u32 s12, 0")
    A("s_cbranch_scc1 L_even")
    stream_loop(OPT['D2'], "b")
    A("s_branch L_sdone")
    k.label("L_even")
stream_loop(DD, "a")
k.label("L_sdone")
A("s_lshl_b32 s12, s3, 2")
A("v_add_u32 v7, s12, v4")
A("v_lshlrev_b32 v9, 9, v7")
A("v_add_u32 v9, v9, v6")
A(f"ds_write_b128 v9, v[{VACC}:{VACC+3}] offset:{L_ACC}")
A(f"ds_write_b128 v9, v[{VACC+4}:{VACC+7}] offset:{L_ACC+16}")
A("v_lshlrev_b32 v7, 3, v7")
A("v_cmp_eq_u32 vcc, 0, v3")
A("s_and_saveexec_b64 s[60:61], vcc")
A(f"ds_write_b64 v7, v[{VM}:{VL}] offset:{L_ML}")
A("s_mov_b64 exec, s[60:61]")
A("s_waitcnt lgkmcnt(0)")
A("s_barrier")
stamp(3)
stamp_dump()
A("s_endpgm")


S_WQ, S_X, S_WS, S_WG, S_WU, S_WD, S_WO, S_WSF, S_DBG = 44, 48, 52, 56, 60, 64, 68, 72, 76
S_WS0, S_WS1 = 16, 20
def R4(n): return f"s[{n}:{n+3}]"
sW = "s9"
s_PAst, s_Ost, s_Qst, s_Hin, s_MB, s_Hst = "s80", "s82", "s83", "s85", "s86", "s87"
s_TQ, s_TF, s_TO, s_LDS, s_Oin, s_last, s_PAin, s_Qin = "s88", "s89", "s90", "s91", "s42", "s43", "s14", "s81"
s_GU, s_XF = "s26", "s27"
sHI = "s[4:5]"
vHUGE, vPst, vQst, vL4, vTQ, vTO, vTF, vXF, vOg, vHg = "v1", "v6", "v7", "v8", "v9", "v10", "v12", "v13", "v14", "v15"
vL16, vOut, vML, vAcc, vHst, vT23, vT01, vR01, vR23, vW01, vW23 = "v40", "v42", "v43", "v0", "v47", "v48", "v49", "v50", "v51", "v11", "v45"
XF = 16
SEL = 24
PZ = 32
DD0 = 208
WF = 96
TF0, TF1 = 160, 64
GX = 192
VG, VOUT = 44, 46

k.label("L_aux")
if OPT['prio']:
    A(f"s_setprio {OPT['prio']}")
A(f"s_sub_u32 {sW}, s3, 4")
A(f"v_cmp_lt_u32 {sHI}, 7, v3")
A("v_and_b32 v5, 7, v3")
A("v_lshrrev_b32 v62, 3, v2")
A("v_lshlrev_b32 v63, 4, v5")
A(f"v_lshl_add_u32 {vTQ}, v62, 13, v63")
A(f"v_mul_u32_u24 {vTF}, 7168, v62")
A(f"v_add_u32 {vTF}, {vTF}, v63")
A(f"v_lshl_add_u32 {vTO}, v62, 11, v63")
A(f"v_lshlrev_b32 {vXF}, 11, v5")
A(f"v_lshl_add_u32 {vXF}, v4, 4, {vXF}")
A("s_lshr_b32 s12, s7, 1")
A("s_lshl_b32 s12, s12, 2")
A(f"s_add_u32 s12, s12, {sW}")
A(f"s_lshl_b32 {s_TQ}, s12, 19")
A("s_lshl_b32 s84, s12, 7")
A("s_lshl_b32 s10, s6, 8")
A(f"s_add_u32 {s_TQ}, {s_TQ}, s10")
A("s_and_b32 s12, s7, 1")
A("s_lshl_b32 s12, s12, 7")
A(f"s_add_u32 {s_TQ}, {s_TQ}, s12")
A(f"s_lshl_b32 {s_LDS}, {sW}, 13")
A(f"s_add_u32 {s_LDS}, {s_LDS}, {L_T}")
A(f"s_cmp_lg_u32 {sW}, 0")
A("s_waitcnt lgkmcnt(0)")
stamp(20)
srd(S_WS, 40, WS_SIZE)
srd(S_X, 16, 0x4000)
srd(S_WQ, 22, 0x800000)
def dma(sr, v, so, goff, loff):
    A(f"s_add_u32 m0, {s_LDS}, {loff}")
    A(f"s_add_u32 s11, {so}, {goff}")
    A(f"buffer_load_dwordx4 {v}, {R4(sr)}, s11 offen{POL[OPT['wpol']]} lds")
def slot_consts():
    A("v_lshrrev_b32 v62, 3, v3")
    A("v_lshlrev_b32 v63, 5, v62")
    A("v_lshl_add_u32 v63, v4, 3, v63")
    A(f"v_mul_u32_u24 {vHst}, 7168, v5")
    A(f"v_add_u32 {vHst}, {vHst}, v63")
    A("v_lshlrev_b32 v62, 6, v62")
    A("v_lshl_add_u32 v62, v4, 4, v62")
    A(f"v_lshl_add_u32 {vPst}, v5, 17, v62")
    A(f"v_lshl_add_u32 {vQst}, v5, 11, v62")
    A(f"v_lshlrev_b32 {vL4}, 2, v2")
    A(f"v_lshlrev_b32 {vL16}, 4, v2")
    A("s_lshl_b32 s12, s6, 3")
    A("s_add_u32 s12, s12, s7")
    A(f"s_lshl_b32 {s_MB}, s12, 7")
    A(f"s_add_u32 {s_MB}, {s_MB}, 0x{WS_MB:x}")
    A(f"s_lshl_b32 {s_Ost}, s12, 8")
    A(f"s_add_u32 {s_Ost}, {s_Ost}, 0x{WS_O:x}")
    A(f"s_lshl_b32 {s_Qin}, s12, 11")
    A(f"s_add_u32 {s_Qin}, {s_Qin}, 0x{WS_Q:x}")
    A(f"s_lshl_b32 {s_Qst}, s6, 14")
    A("s_lshl_b32 s12, s7, 8")
    A(f"s_add_u32 {s_Qst}, {s_Qst}, s12")
    A(f"s_add_u32 {s_Qst}, {s_Qst}, 0x{WS_Q:x}")
    A("s_and_b32 s12, s6, 15")
    A(f"s_lshl_b32 {s_PAst}, s12, 12")
    A("s_lshl_b32 s12, s7, 1")
    A("s_lshr_b32 s13, s6, 4")
    A("s_add_u32 s12, s12, s13")
    A("s_lshl_b32 s12, s12, 8")
    A(f"s_add_u32 {s_PAst}, {s_PAst}, s12")
    A(f"s_add_u32 {s_PAst}, {s_PAst}, 0x{WS_PA:x}")
    A(f"s_lshl_b32 {s_Hst}, s15, 7")
    A(f"s_mul_i32 {s_GU}, s15, 12288")
    A(f"s_add_u32 {s_GU}, {s_GU}, 0x{WS_GU:x}")
    A("s_cmp_lt_u32 s7, 7")
    A("s_cselect_b32 s13, 0x%x, 0" % WS_SIZE)
    srd(S_WSF, 40, "s13")
    A("s_cmp_eq_u32 s99, 0")
    A("s_cselect_b32 s12, s13, 0")
    A("s_cselect_b32 s13, 0, s13")
    srd(S_WS0, 40, "s12")
    srd(S_WS1, 40, "s13")
    A("s_lshl_b32 s12, s99, 12")
    A(f"s_add_u32 s10, {s_GU}, s12")
    A("s_sub_u32 s10, s10, 4096")
    A(f"s_add_u32 s13, {s_PAst}, 0x10000")
A("s_cbranch_scc1 L_a1")
slot_consts()
for r in range(4):
    A(f"v_mov_b32 v{PZ+r}, -1")
A("v_mov_b32 v60, 0")
A("v_mov_b32 v61, 0")
P = f"v[{PZ}:{PZ+3}]"
A(f"buffer_store_dwordx4 {P}, {vQst}, {R4(S_WS)}, {s_Qst} offen sc1")
A(f"buffer_store_dwordx4 {P}, {vQst}, {R4(S_WS)}, {s_Qst} offen offset:128 sc1")
A(f"buffer_store_dwordx2 v[60:61], off, {R4(S_WS)}, {s_MB} sc1")
A(f"buffer_store_dwordx2 v[{PZ}:{PZ+1}], {vHst}, {R4(S_WS0)}, {s_Hst} offen sc1")
A(f"buffer_store_dwordx2 v[{PZ}:{PZ+1}], {vHst}, {R4(S_WS0)}, {s_Hst} offen offset:64 sc1")
for t in range(4):
    A(f"buffer_store_dwordx4 {P}, {vL16}, {R4(S_WS1)}, s10 offen offset:{1024*t} sc1")
for so in (s_PAst, "s13"):
    A(f"buffer_store_dwordx4 {P}, {vPst}, {R4(S_WS)}, {so} offen sc1")
    A(f"buffer_store_dwordx4 {P}, {vPst}, {R4(S_WS)}, {so} offen offset:128 sc1")
A(f"buffer_store_dword v{PZ}, {vL4}, {R4(S_WS)}, {s_Ost} offen sc1")
k.label("L_a1")
stamp(21)
for t in range(2):
    A(f"buffer_load_dwordx4 v[{XF+4*t}:{XF+4*t+3}], {vXF}, {R4(S_X)}, s84 offen offset:{64*t}")
for i in range(8):
    dma(S_WQ, vTQ, s_TQ, i * 8 * 8192, i * 1024)
stamp(22)
if OPT['bar0late']:
    A(f"s_cmp_lg_u32 {sW}, 0")
    A("s_cbranch_scc1 L_a1b")
    A("s_waitcnt vmcnt(10)")
    k.label("L_a1b")
A("s_barrier")
stamp_setup()
stamp(0)
srd(S_DBG, 38, 256)
A("v_mov_b32 v60, 0")
A("v_mov_b32 v61, 1")
A(f"s_cmp_lg_u32 {sW}, 0")
A("s_cbranch_scc1 L_a2")
A("s_waitcnt vmcnt(10)")
A("s_lshl_b32 s13, s6, 2")
A("v_mov_b32 v41, 1")
A("s_mov_b64 exec, 1")
A(f"buffer_atomic_add v41, off, {R4(S_DBG)}, s13 sc0 sc1")
A("s_mov_b64 exec, -1")
k.label("L_a2")
stamp(1)
slot_consts()
A("v_bfe_u32 v62, v2, 2, 2")
A("v_and_b32 v63, 3, v2")
A(f"v_lshlrev_b32 {vT01}, 10, v4")
A(f"v_lshl_add_u32 {vT01}, v62, 7, {vT01}")
A(f"v_lshl_add_u32 {vT01}, v63, 3, {vT01}")
A(f"v_add_u32 {vT01}, {s_LDS}, {vT01}")
A(f"v_add_u32 {vT23}, 0x10000, {vT01}")
A(f"v_add_u32 {vW01}, {s_LDS}, {vL16}")
A(f"v_add_u32 {vW23}, 0x10000, {vW01}")
A(f"v_add_u32 {vR01}, {L_T}, {vL16}")
A(f"v_add_u32 {vR23}, 0x10000, {vR01}")
A(f"s_lshl_b32 s13, {sW}, 11")
A(f"v_add_u32 v39, s13, {vL16}")

def tr_reads(base, vaddr, lo):
    for nb in range(4):
        for kk in range(2):
            r = base + (nb * 2 + kk) * 4
            A(f"ds_read_b64_tr_b16 v[{r}:{r+1}], {vaddr} offset:{lo + kk*4096 + nb*32}")
            A(f"ds_read_b64_tr_b16 v[{r+2}:{r+3}], {vaddr} offset:{lo + kk*4096 + 512 + nb*32}")
def tile_gemm(frag, xf, dst):
    for kk in range(2):
        for nb in range(4):
            r = frag + (nb * 2 + kk) * 4
            D = DD0 + 4 * nb
            c = "0" if kk == 0 else f"v[{D}:{D+3}]"
            A(f"v_mfma_f32_16x16x32_bf16 v[{D}:{D+3}], v[{r}:{r+3}], v[{xf+4*kk}:{xf+4*kk+3}], {c}")
    A("s_nop 5")
    for e in range(4):
        A(f"v_cndmask_b32 v{dst+e}, v{DD0+e}, v{DD0+4+e}, {sHI}")
    for e in range(4):
        A(f"v_cndmask_b32 v{dst+4+e}, v{DD0+8+e}, v{DD0+12+e}, {sHI}")
def put_partial(vaddr, lo):
    A(f"ds_write_b128 {vaddr}, v[{SEL}:{SEL+3}] offset:{lo}")
    A(f"ds_write_b128 {vaddr}, v[{SEL+4}:{SEL+7}] offset:{lo+1024}")
def arrive(cnt_off, lab):
    A("s_mov_b64 exec, 1")
    A("s_waitcnt lgkmcnt(0)")
    A(f"ds_add_rtn_u32 v62, v60, v61 offset:{cnt_off}")
    A("s_waitcnt lgkmcnt(0)")
    A("v_readfirstlane_b32 s12, v62")
    A("s_mov_b64 exec, -1")
    A("s_cmp_lg_u32 s12, 3")
    A(f"s_cbranch_scc1 {lab}")
def sum4(dst, vaddr, lo, stride):
    for w in range(4):
        for t in range(2):
            A(f"ds_read_b128 v[{dst+8*w+4*t}:{dst+8*w+4*t+3}], {vaddr} offset:{lo + w*stride + t*1024}")
def sum4b(dst, clean=True):
    for e in range(8):
        A(f"v_add_f32 v{dst+e}, v{dst+e}, v{dst+8+e}")
        A(f"v_add_f32 v{dst+16+e}, v{dst+16+e}, v{dst+24+e}")
    for e in range(8):
        A(f"v_add_f32 v{dst+e}, v{dst+e}, v{dst+16+e}")
    for e in range(8 if clean else 0):
        A(f"v_min_u32 v{dst+e}, -2, v{dst+e}")
def poll_mb(name, dword, sleep):
    A("s_mov_b32 s12, 0")
    k.label(f"L_{name}")
    A(f"buffer_load_dword v62, off, {R4(S_WS)}, {s_MB} offset:{4*dword} sc1")
    A("s_waitcnt vmcnt(0)")
    A("v_readfirstlane_b32 s10, v62")
    A("s_nop 1")
    A("s_cmp_lg_u32 s10, 0")
    A(f"s_cbranch_scc1 L_{name}_done")
    A(f"s_sleep {sleep}")
    A("s_add_u32 s12, s12, 1")
    A(f"s_cmp_lt_u32 s12, {SPIN_MAX}")
    A(f"s_cbranch_scc1 L_{name}")
    k.label(f"L_{name}_done")
def polln(name, dst, loads, sleep=2):
    n = len(loads)
    A("s_mov_b32 s12, 0")
    k.label(f"L_{name}")
    for t, (vo, sr, so, im) in enumerate(loads):
        A(f"buffer_load_dwordx4 v[{dst+4*t}:{dst+4*t+3}], {vo}, {R4(sr)}, {so} offen offset:{im} sc1")
    A("s_waitcnt vmcnt(0)")
    regs = [f"v{dst+i}" for i in range(4 * n)]
    tmp = ["v60", "v61", "v62", "v63"]
    acc = []
    i = 0
    while len(acc) < 4 and i + 3 <= len(regs):
        A(f"v_max3_u32 {tmp[len(acc)]}, {regs[i]}, {regs[i+1]}, {regs[i+2]}")
        acc.append(tmp[len(acc)]); i += 3
    j = 0
    while i < len(regs):
        if i + 2 <= len(regs):
            A(f"v_max3_u32 {acc[j]}, {acc[j]}, {regs[i]}, {regs[i+1]}"); i += 2
        else:
            A(f"v_max_u32 {acc[j]}, {acc[j]}, {regs[i]}"); i += 1
        j = (j + 1) % len(acc)
    if len(acc) == 4:
        A(f"v_max3_u32 {acc[0]}, {acc[0]}, {acc[1]}, {acc[2]}")
        A(f"v_max_u32 {acc[0]}, {acc[0]}, {acc[3]}")
    else:
        assert len(acc) == 2
        A(f"v_max_u32 {acc[0]}, {acc[0]}, {acc[1]}")
    A("v_cmp_eq_u32 vcc, -1, v60")
    A(f"s_cbranch_vccz L_{name}_done")
    A("s_mov_b64 exec, vcc")
    if sleep:
        A(f"s_sleep {sleep}")
    A("s_add_u32 s12, s12, 1")
    A(f"s_cmp_lt_u32 s12, {SPIN_MAX}")
    A(f"s_cbranch_scc1 L_{name}")
    k.label(f"L_{name}_done")
    A("s_mov_b64 exec, -1")
def round_bf16(r, tmp):
    A(f"v_cvt_pk_bf16_f32 v{tmp}, v{r}, v{r}")
    A(f"v_and_b32 v{r}, s8, v{tmp}")

A(f"s_cmp_lg_u32 {sW}, 0")
A("s_cbranch_scc1 L_a2b")
A("s_waitcnt vmcnt(1)")
A("s_branch L_a2c")
k.label("L_a2b")
A("s_waitcnt vmcnt(0)")
k.label("L_a2c")
stamp(2)
tr_reads(WF, vT01, 0)
A(f"s_mov_b32 {s_last}, 0")
A("s_mov_b32 s84, 0")
A("s_waitcnt lgkmcnt(0)")
tile_gemm(WF, XF, SEL)
put_partial("v39", L_ACC)
arrive(L_CNT, "L_a4")
sum4(WF, vL16, L_ACC, 2048)
A("s_waitcnt lgkmcnt(0)")
sum4b(WF)
A(f"buffer_store_dwordx4 v[{WF}:{WF+3}], {vQst}, {R4(S_WS)}, {s_Qst} offen sc1")
A(f"buffer_store_dwordx4 v[{WF+4}:{WF+7}], {vQst}, {R4(S_WS)}, {s_Qst} offen offset:128 sc1")
A("s_mov_b32 s84, 1")
k.label("L_a4")
stamp(23)
A("s_cmp_lt_u32 s7, 7")
A("s_cselect_b32 s13, 0x700000, 0")
srd(S_WG, 28, "s13")
srd(S_WU, 30, "s13")
srd(S_WD, 32, "s13")
srd(S_WO, 24, 0x800000)
A("s_mov_b32 s28, s10")
A("s_lshl_b32 s12, s99, 2")
A(f"s_add_u32 s12, s12, {sW}")
A(f"s_lshl_b32 {s_XF}, s12, 7")
A(f"s_mul_i32 {s_TF}, s12, {64 * 7168}")
A(f"s_add_u32 {s_TF}, {s_TF}, {s_Hst}")
A("s_lshl_b32 s12, s7, 1")
A("s_lshr_b32 s13, s6, 4")
A("s_add_u32 s12, s12, s13")
A("s_lshl_b32 s12, s12, 2")
A(f"s_add_u32 s12, s12, {sW}")
A(f"s_lshl_b32 {s_TO}, s12, 17")
A("s_and_b32 s13, s6, 15")
A("s_lshl_b32 s29, s13, 7")
A(f"s_add_u32 {s_TO}, {s_TO}, s29")
A(f"s_lshl_b32 {s_Hin}, s12, 7")
A("s_lshr_b32 s13, s12, 1")
A(f"s_lshl_b32 {s_Oin}, s13, 11")
A("s_and_b32 s13, s12, 1")
A("s_lshl_b32 s13, s13, 7")
A(f"s_add_u32 {s_Oin}, {s_Oin}, s13")
A(f"s_add_u32 {s_Oin}, {s_Oin}, 0x{WS_O:x}")
A(f"s_lshl_b32 {s_PAin}, s7, 5")
A(f"s_add_u32 {s_PAin}, {s_PAin}, s6")
A(f"s_lshl_b32 {s_PAin}, {s_PAin}, 12")
A(f"s_add_u32 {s_PAin}, {s_PAin}, 0x{WS_PA:x}")
A("s_lshl_b32 s15, s7, 11")
A("s_add_u32 s15, s15, s29")
A("s_lshr_b32 s13, s6, 4")
A("s_lshl_b32 s13, s13, 6")
A("s_add_u32 s15, s15, s13")
A(f"s_add_u32 s30, {s_PAst}, 0x10000")
A(f"v_mov_b32 {vHUGE}, 0x{HUGE:x}")
A(f"v_lshlrev_b32 {vOut}, 3, v5")
A(f"v_lshl_add_u32 {vOut}, v4, 1, {vOut}")
A(f"v_cndmask_b32 {vOut}, {vOut}, {vHUGE}, {sHI}")
A(f"v_lshlrev_b32 {vML}, 3, v3")
A(f"v_lshlrev_b32 {vAcc}, 3, v2")
A(f"v_lshlrev_b32 {vOg}, 8, v5")
A(f"v_lshl_add_u32 {vOg}, v4, 4, {vOg}")
A(f"v_mul_u32_u24 {vHg}, 7168, v5")
A(f"v_lshl_add_u32 {vHg}, v4, 4, {vHg}")
A(f"s_cmp_lg_u32 {sW}, 0")
A("s_cbranch_scc1 L_a5")
A("s_waitcnt vmcnt(2)")
A("s_cmp_lg_u32 s84, 0")
A("s_cbranch_scc1 L_a4b")
A("s_waitcnt vmcnt(0)")
k.label("L_a4b")
A("v_readfirstlane_b32 s12, v41")
A("s_nop 1")
A("s_cmp_lg_u32 s12, 7")
A("s_cbranch_scc1 L_a3")
A("v_lshlrev_b32 v62, 7, v2")
A("s_lshl_b32 s13, s6, 10")
A(f"s_add_u32 s13, s13, 0x{WS_MB:x}")
A("s_mov_b64 exec, 0xff")
A(f"buffer_store_dword v61, v62, {R4(S_WS)}, s13 offen sc1")
A("s_mov_b64 exec, 1")
A("v_mov_b32 v41, 1")
A(f"buffer_atomic_add v41, off, {R4(S_DBG)}, 0 offset:128 sc0 sc1")
A(f"s_mov_b32 {s_last}, 2")
A("s_mov_b64 exec, -1")
k.label("L_a3")
poll_mb("go1", 0, OPT['slpG'])
stamp(4)
polln("pollQ", GX, [(vL16, S_WS, s_Qin, 1024 * t) for t in range(2)], sleep=1)
for e in range(4):
    A(f"v_add_f32 v{GX+e}, v{GX+e}, v{GX+4+e}")
A("v_and_b32 v63, 31, v2")
A("v_lshlrev_b32 v63, 3, v63")
for e in range(2):
    A(f"v_permlane32_swap_b32 v{GX+e}, v{GX+e+2}")
for e in range(2):
    A(f"v_add_f32 v{GX+e}, v{GX+e}, v{GX+e+2}")
A(f"v_cvt_pk_bf16_f32 v62, v{GX}, v{GX+1}")
A("v_lshrrev_b32 v36, 5, v2")
A("v_lshl_add_u32 v63, v36, 2, v63")
A(f"ds_write_b32 v63, v62 offset:{L_Q}")
A("v_mov_b32 v60, 0")
A("v_mov_b32 v61, 1")
A("s_waitcnt lgkmcnt(0)")
A(f"ds_write_b32 v60, v61 offset:{L_CNT+8}")
A(f"s_cmp_lg_u32 {s_last}, 2")
A("s_cbranch_scc1 L_a5")
A("v_readfirstlane_b32 s12, v41")
A("s_nop 1")
A("s_cmp_lg_u32 s12, 31")
A("s_cbranch_scc1 L_a5")
A("v_lshlrev_b32 v62, 7, v2")
for t in range(4):
    A(f"s_mov_b32 s13, 0x{WS_MB + t*8192:x}")
    A(f"buffer_store_dword v61, v62, {R4(S_WS)}, s13 offen offset:4 sc1")
k.label("L_a5")
A("s_setprio 0")
stamp(5)
if OPT['noaux'] == 1:
    A("s_barrier")
    stamp(11)
    A("s_branch L_fin")
for t in range(2):
    A(f"buffer_load_dwordx4 v[{XF+4*t}:{XF+4*t+3}], {vXF}, {R4(S_X)}, {s_XF} offen offset:{64*t}")
for i in range(8):
    dma(S_WG, vTF, s_TF, i * 8 * 7168, 32768 + i * 1024)
for i in range(8):
    dma(S_WU, vTF, s_TF, i * 8 * 7168, 65536 + i * 1024)
for i in range(8):
    dma(S_WO, vTO, s_TO, i * 8 * 2048, i * 1024)
for i in range(8):
    dma(S_WD, vTO, s_TO, i * 8 * 2048, 98304 + i * 1024)
srd(S_WQ, 34, 2048)
A("s_lshl_b32 s13, s7, 11")
A("v_lshlrev_b32 v5, 5, v2")
A(f"buffer_load_dwordx4 v[{GX}:{GX+3}], v5, {R4(S_X)}, s13 offen")
A(f"buffer_load_dwordx4 v[{GX+4}:{GX+7}], v5, {R4(S_X)}, s13 offen offset:16")
A(f"buffer_load_dwordx4 v[{GX+8}:{GX+11}], v5, {R4(S_WQ)}, 0 offen")
A(f"buffer_load_dwordx4 v[{GX+12}:{GX+15}], v5, {R4(S_WQ)}, 0 offen offset:16")
A("s_waitcnt vmcnt(20)")
tr_reads(WF, vT01, 32768)
tr_reads(WF + 32, vT23, 0)
A("s_waitcnt lgkmcnt(0)")
tile_gemm(WF, XF, SEL)
put_partial(vW01, 32768)
tile_gemm(WF + 32, XF, SEL)
put_partial(vW23, 0)
A("s_mov_b32 s84, 0")
arrive(L_CNT + 4, "L_a6")
sum4(WF, vR01, 32768, 8192)
sum4(WF + 32, vR23, 0, 8192)
A("s_waitcnt lgkmcnt(0)")
sum4b(WF)
sum4b(WF + 32)
for t, r in enumerate((WF, WF + 4, WF + 32, WF + 36)):
    A(f"buffer_store_dwordx4 v[{r}:{r+3}], {vL16}, {R4(S_WS1)}, s28 offen offset:{1024*t} sc1")
A("s_mov_b32 s84, 1")
k.label("L_a6")
stamp(3)
A("s_waitcnt vmcnt(0)")
stamp(6)
tr_reads(TF0, vT01, 0)
tr_reads(TF1, vT23, 32768)
srd(S_WU, 36, 16384)
A(f"v_mov_b32 v{VG}, 0")
for r in range(8):
    A(f"v_lshlrev_b32 v60, 16, v{GX+r}")
    A(f"v_and_b32 v61, s8, v{GX+r}")
    A(f"v_lshlrev_b32 v62, 16, v{GX+8+r}")
    A(f"v_and_b32 v63, s8, v{GX+8+r}")
    A("v_mul_f32 v60, v60, v62")
    A("v_mul_f32 v61, v61, v63")
    A("v_cvt_pk_bf16_f32 v60, v60, v61")
    A("v_lshlrev_b32 v61, 16, v60")
    A("v_and_b32 v60, s8, v60")
    A(f"v_add_f32 v{VG}, v{VG}, v61")
    A(f"v_add_f32 v{VG}, v{VG}, v60")
for rot in (8, 4, 2, 1):
    A("s_nop 1")
    A(f"v_add_f32_dpp v{VG}, v{VG}, v{VG} row_ror:{rot} row_mask:0xf bank_mask:0xf")
A(f"v_mov_b32 v60, v{VG}")
A("s_nop 1")
A(f"v_permlane32_swap_b32 v{VG}, v60")
A(f"v_add_f32 v{VG}, v{VG}, v60")
A(f"v_mov_b32 v60, v{VG}")
A("s_nop 1")
A(f"v_permlane16_swap_b32 v{VG}, v60")
A(f"v_add_f32 v{VG}, v{VG}, v60")
round_bf16(VG, 60)
A(f"s_mov_b32 s10, {f32(-LOG2E)}")
A(f"v_mul_f32 v{VG}, s10, v{VG}")
A(f"v_exp_f32 v{VG}, v{VG}")
A("s_nop 0")
A(f"v_add_f32 v{VG}, 1.0, v{VG}")
A(f"v_rcp_f32 v{VG}, v{VG}")
A("s_nop 0")
round_bf16(VG, 60)
A(f"v_sub_f32 v60, 1.0, v{VG}")
round_bf16(60, 61)
A(f"v_cndmask_b32 v{VG}, v{VG}, v60, {sHI}")
poll_mb("go2", 1, 16)
stamp(8)
A("s_cmp_eq_u32 s84, 0")
A("s_cbranch_scc1 L_a6b")
G0, U0, T0 = WF, WF + 32, WF + 8
for p in range(3):
    A(f"s_add_u32 s13, {s_GU}, {4096*p}")
    polln(f"pollG{p}", GX, [(vL16, S_WS0, "s13", 1024 * t) for t in range(4)], sleep=16)
    for e in range(8):
        A(f"v_add_f32 v{G0+e}, v{G0+e}, v{GX+e}")
        A(f"v_add_f32 v{U0+e}, v{U0+e}, v{GX+8+e}")
for t in range(4):
    A(f"v_cvt_pk_bf16_f32 v{T0+t}, v{G0+2*t}, v{G0+2*t+1}")
    A(f"v_cvt_pk_bf16_f32 v{T0+4+t}, v{U0+2*t}, v{U0+2*t+1}")
for t in range(4):
    A(f"v_lshlrev_b32 v{G0+2*t}, 16, v{T0+t}")
    A(f"v_and_b32 v{G0+2*t+1}, s8, v{T0+t}")
    A(f"v_lshlrev_b32 v{U0+2*t}, 16, v{T0+4+t}")
    A(f"v_and_b32 v{U0+2*t+1}, s8, v{T0+4+t}")
A(f"s_mov_b32 s10, {f32(0.044715)}")
A(f"s_mov_b32 s11, {f32(-2.0*0.7978845608028654*LOG2E)}")
for e in range(8):
    A(f"v_mul_f32 v{T0+e}, v{G0+e}, v{G0+e}")
for e in range(8):
    A(f"v_fma_f32 v{T0+e}, v{T0+e}, s10, 1.0")
for e in range(8):
    A(f"v_mul_f32 v{T0+e}, v{T0+e}, v{G0+e}")
for e in range(8):
    A(f"v_mul_f32 v{T0+e}, s11, v{T0+e}")
for e in range(8):
    A(f"v_exp_f32 v{T0+e}, v{T0+e}")
for e in range(8):
    A(f"v_add_f32 v{T0+e}, 1.0, v{T0+e}")
for e in range(8):
    A(f"v_rcp_f32 v{T0+e}, v{T0+e}")
for e in range(8):
    A(f"v_mul_f32 v{G0+e}, v{G0+e}, v{T0+e}")
for t in range(4):
    A(f"v_cvt_pk_bf16_f32 v{T0+t}, v{G0+2*t}, v{G0+2*t+1}")
for t in range(4):
    A(f"v_lshlrev_b32 v{G0+2*t}, 16, v{T0+t}")
    A(f"v_and_b32 v{G0+2*t+1}, s8, v{T0+t}")
for e in range(8):
    A(f"v_mul_f32 v{G0+e}, v{G0+e}, v{U0+e}")
for t in range(4):
    A(f"v_cvt_pk_bf16_f32 v{PZ+t}, v{G0+2*t}, v{G0+2*t+1}")
for t in range(4):
    A(f"v_min_u32 v{PZ+t}, -2, v{PZ+t}")
A(f"buffer_store_dwordx2 v[{PZ}:{PZ+1}], {vHst}, {R4(S_WS0)}, {s_Hst} offen sc1")
A(f"buffer_store_dwordx2 v[{PZ+2}:{PZ+3}], {vHst}, {R4(S_WS0)}, {s_Hst} offen offset:64 sc1")
k.label("L_a6b")
polln("pollH", GX, [(vHg, S_WSF, s_Hin, 64 * t) for t in range(2)], sleep=16)
A("s_waitcnt lgkmcnt(0)")
A("s_nop 2")
tile_gemm(TF1, GX, SEL)
put_partial(vW23, 32768)
stamp(9)
A(f"s_mov_b32 s10, {f32(LOG2E)}")
A(f"s_setprio {OPT['prio']}")
A("s_waitcnt lgkmcnt(0)")
A("s_barrier")
stamp(11)
A(f"s_cmp_lg_u32 {sW}, 0")
A("s_cbranch_scc1 L_gatherO")
CA = 96
A(f"ds_read_b64 v[60:61], {vML} offset:{L_ML}")
for s_ in range(16):
    A(f"ds_read_b64 v[{CA+2*s_}:{CA+2*s_+1}], {vAcc} offset:{L_ACC + s_*512}")
A("s_waitcnt lgkmcnt(15)")
A("v_max_f32_dpp v62, v60, v60 row_ror:8 row_mask:0xf bank_mask:0xf")
for rot in (4, 2, 1):
    A("s_nop 1")
    A(f"v_max_f32_dpp v62, v62, v62 row_ror:{rot} row_mask:0xf bank_mask:0xf")
A("v_sub_f32 v60, v60, v62")
A("v_mul_f32 v60, s10, v60")
A("v_exp_f32 v60, v60")
A("s_nop 0")
A("v_mul_f32 v61, v61, v60")
for rot in (8, 4, 2, 1):
    A("s_nop 1")
    A(f"v_add_f32_dpp v61, v61, v61 row_ror:{rot} row_mask:0xf bank_mask:0xf")
A("v_rcp_f32 v61, v61")
A("s_nop 0")
A("v_mul_f32 v60, v60, v61")
A("s_waitcnt lgkmcnt(0)")
A("s_nop 0")
A(f"v_mul_f32_dpp v62, v60, v{CA} row_newbcast:0 row_mask:0xf bank_mask:0xf")
A(f"v_mul_f32_dpp v63, v60, v{CA+1} row_newbcast:0 row_mask:0xf bank_mask:0xf")
for s_ in range(1, 16):
    A(f"v_fmac_f32_dpp v62, v60, v{CA+2*s_} row_newbcast:{s_} row_mask:0xf bank_mask:0xf")
    A(f"v_fmac_f32_dpp v63, v60, v{CA+2*s_+1} row_newbcast:{s_} row_mask:0xf bank_mask:0xf")
A("v_cvt_pk_bf16_f32 v62, v62, v63")
A("v_min_u32 v62, -2, v62")
A(f"buffer_store_dword v62, {vL4}, {R4(S_WS)}, {s_Ost} offen sc1")
k.label("L_gatherO")
stamp(12)
A(f"s_cmp_lg_u32 {sW}, 3")
A("s_cbranch_scc1 L_a6c")
sum4(WF, vR23, 32768, 8192)
A("s_waitcnt lgkmcnt(0)")
sum4b(WF)
A(f"buffer_store_dwordx4 v[{WF}:{WF+3}], {vPst}, {R4(S_WS)}, {s_PAst} offen offset:128 sc1")
A(f"buffer_store_dwordx4 v[{WF+4}:{WF+7}], {vPst}, {R4(S_WS)}, s30 offen offset:128 sc1")
k.label("L_a6c")
polln("pollO", GX, [(vOg, S_WS, s_Oin, 64 * t) for t in range(2)], sleep=OPT['slpO'])
stamp(13)
A("v_mov_b32 v60, 0")
A("v_mov_b32 v61, 1")
A("s_nop 1")
tile_gemm(TF0, GX, SEL)
put_partial(vW01, 0)
arrive(L_CNT + 12, "L_a7")
sum4(WF, vR01, 0, 8192)
A("s_waitcnt lgkmcnt(0)")
sum4b(WF)
A(f"buffer_store_dwordx4 v[{WF}:{WF+3}], {vPst}, {R4(S_WS)}, {s_PAst} offen sc1")
A(f"buffer_store_dwordx4 v[{WF+4}:{WF+7}], {vPst}, {R4(S_WS)}, s30 offen sc1")
k.label("L_a7")
A(f"s_cmp_lg_u32 {sW}, 0")
A("s_cbranch_scc1 L_fin")
stamp(14)
polln("pollA", GX, [(vL16, S_WS, s_PAin, 1024 * t) for t in range(4)], sleep=OPT['slpA'])
stamp(15)
for e in range(8):
    A(f"v_add_f32 v{GX+e}, v{GX+e}, v{GX+e+8}")
for e in range(4):
    A(f"v_add_f32 v{GX+e}, v{GX+e}, v{GX+e+4}")
A("s_nop 0")
for e in range(2):
    A(f"v_permlane32_swap_b32 v{GX+e}, v{GX+e+2}")
for e in range(2):
    A(f"v_add_f32 v{GX+e}, v{GX+e}, v{GX+e+2}")
A("s_nop 1")
A(f"v_permlane16_swap_b32 v{GX}, v{GX+1}")
A(f"v_add_f32 v{VOUT}, v{GX}, v{GX+1}")
round_bf16(VOUT, 60)
A(f"v_mul_f32 v{VOUT}, v{VOUT}, v{VG}")
round_bf16(VOUT, 60)
A("s_nop 1")
A(f"v_add_f32_dpp v{VOUT}, v{VOUT}, v{VOUT} row_ror:8 row_mask:0xf bank_mask:0xf")
A(f"v_cvt_pk_bf16_f32 v{VOUT}, v{VOUT}, v{VOUT}")
A(f"buffer_store_short v{VOUT}, {vOut}, {R4(S_WU)}, s15 offen")
stamp(16)
k.label("L_fin")
stamp_dump()
k.label("L_end")
A("s_endpgm")

body = "\n".join(k.L)
ref = open('cdna_kernels/%s.s.ref' % NAME).read().split('\n')
head = [l for l in ref if l.startswith(';') and '@launch' not in l]
out = "\n".join(head) + "\n"
out += f"; @launch grid=(256,1,1) block=(512,1,1) lds={LDS_BYTES}\n"
out += f""".amdgcn_target "amdgcn-amd-amdhsa--gfx950"
.text
.globl {NAME}_kernel
.p2align 8
.type {NAME}_kernel,@function
{NAME}_kernel:
{body}
.section .rodata,"a"
.p2align 6
.amdhsa_kernel {NAME}_kernel
  .amdhsa_next_free_vgpr 256
  .amdhsa_next_free_sgpr 102
  .amdhsa_accum_offset 256
  .amdhsa_group_segment_fixed_size 0
  .amdhsa_kernarg_size 104
  .amdhsa_user_sgpr_count 2
  .amdhsa_user_sgpr_kernarg_segment_ptr 1
  .amdhsa_system_sgpr_workgroup_id_x 1
  .amdhsa_float_denorm_mode_32 3
.end_amdhsa_kernel
"""
open(sys.argv[1], 'w').write(out)
```

```python
import sys, struct

NAME = "gated_mix__mha_block_cached__geglu_ffn__decode"
OPT = dict(stamps=0, nokv=0, slpO=1, slpA=1, slpG=1, prio=3, npre=1, D=8, nocomp=0, noaux=0, empty=0, bar0late=1, D2=0, NE=0, DE=16, kpol=1, vpol=1, wpol=1, trace=0, slpM=127, preM=0, bar0early=0, tilesS=0, cnt2=0, oracle=0, vopt=1, DL=0, DH=10, TA=870, TT=228)
for a in sys.argv[2:]:
    kk_, v_ = a.split('=')
    assert kk_ in OPT, kk_
    OPT[kk_] = int(v_)

POL = {0: '', 1: ' nt', 2: ' sc1', 3: ' sc1 nt', 4: ' sc0 sc1', 5: ' sc0 sc1 nt', 6: ' sc0', 7: ' sc0 nt'}
def f32(x):
    return "0x%08x" % struct.unpack('<I', struct.pack('<f', x))[0]

WS_H = 0x0
WS_O = 0x10000
WS_MB = 0x20000
WS_Q = 0x80000
WS_PA = 0x100000
WS_GU = 0x200000
WS_SIZE = 0x2b0000
WS_STAMP = 0x800000
L_Q = 0
L_CNT = 256
L_ML = 512
L_ACC = 4096
L_T = 12288
LDS_BYTES = L_T + 4 * 32768

HUGE = 0x7ffffff0
LOG2E = 1.4426950408889634
SCALE = 128 ** -0.5
SPIN_MAX = 50000

class K:
    def __init__(self):
        self.L = []
    def __call__(self, s):
        self.L.append("    " + s)
    def label(self, s):
        self.L.append(s + ":")
k = K()
A = k

def srd(d, base, nbytes, addlo=None, addhi=None):
    if addlo is None:
        A(f"s_mov_b32 s{d}, s{base}")
        A(f"s_mov_b32 s{d+1}, s{base+1}")
    else:
        A(f"s_add_u32 s{d}, s{base}, {addlo}")
        A(f"s_addc_u32 s{d+1}, s{base+1}, {addhi}")
    A(f"s_mov_b32 s{d+2}, {nbytes}" if isinstance(nbytes, str) else f"s_mov_b32 s{d+2}, 0x{nbytes:x}")
    A(f"s_mov_b32 s{d+3}, 0x00020000")

def stamp_setup():
    if not OPT['stamps']:
        return
    srd(92, 40, WS_STAMP + 0x100000)
    A("s_lshl_b32 s98, s2, 3")
    A("s_add_u32 s98, s98, s3")
    A("s_lshl_b32 s98, s98, 7")
    A(f"s_add_u32 s98, s98, 0x{WS_STAMP:x}")
    A("v_writelane_b32 v255, s100, 31")

def stamp(idx):
    if not OPT['stamps']:
        return
    A("s_memrealtime s[96:97]")
    A("s_waitcnt lgkmcnt(0)")
    A(f"v_writelane_b32 v255, s96, {idx}")

def trace():
    if not OPT['trace']:
        return
    A("s_memrealtime s[96:97]")
    A("s_waitcnt lgkmcnt(0)")
    A("s_mov_b32 m0, s15")
    A("v_writelane_b32 v253, s96, m0")

def stamp_dump():
    if not OPT['stamps']:
        return
    A("v_lshlrev_b32 v254, 2, v2")
    A("v_cmp_gt_u32 vcc, 32, v2")
    A("s_and_saveexec_b64 s[96:97], vcc")
    A("buffer_store_dword v255, v254, s[92:95], s98 offen")
    if OPT['trace']:
        A("s_add_u32 s98, s98, 0x80000")
        A("buffer_store_dword v253, v254, s[92:95], s98 offen")
    A("s_mov_b64 exec, s[96:97]")

if OPT['stamps']:
    A("s_memrealtime s[100:101]")
A("s_cmp_ge_u32 s2, %d" % (0 if OPT['empty'] else 256))
A("s_cbranch_scc1 L_end")
A("s_load_dwordx16 s[16:31], s[0:1], 0")
A("s_load_dwordx8 s[32:39], s[0:1], 64")
A("s_load_dwordx2 s[40:41], s[0:1], 96")
A("v_lshrrev_b32 v1, 6, v0")
A("v_and_b32 v2, 63, v0")
A("v_readfirstlane_b32 s3, v1")
A("s_and_b32 s10, s2, 7")
A("s_lshr_b32 s11, s2, 3")
A("s_and_b32 s6, s11, 3")
A("s_lshl_b32 s7, s10, 2")
A("s_add_u32 s6, s6, s7")
A("s_lshr_b32 s7, s11, 2")
A("s_mul_i32 s15, s10, 7")
A("s_add_u32 s15, s15, s7")
A("s_and_b32 s99, s11, 3")
A("s_mov_b32 s8, 0xffff0000")
A("v_and_b32 v3, 15, v2")
A("v_lshrrev_b32 v4, 4, v2")
if OPT['stamps']:
    A("v_mov_b32 v255, 0")
A("s_cmp_ge_u32 s3, 4")
A("s_cbranch_scc1 L_aux")

NB = 8
NPRE = OPT['npre']
NBLK = 1024 // (4 * NB)
RK = 60
RV = RK + 4 * NB
XB = RV + 4 * NB
VQ = 8
VS = 16
VP = 24
VACC = 32
VM, VL, VMN, VAL = 40, 41, 42, 43
VT = 44
STEP = 4 * NB * 1024
if OPT['DL']:
    A("s_memrealtime s[64:65]")
A("s_lshl_b32 s9, s7, 5")
A("s_add_u32 s9, s9, s6")
A("s_lshl_b32 s10, s9, 20")
A("v_lshlrev_b32 v5, 4, v2")
A(f"s_mul_i32 s12, s3, {NB*1024}")
A("v_add_u32 v5, s12, v5")
NS = NB // 4
DD = OPT['D']
DCUR = [DD]
FIRSTHAVE = [16]
for i in range(NS):
    A(f"s_mov_b32 s{52+i}, {4096*i}")
    A(f"s_mov_b32 s{56+i}, {4096*i + STEP}")
A("v_mov_b32 v6, 0")
A("v_mov_b32 v7, 0")
A(f"ds_write_b64 v6, v[6:7] offset:{L_CNT}")
A(f"ds_write_b64 v6, v[6:7] offset:{L_CNT+8}")
A(f"ds_write_b64 v6, v[6:7] offset:{L_CNT+16}")
A(f"ds_write_b64 v6, v[6:7] offset:{L_CNT+24}")
A("s_waitcnt lgkmcnt(0)")
srd(44, 18, 0 if OPT['nokv'] else 0x100000, "s10", "0")
srd(48, 20, 0 if OPT['nokv'] else 0x100000, "s10", "0")
stamp_setup()
A("s_barrier")

def ldk(base, i, so=52):
    A(f"buffer_load_dwordx4 v[{base+4*i}:{base+4*i+3}], v5, s[44:47], s{so+i//4} offen offset:{(i%4)*1024}{POL[OPT['kpol']]}")
def ldv(base, i, so=52):
    A(f"buffer_load_dwordx4 v[{base+4*i}:{base+4*i+3}], v5, s[48:51], s{so+i//4} offen offset:{(i%4)*1024}{POL[OPT['vpol']]}")
def adv():
    for i in range(NS):
        A(f"s_add_u32 s{52+i}, s{52+i}, 0x{STEP:x}")
        A(f"s_add_u32 s{56+i}, s{56+i}, 0x{STEP:x}")
def issue_after(sq, first=False):
    t = sq + DCUR[0]
    if first and t < FIRSTHAVE[0]:
        return False
    so = 52 if t < 2 * NB else 56
    t %= 2 * NB
    if t < NB:
        ldk(RK, t, so)
    else:
        ldv(RV, t - NB, so)
    return True

DPPM = "row_mask:0xf bank_mask:"
def kphase(base, waits, issue):
    for i in range(NB):
        A(f"s_waitcnt vmcnt({waits(i)})")
        A(f"v_dot2_f32_bf16 v{VS+i}, v{base+4*i}, v{VQ}, 0")
        for r in range(1, 4):
            A(f"v_dot2_f32_bf16 v{VS+i}, v{base+4*i+r}, v{VQ+r}, v{VS+i}")
        if not (issue and issue_after(i, issue == 'first')):
            A("s_nop 0")
        if i >= 3 and i % 2 == 1:
            p = i - 3
            A(f"v_add_f32_dpp v{VS+p}, v{VS+p}, v{VS+p} row_ror:8 {DPPM}0x3")
            A(f"v_add_f32_dpp v{VS+p}, v{VS+p+1}, v{VS+p+1} row_ror:8 {DPPM}0xc")
    A(f"v_add_f32_dpp v{VS}, v{VS}, v{VS} row_ror:12 {DPPM}0x5")
    A(f"v_add_f32_dpp v{VS}, v{VS+2}, v{VS+2} row_ror:4 {DPPM}0xa")
    A(f"v_add_f32_dpp v{VS+6}, v{VS+6}, v{VS+6} row_ror:8 {DPPM}0x3")
    A(f"v_add_f32_dpp v{VS+6}, v{VS+7}, v{VS+7} row_ror:8 {DPPM}0xc")
    A(f"v_add_f32_dpp v{VS+4}, v{VS+4}, v{VS+4} row_ror:12 {DPPM}0x5")
    A(f"v_add_f32_dpp v{VS}, v{VS}, v{VS} quad_perm:[1,0,3,2] {DPPM}0xf")
    A(f"v_add_f32_dpp v{VS+4}, v{VS+6}, v{VS+6} row_ror:4 {DPPM}0xa")
    A("s_nop 0")
    A(f"v_add_f32_dpp v{VS}, v{VS}, v{VS} quad_perm:[2,3,0,1] {DPPM}0xf")
    A(f"v_add_f32_dpp v{VS+4}, v{VS+4}, v{VS+4} quad_perm:[1,0,3,2] {DPPM}0xf")
    A("s_nop 1")
    A(f"v_add_f32_dpp v{VS+4}, v{VS+4}, v{VS+4} quad_perm:[2,3,0,1] {DPPM}0xf")

def softmax():
    W0, W1 = VS, VS + 4
    A(f"v_cvt_pk_bf16_f32 v{VT}, v{W0}, v{W1}")
    A(f"v_lshlrev_b32 v{W0}, 16, v{VT}")
    A(f"v_and_b32 v{W1}, s8, v{VT}")
    A(f"v_mul_f32 v{W0}, s13, v{W0}")
    A(f"v_mul_f32 v{W1}, s13, v{W1}")
    A(f"v_cvt_pk_bf16_f32 v{VT}, v{W0}, v{W1}")
    A(f"v_lshlrev_b32 v{W0}, 16, v{VT}")
    A(f"v_and_b32 v{W1}, s8, v{VT}")
    A(f"v_max3_f32 v{VMN}, v{W0}, v{W1}, v{VM}")
    A("s_nop 1")
    A(f"v_max_f32_dpp v{VMN}, v{VMN}, v{VMN} row_ror:4 {DPPM}0xf")
    A("s_nop 1")
    A(f"v_max_f32_dpp v{VMN}, v{VMN}, v{VMN} row_ror:8 {DPPM}0xf")
    A(f"v_sub_f32 v{VAL}, v{VM}, v{VMN}")
    A(f"v_sub_f32 v{W0}, v{W0}, v{VMN}")
    A(f"v_sub_f32 v{W1}, v{W1}, v{VMN}")
    A(f"v_mul_f32 v{VAL}, s14, v{VAL}")
    A(f"v_mul_f32 v{W0}, s14, v{W0}")
    A(f"v_mul_f32 v{W1}, s14, v{W1}")
    A(f"v_exp_f32 v{W0}, v{W0}")
    A(f"v_exp_f32 v{W1}, v{W1}")
    A(f"v_exp_f32 v{VAL}, v{VAL}")
    A(f"v_mov_b32 v{VM}, v{VMN}")
    for i in range(NB):
        r, q = i >> 2, ((i & 1) << 1) | ((i >> 1) & 1)
        A(f"v_mov_b32_dpp v{VP+i}, v{VS+4*r} row_newbcast:{4*q} {DPPM}0xf")
    A(f"v_fma_f32 v{VL}, v{VL}, v{VAL}, v{W0}")
    for e in range(4):
        A(f"v_pk_mul_f32 v[{VACC+2*e}:{VACC+2*e+1}], v[{VACC+2*e}:{VACC+2*e+1}], v[{VAL-1}:{VAL}] op_sel:[0,1] op_sel_hi:[1,1]")
    A(f"v_add_f32 v{VL}, v{VL}, v{W1}")

def vphase(base, waits, issue):
    for i in range(NB):
        A(f"s_waitcnt vmcnt({waits(i)})")
        tb = VT + 8 * (i & 1)
        for r in range(4):
            A(f"v_lshlrev_b32 v{tb+2*r}, 16, v{base+4*i+r}")
            A(f"v_and_b32 v{tb+2*r+1}, s8, v{base+4*i+r}")
        if issue:
            issue_after(NB + i, issue == 'first')
        pp = VP + (i & ~1)
        sel = "op_sel:[0,1,0] op_sel_hi:[1,1,1]" if i & 1 else "op_sel_hi:[1,0,1]"
        for e in range(4):
            A(f"v_pk_fma_f32 v[{VACC+2*e}:{VACC+2*e+1}], v[{tb+2*e}:{tb+2*e+1}], v[{pp}:{pp+1}], v[{VACC+2*e}:{VACC+2*e+1}] {sel}")

stamp(0)
if OPT['tilesS']:
    A("s_cmp_lt_u32 s7, 7")
    A("s_cselect_b32 s13, 0x700000, 0")
    srd(64, 28, "s13")
    srd(68, 30, "s13")
    srd(72, 32, "s13")
    A("v_lshrrev_b32 v10, 3, v2")
    A("v_and_b32 v11, 7, v2")
    A("v_lshlrev_b32 v11, 4, v11")
    A("v_mul_u32_u24 v12, 7168, v10")
    A("v_add_u32 v12, v12, v11")
    A("v_lshl_add_u32 v13, v10, 11, v11")
    A("s_lshl_b32 s12, s99, 2")
    A("s_add_u32 s12, s12, s3")
    A(f"s_mul_i32 s76, s12, {64 * 7168}")
    A("s_lshl_b32 s12, s15, 7")
    A("s_add_u32 s76, s76, s12")
    A("s_lshl_b32 s12, s7, 1")
    A("s_lshr_b32 s13, s6, 4")
    A("s_add_u32 s12, s12, s13")
    A("s_lshl_b32 s12, s12, 2")
    A("s_add_u32 s12, s12, s3")
    A("s_lshl_b32 s77, s12, 17")
    A("s_and_b32 s13, s6, 15")
    A("s_lshl_b32 s13, s13, 7")
    A("s_add_u32 s77, s77, s13")
    A("s_lshl_b32 s78, s3, 13")
    A(f"s_add_u32 s78, s78, {L_T}")
    for sr, v, so, pitch, reg in ((64, "v12", "s76", 7168, 1), (68, "v12", "s76", 7168, 2), (72, "v13", "s77", 2048, 3)):
        for i in range(8):
            A(f"s_add_u32 m0, s78, {reg*32768 + i*1024}")
            A(f"s_add_u32 s11, {so}, {i*8*pitch}")
            A(f"buffer_load_dwordx4 {v}, s[{sr}:{sr+3}], s11 offen{POL[OPT['wpol']]} lds")
for p in range(NPRE + 1):
    kb = XB + p * 8 * NB if p < NPRE else RK
    vb = kb + 4 * NB
    for i in range(NB):
        ldk(kb, i)
    for i in range(NB):
        ldv(vb, i)
    if p < NPRE:
        adv()
for e in range(8):
    A(f"v_mov_b32 v{VACC+e}, 0")
A(f"v_mov_b32 v{VM}, 0xff61b1e6")
A(f"v_mov_b32 v{VL}, 0")
A(f"s_mov_b32 s13, {f32(SCALE)}")
A(f"s_mov_b32 s14, {f32(LOG2E)}")
A(f"s_mov_b32 s15, {NPRE}")
A("v_lshlrev_b32 v6, 4, v3")
stamp(1)
A("v_mov_b32 v7, 0")
if OPT['tilesS']:
    A(f"s_waitcnt vmcnt({(NPRE + 1) * 2 * NB})")
    A("s_lshl_b32 s12, s3, 2")
    A("v_mov_b32 v12, s12")
    A("v_mov_b32 v13, 1")
    A(f"ds_write_b32 v12, v13 offset:{L_CNT+16}")
k.label("L_qwait")
A(f"ds_read_b32 v12, v7 offset:{L_CNT+8}")
A("s_waitcnt lgkmcnt(0)")
A("v_readfirstlane_b32 s12, v12")
A("s_nop 1")
A("s_cmp_lg_u32 s12, 0")
A("s_cbranch_scc1 L_qdone")
A("s_sleep 1")
A("s_branch L_qwait")
k.label("L_qdone")
A(f"ds_read_b128 v[{VQ}:{VQ+3}], v6 offset:{L_Q}")
A("v_lshlrev_b32 v6, 5, v3")
A("s_waitcnt lgkmcnt(0)")
stamp(2)
tot = (NPRE + 1) * 2 * NB
for p in range(NPRE):
    kb = XB + p * 8 * NB
    kphase(kb, lambda i: tot - 1 - (2 * NB * p + i), False)
    softmax()
    vphase(kb + 4 * NB, lambda i: tot - 1 - (2 * NB * p + NB + i), False)
    if OPT['trace']:
        A("s_memrealtime s[96:97]")
        A("s_waitcnt lgkmcnt(0)")
        A(f"v_writelane_b32 v253, s96, {p}")
def stream_loop(D, tag):
    DCUR[0] = D
    first_wait = lambda sq: 2 * NB - 1 - sq + max(0, sq - (2 * NB - D))
    kphase(RK, first_wait, 'first')
    if D >= NB:
        A(f"s_branch L_mid{tag}")
    else:
        softmax()
        vphase(RV, lambda i: first_wait(NB + i), 'first')
        adv()
        trace()
        A("s_add_u32 s15, s15, 1")
    A(".p2align 6")
    k.label(f"L_loop{tag}")
    kphase(RK, lambda i: D - 1, True)
    k.label(f"L_mid{tag}")
    softmax()
    vphase(RV, lambda i: D - 1, True)
    adv()
    trace()
    A("s_add_u32 s15, s15, 1")
    A(f"s_cmp_lt_u32 s15, {NBLK - OPT['NE']}")
    A(f"s_cbranch_scc1 L_loop{tag}")
    if OPT['NE']:
        DE = OPT['DE']
        for t in range(D, DE):
            if t < NB:
                ldk(RK, t, 52)
            else:
                ldv(RV, t - NB, 52)
        if tag == "b":
            A("s_branch L_loopE")
            return
        DCUR[0] = DE
        k.label("L_loopE")
        kphase(RK, lambda i: DE - 1, True)
        softmax()
        vphase(RV, lambda i: DE - 1, True)
        adv()
        trace()
        A("s_add_u32 s15, s15, 1")
        A(f"s_cmp_lt_u32 s15, {NBLK}")
        A("s_cbranch_scc1 L_loopE")
def paced_loops(DL, DH):
    def decide(lo_lab, hi_lab):
        adv()
        trace()
        A("s_add_u32 s15, s15, 1")
        A(f"s_cmp_ge_u32 s15, {NBLK}")
        A("s_cbranch_scc1 L_sdone")
        A("s_waitcnt lgkmcnt(0)")
        A("s_sub_u32 s12, s66, s62")
        A(f"s_add_u32 s62, s62, {OPT['TT']}")
        A("s_cmp_lt_i32 s12, 0")
        A(f"s_cbranch_scc1 {lo_lab}")
        if hi_lab:
            A(f"s_branch {hi_lab}")
    def body(D, waitsK, waitsV, mode, mid=None):
        DCUR[0] = D
        kphase(RK, waitsK, mode)
        if mid:
            k.label(mid)
        softmax()
        A("s_memrealtime s[66:67]")
        vphase(RV, waitsV, mode)
    A(f"s_add_u32 s62, s64, {OPT['TA'] + OPT['TT'] * NPRE}")
    fw = lambda D, have: (lambda sq: have - 1 - sq + max(0, sq - (have - D)))
    FIRSTHAVE[0] = 2 * NB
    body(DH, fw(DH, 2 * NB), lambda i: fw(DH, 2 * NB)(NB + i), 'first')
    decide("L_h2l", "L_hi")
    A(".p2align 6")
    k.label("L_l2h")
    for t in range(DL, DH):
        if t < NB:
            ldk(RK, t, 52)
        else:
            ldv(RV, t - NB, 52)
    k.label("L_hi")
    body(DH, lambda i: DH - 1, lambda i: DH - 1, True)
    decide("L_h2l", "L_hi")
    k.label("L_h2l")
    FIRSTHAVE[0] = DH
    body(DL, fw(DL, DH), lambda i: fw(DL, DH)(NB + i), 'first')
    decide("L_lo", "L_l2h")
    k.label("L_lo")
    body(DL, lambda i: DL - 1, lambda i: DL - 1, True)
    decide("L_lo", "L_l2h")
if OPT['DL']:
    paced_loops(OPT['DL'], OPT['DH'])
else:
    if OPT['D2']:
        A("s_getreg_b32 s12, hwreg(HW_REG_XCC_ID)")
        A("s_and_b32 s12, s12, 1")
        A("s_cmp_eq_u32 s12, 0")
        A("s_cbranch_scc1 L_even")
        stream_loop(OPT['D2'], "b")
        A("s_branch L_sdone")
        k.label("L_even")
    stream_loop(DD, "a")
k.label("L_sdone")
A(f"v_add_f32_dpp v{VL}, v{VL}, v{VL} row_ror:4 {DPPM}0xf")
A("s_lshl_b32 s12, s3, 2")
A("v_add_u32 v7, s12, v4")
A("v_lshlrev_b32 v9, 9, v7")
A("v_add_u32 v9, v9, v6")
A(f"v_add_f32_dpp v{VL}, v{VL}, v{VL} row_ror:8 {DPPM}0xf")
A(f"ds_write_b128 v9, v[{VACC}:{VACC+3}] offset:{L_ACC}")
A(f"ds_write_b128 v9, v[{VACC+4}:{VACC+7}] offset:{L_ACC+16}")
A("v_lshlrev_b32 v7, 3, v7")
A("v_cmp_eq_u32 vcc, 0, v3")
A("s_and_saveexec_b64 s[60:61], vcc")
A(f"ds_write_b64 v7, v[{VM}:{VL}] offset:{L_ML}")
A("s_mov_b64 exec, s[60:61]")
A("s_waitcnt lgkmcnt(0)")
A("s_barrier")
stamp(3)
stamp_dump()
A("s_endpgm")


S_WQ, S_X, S_WS, S_WG, S_WU, S_WD, S_WO, S_WSF, S_DBG = 44, 48, 52, 56, 60, 64, 68, 72, 76
S_WS0, S_WS1 = 16, 20
def R4(n): return f"s[{n}:{n+3}]"
sW = "s9"
s_PAst, s_Ost, s_Qst, s_Hin, s_MB, s_Hst = "s80", "s82", "s83", "s85", "s86", "s87"
s_TQ, s_TF, s_TO, s_LDS, s_Oin, s_last, s_PAin, s_Qin = "s88", "s89", "s90", "s91", "s42", "s43", "s14", "s81"
s_GU, s_XF = "s26", "s27"
sHI = "s[4:5]"
vHUGE, vPst, vQst, vL4, vTQ, vTO, vTF, vXF, vOg, vHg = "v1", "v6", "v7", "v8", "v9", "v10", "v12", "v13", "v14", "v15"
vL16, vOut, vML, vAcc, vHst, vT23, vT01, vR01, vR23, vW01, vW23 = "v40", "v42", "v43", "v0", "v47", "v48", "v49", "v50", "v51", "v11", "v45"
XF = 16
SEL = 24
PZ = 32
DD0 = 208
WF = 96
TF0, TF1 = 160, 64
GX = 192
VG, VOUT = 44, 46

k.label("L_aux")
if OPT['prio']:
    A(f"s_setprio {OPT['prio']}")
A(f"s_sub_u32 {sW}, s3, 4")
A(f"v_cmp_lt_u32 {sHI}, 7, v3")
A("v_and_b32 v5, 7, v3")
A("v_lshrrev_b32 v62, 3, v2")
A("v_lshlrev_b32 v63, 4, v5")
A(f"v_lshl_add_u32 {vTQ}, v62, 13, v63")
A(f"v_mul_u32_u24 {vTF}, 7168, v62")
A(f"v_add_u32 {vTF}, {vTF}, v63")
A(f"v_lshl_add_u32 {vTO}, v62, 11, v63")
A(f"v_lshlrev_b32 {vXF}, 11, v5")
A(f"v_lshl_add_u32 {vXF}, v4, 4, {vXF}")
A("s_lshr_b32 s12, s7, 1")
A("s_lshl_b32 s12, s12, 2")
A(f"s_add_u32 s12, s12, {sW}")
A(f"s_lshl_b32 {s_TQ}, s12, 19")
A("s_lshl_b32 s84, s12, 7")
A("s_lshl_b32 s10, s6, 8")
A(f"s_add_u32 {s_TQ}, {s_TQ}, s10")
A("s_and_b32 s12, s7, 1")
A("s_lshl_b32 s12, s12, 7")
A(f"s_add_u32 {s_TQ}, {s_TQ}, s12")
A(f"s_lshl_b32 {s_LDS}, {sW}, 13")
A(f"s_add_u32 {s_LDS}, {s_LDS}, {L_T}")
if OPT['bar0early']:
    A("s_barrier")
A(f"s_cmp_lg_u32 {sW}, 0")
A("s_waitcnt lgkmcnt(0)")
stamp(20)
srd(S_WS, 40, WS_SIZE)
srd(S_X, 16, 0x4000)
srd(S_WQ, 22, 0x800000)
def dma(sr, v, so, goff, loff):
    A(f"s_add_u32 m0, {s_LDS}, {loff}")
    A(f"s_add_u32 s11, {so}, {goff}")
    A(f"buffer_load_dwordx4 {v}, {R4(sr)}, s11 offen{POL[OPT['wpol']]} lds")
def slot_consts():
    A("v_lshrrev_b32 v62, 3, v3")
    A("v_lshlrev_b32 v63, 5, v62")
    A("v_lshl_add_u32 v63, v4, 3, v63")
    A(f"v_mul_u32_u24 {vHst}, 7168, v5")
    A(f"v_add_u32 {vHst}, {vHst}, v63")
    A("v_lshlrev_b32 v62, 6, v62")
    A("v_lshl_add_u32 v62, v4, 4, v62")
    A(f"v_lshl_add_u32 {vPst}, v5, 17, v62")
    A(f"v_lshl_add_u32 {vQst}, v5, 11, v62")
    A(f"v_lshlrev_b32 {vL4}, 2, v2")
    A(f"v_lshlrev_b32 {vL16}, 4, v2")
    A("s_lshl_b32 s12, s6, 3")
    A("s_add_u32 s12, s12, s7")
    A(f"s_lshl_b32 {s_MB}, s12, 7")
    A(f"s_add_u32 {s_MB}, {s_MB}, 0x{WS_MB:x}")
    A(f"s_lshl_b32 {s_Ost}, s12, 8")
    A(f"s_add_u32 {s_Ost}, {s_Ost}, 0x{WS_O:x}")
    A(f"s_lshl_b32 {s_Qin}, s12, 11")
    A(f"s_add_u32 {s_Qin}, {s_Qin}, 0x{WS_Q:x}")
    A(f"s_lshl_b32 {s_Qst}, s6, 14")
    A("s_lshl_b32 s12, s7, 8")
    A(f"s_add_u32 {s_Qst}, {s_Qst}, s12")
    A(f"s_add_u32 {s_Qst}, {s_Qst}, 0x{WS_Q:x}")
    A("s_and_b32 s12, s6, 15")
    A(f"s_lshl_b32 {s_PAst}, s12, 12")
    A("s_lshl_b32 s12, s7, 1")
    A("s_lshr_b32 s13, s6, 4")
    A("s_add_u32 s12, s12, s13")
    A("s_lshl_b32 s12, s12, 8")
    A(f"s_add_u32 {s_PAst}, {s_PAst}, s12")
    A(f"s_add_u32 {s_PAst}, {s_PAst}, 0x{WS_PA:x}")
    A(f"s_lshl_b32 {s_Hst}, s15, 7")
    A(f"s_mul_i32 {s_GU}, s15, 12288")
    A(f"s_add_u32 {s_GU}, {s_GU}, 0x{WS_GU:x}")
    A("s_cmp_lt_u32 s7, 7")
    A("s_cselect_b32 s13, 0x%x, 0" % WS_SIZE)
    srd(S_WSF, 40, "s13")
    A("s_cmp_eq_u32 s99, 0")
    A("s_cselect_b32 s12, s13, 0")
    A("s_cselect_b32 s13, 0, s13")
    srd(S_WS0, 40, "s12")
    srd(S_WS1, 40, "s13")
    A("s_lshl_b32 s12, s99, 12")
    A(f"s_add_u32 s10, {s_GU}, s12")
    A("s_sub_u32 s10, s10, 4096")
    A(f"s_add_u32 s13, {s_PAst}, 0x10000")
A("s_cbranch_scc1 L_a1")
slot_consts()
for r in range(4):
    A(f"v_mov_b32 v{PZ+r}, -1")
A("v_mov_b32 v60, 0")
A("v_mov_b32 v61, 0")
P = f"v[{PZ}:{PZ+3}]"
A(f"buffer_store_dwordx4 {P}, {vQst}, {R4(S_WS)}, {s_Qst} offen sc1")
A(f"buffer_store_dwordx4 {P}, {vQst}, {R4(S_WS)}, {s_Qst} offen offset:128 sc1")
A(f"buffer_store_dwordx2 v[60:61], off, {R4(S_WS)}, {s_MB} sc1")
A(f"buffer_store_dwordx2 v[{PZ}:{PZ+1}], {vHst}, {R4(S_WS0)}, {s_Hst} offen sc1")
A(f"buffer_store_dwordx2 v[{PZ}:{PZ+1}], {vHst}, {R4(S_WS0)}, {s_Hst} offen offset:64 sc1")
for t in range(4):
    A(f"buffer_store_dwordx4 {P}, {vL16}, {R4(S_WS1)}, s10 offen offset:{1024*t} sc1")
for so in (s_PAst, "s13"):
    A(f"buffer_store_dwordx4 {P}, {vPst}, {R4(S_WS)}, {so} offen sc1")
    A(f"buffer_store_dwordx4 {P}, {vPst}, {R4(S_WS)}, {so} offen offset:128 sc1")
A(f"buffer_store_dword v{PZ}, {vL4}, {R4(S_WS)}, {s_Ost} offen sc1")
k.label("L_a1")
stamp(21)
for t in range(2):
    A(f"buffer_load_dwordx4 v[{XF+4*t}:{XF+4*t+3}], {vXF}, {R4(S_X)}, s84 offen offset:{64*t}")
for i in range(8):
    dma(S_WQ, vTQ, s_TQ, i * 8 * 8192, i * 1024)
stamp(22)
if OPT['bar0late']:
    A(f"s_cmp_lg_u32 {sW}, 0")
    A("s_cbranch_scc1 L_a1b")
    A("s_waitcnt vmcnt(10)")
    k.label("L_a1b")
if not OPT['bar0early']:
    A("s_barrier")
stamp_setup()
stamp(0)
srd(S_DBG, 38, 256)
A("v_mov_b32 v60, 0")
A("v_mov_b32 v61, 1")
A(f"s_cmp_lg_u32 {sW}, 0")
A("s_cbranch_scc1 L_a2")
A("s_waitcnt vmcnt(10)")
if OPT['cnt2']:
    A("s_and_b32 s13, s6, 1")
    A("s_lshl_b32 s13, s13, 7")
    A("s_lshr_b32 s12, s6, 1")
    A("s_lshl_b32 s12, s12, 2")
    A("s_add_u32 s13, s13, s12")
else:
    A("s_lshl_b32 s13, s6, 2")
A("v_mov_b32 v41, 1")
A("s_mov_b64 exec, 1")
A(f"buffer_atomic_add v41, off, {R4(S_DBG)}, s13 sc0 sc1")
A("s_mov_b64 exec, -1")
k.label("L_a2")
stamp(1)
slot_consts()
A("v_bfe_u32 v62, v2, 2, 2")
A("v_and_b32 v63, 3, v2")
A(f"v_lshlrev_b32 {vT01}, 10, v4")
A(f"v_lshl_add_u32 {vT01}, v62, 7, {vT01}")
A(f"v_lshl_add_u32 {vT01}, v63, 3, {vT01}")
A(f"v_add_u32 {vT01}, {s_LDS}, {vT01}")
A(f"v_add_u32 {vT23}, 0x10000, {vT01}")
A(f"v_add_u32 {vW01}, {s_LDS}, {vL16}")
A(f"v_add_u32 {vW23}, 0x10000, {vW01}")
A(f"v_add_u32 {vR01}, {L_T}, {vL16}")
A(f"v_add_u32 {vR23}, 0x10000, {vR01}")
A(f"s_lshl_b32 s13, {sW}, 11")
A(f"v_add_u32 v39, s13, {vL16}")

def tr_reads(base, vaddr, lo):
    for nb in range(4):
        for kk in range(2):
            r = base + (nb * 2 + kk) * 4
            A(f"ds_read_b64_tr_b16 v[{r}:{r+1}], {vaddr} offset:{lo + kk*4096 + nb*32}")
            A(f"ds_read_b64_tr_b16 v[{r+2}:{r+3}], {vaddr} offset:{lo + kk*4096 + 512 + nb*32}")
def tile_gemm(frag, xf, dst):
    for kk in range(2):
        for nb in range(4):
            r = frag + (nb * 2 + kk) * 4
            D = DD0 + 4 * nb
            c = "0" if kk == 0 else f"v[{D}:{D+3}]"
            A(f"v_mfma_f32_16x16x32_bf16 v[{D}:{D+3}], v[{r}:{r+3}], v[{xf+4*kk}:{xf+4*kk+3}], {c}")
    A("s_nop 5")
    for e in range(4):
        A(f"v_cndmask_b32 v{dst+e}, v{DD0+e}, v{DD0+4+e}, {sHI}")
    for e in range(4):
        A(f"v_cndmask_b32 v{dst+4+e}, v{DD0+8+e}, v{DD0+12+e}, {sHI}")
def put_partial(vaddr, lo):
    A(f"ds_write_b128 {vaddr}, v[{SEL}:{SEL+3}] offset:{lo}")
    A(f"ds_write_b128 {vaddr}, v[{SEL+4}:{SEL+7}] offset:{lo+1024}")
def arrive(cnt_off, lab):
    A("s_mov_b64 exec, 1")
    A("s_waitcnt lgkmcnt(0)")
    A(f"ds_add_rtn_u32 v62, v60, v61 offset:{cnt_off}")
    A("s_waitcnt lgkmcnt(0)")
    A("v_readfirstlane_b32 s12, v62")
    A("s_mov_b64 exec, -1")
    A("s_cmp_lg_u32 s12, 3")
    A(f"s_cbranch_scc1 {lab}")
def sum4(dst, vaddr, lo, stride):
    for w in range(4):
        for t in range(2):
            A(f"ds_read_b128 v[{dst+8*w+4*t}:{dst+8*w+4*t+3}], {vaddr} offset:{lo + w*stride + t*1024}")
def sum4b(dst, clean=True):
    for e in range(8):
        A(f"v_add_f32 v{dst+e}, v{dst+e}, v{dst+8+e}")
        A(f"v_add_f32 v{dst+16+e}, v{dst+16+e}, v{dst+24+e}")
    for e in range(8):
        A(f"v_add_f32 v{dst+e}, v{dst+e}, v{dst+16+e}")
    for e in range(8 if clean else 0):
        A(f"v_min_u32 v{dst+e}, -2, v{dst+e}")
def poll_mb(name, dword, sleep):
    A("s_mov_b32 s12, 0")
    k.label(f"L_{name}")
    A(f"buffer_load_dword v62, off, {R4(S_WS)}, {s_MB} offset:{4*dword} sc1")
    A("s_waitcnt vmcnt(0)")
    A("v_readfirstlane_b32 s10, v62")
    A("s_nop 1")
    A("s_cmp_lg_u32 s10, 0")
    A(f"s_cbranch_scc1 L_{name}_done")
    A(f"s_sleep {sleep}")
    A("s_add_u32 s12, s12, 1")
    A(f"s_cmp_lt_u32 s12, {SPIN_MAX}")
    A(f"s_cbranch_scc1 L_{name}")
    k.label(f"L_{name}_done")
def polln(name, dst, loads, sleep=2):
    n = len(loads)
    A("s_mov_b32 s12, 0")
    k.label(f"L_{name}")
    for t, (vo, sr, so, im) in enumerate(loads):
        A(f"buffer_load_dwordx4 v[{dst+4*t}:{dst+4*t+3}], {vo}, {R4(sr)}, {so} offen offset:{im} sc1")
    A("s_waitcnt vmcnt(0)")
    regs = [f"v{dst+i}" for i in range(4 * n)]
    tmp = ["v60", "v61", "v62", "v63"]
    acc = []
    i = 0
    while len(acc) < 4 and i + 3 <= len(regs):
        A(f"v_max3_u32 {tmp[len(acc)]}, {regs[i]}, {regs[i+1]}, {regs[i+2]}")
        acc.append(tmp[len(acc)]); i += 3
    j = 0
    while i < len(regs):
        if i + 2 <= len(regs):
            A(f"v_max3_u32 {acc[j]}, {acc[j]}, {regs[i]}, {regs[i+1]}"); i += 2
        else:
            A(f"v_max_u32 {acc[j]}, {acc[j]}, {regs[i]}"); i += 1
        j = (j + 1) % len(acc)
    if len(acc) == 4:
        A(f"v_max3_u32 {acc[0]}, {acc[0]}, {acc[1]}, {acc[2]}")
        A(f"v_max_u32 {acc[0]}, {acc[0]}, {acc[3]}")
    else:
        assert len(acc) == 2
        A(f"v_max_u32 {acc[0]}, {acc[0]}, {acc[1]}")
    A("v_cmp_eq_u32 vcc, -1, v60")
    A(f"s_cbranch_vccz L_{name}_done")
    A("s_mov_b64 exec, vcc")
    if sleep:
        A(f"s_sleep {sleep}")
    A("s_add_u32 s12, s12, 1")
    A(f"s_cmp_lt_u32 s12, {SPIN_MAX}")
    A(f"s_cbranch_scc1 L_{name}")
    k.label(f"L_{name}_done")
    A("s_mov_b64 exec, -1")
def round_bf16(r, tmp):
    A(f"v_cvt_pk_bf16_f32 v{tmp}, v{r}, v{r}")
    A(f"v_and_b32 v{r}, s8, v{tmp}")

A(f"s_cmp_lg_u32 {sW}, 0")
A("s_cbranch_scc1 L_a2b")
A("s_waitcnt vmcnt(1)")
A("s_branch L_a2c")
k.label("L_a2b")
A("s_waitcnt vmcnt(0)")
k.label("L_a2c")
stamp(2)
tr_reads(WF, vT01, 0)
A(f"s_mov_b32 {s_last}, 0")
A("s_mov_b32 s84, 0")
A("s_waitcnt lgkmcnt(0)")
tile_gemm(WF, XF, SEL)
put_partial("v39", L_ACC)
arrive(L_CNT, "L_a4")
sum4(WF, vL16, L_ACC, 2048)
A("s_waitcnt lgkmcnt(0)")
sum4b(WF)
A(f"buffer_store_dwordx4 v[{WF}:{WF+3}], {vQst}, {R4(S_WS)}, {s_Qst} offen sc1")
A(f"buffer_store_dwordx4 v[{WF+4}:{WF+7}], {vQst}, {R4(S_WS)}, {s_Qst} offen offset:128 sc1")
A("s_mov_b32 s84, 1")
k.label("L_a4")
stamp(23)
A("s_cmp_lt_u32 s7, 7")
A("s_cselect_b32 s13, 0x700000, 0")
srd(S_WG, 28, "s13")
srd(S_WU, 30, "s13")
srd(S_WD, 32, "s13")
srd(S_WO, 24, 0x800000)
A("s_mov_b32 s28, s10")
A("s_lshl_b32 s12, s99, 2")
A(f"s_add_u32 s12, s12, {sW}")
A(f"s_lshl_b32 {s_XF}, s12, 7")
A(f"s_mul_i32 {s_TF}, s12, {64 * 7168}")
A(f"s_add_u32 {s_TF}, {s_TF}, {s_Hst}")
A("s_lshl_b32 s12, s7, 1")
A("s_lshr_b32 s13, s6, 4")
A("s_add_u32 s12, s12, s13")
A("s_lshl_b32 s12, s12, 2")
A(f"s_add_u32 s12, s12, {sW}")
A(f"s_lshl_b32 {s_TO}, s12, 17")
A("s_and_b32 s13, s6, 15")
A("s_lshl_b32 s29, s13, 7")
A(f"s_add_u32 {s_TO}, {s_TO}, s29")
A(f"s_lshl_b32 {s_Hin}, s12, 7")
A("s_lshr_b32 s13, s12, 1")
A(f"s_lshl_b32 {s_Oin}, s13, 11")
A("s_and_b32 s13, s12, 1")
A("s_lshl_b32 s13, s13, 7")
A(f"s_add_u32 {s_Oin}, {s_Oin}, s13")
A(f"s_add_u32 {s_Oin}, {s_Oin}, 0x{WS_O:x}")
A(f"s_lshl_b32 {s_PAin}, s7, 5")
A(f"s_add_u32 {s_PAin}, {s_PAin}, s6")
A(f"s_lshl_b32 {s_PAin}, {s_PAin}, 12")
A(f"s_add_u32 {s_PAin}, {s_PAin}, 0x{WS_PA:x}")
A("s_lshl_b32 s15, s7, 11")
A("s_add_u32 s15, s15, s29")
A("s_lshr_b32 s13, s6, 4")
A("s_lshl_b32 s13, s13, 6")
A("s_add_u32 s15, s15, s13")
A(f"s_add_u32 s30, {s_PAst}, 0x10000")
A(f"v_mov_b32 {vHUGE}, 0x{HUGE:x}")
A(f"v_lshlrev_b32 {vOut}, 3, v5")
A(f"v_lshl_add_u32 {vOut}, v4, 1, {vOut}")
A(f"v_cndmask_b32 {vOut}, {vOut}, {vHUGE}, {sHI}")
A(f"v_lshlrev_b32 {vML}, 3, v3")
A(f"v_lshlrev_b32 {vAcc}, 3, v2")
A(f"v_lshlrev_b32 {vOg}, 8, v5")
A(f"v_lshl_add_u32 {vOg}, v4, 4, {vOg}")
A(f"v_mul_u32_u24 {vHg}, 7168, v5")
A(f"v_lshl_add_u32 {vHg}, v4, 4, {vHg}")
A(f"s_cmp_lg_u32 {sW}, 0")
A("s_cbranch_scc1 L_a5")
A("s_waitcnt vmcnt(2)")
A("s_cmp_lg_u32 s84, 0")
A("s_cbranch_scc1 L_a4b")
A("s_waitcnt vmcnt(0)")
k.label("L_a4b")
stamp(7)
A("v_readfirstlane_b32 s12, v41")
A("s_nop 1")
A("s_cmp_lg_u32 s12, 7")
A("s_cbranch_scc1 L_a3")
A("v_lshlrev_b32 v62, 7, v2")
A("s_lshl_b32 s13, s6, 10")
A(f"s_add_u32 s13, s13, 0x{WS_MB:x}")
A("s_mov_b64 exec, 0xff")
A(f"buffer_store_dword v61, v62, {R4(S_WS)}, s13 offen sc1")
A("s_mov_b64 exec, 1")
A("v_mov_b32 v41, 1")
A(f"buffer_atomic_add v41, off, {R4(S_DBG)}, 0 offset:{192 if OPT['cnt2'] else 128} sc0 sc1")
A(f"s_mov_b32 {s_last}, 2")
A("s_mov_b64 exec, -1")
k.label("L_a3")
if not OPT['oracle']:
    poll_mb("go1", 0, OPT['slpG'])
stamp(4)
polln("pollQ", GX, [(vL16, S_WS, s_Qin, 1024 * t) for t in range(2)], sleep=1)
for e in range(4):
    A(f"v_add_f32 v{GX+e}, v{GX+e}, v{GX+4+e}")
A("v_and_b32 v63, 31, v2")
A("v_lshlrev_b32 v63, 3, v63")
for e in range(2):
    A(f"v_permlane32_swap_b32 v{GX+e}, v{GX+e+2}")
for e in range(2):
    A(f"v_add_f32 v{GX+e}, v{GX+e}, v{GX+e+2}")
A(f"v_cvt_pk_bf16_f32 v62, v{GX}, v{GX+1}")
A("v_lshrrev_b32 v36, 5, v2")
A("v_lshl_add_u32 v63, v36, 2, v63")
A(f"ds_write_b32 v63, v62 offset:{L_Q}")
A("v_mov_b32 v60, 0")
A("v_mov_b32 v61, 1")
A("s_waitcnt lgkmcnt(0)")
A(f"ds_write_b32 v60, v61 offset:{L_CNT+8}")
A(f"s_cmp_lg_u32 {s_last}, 2")
A("s_cbranch_scc1 L_a5")
A("v_readfirstlane_b32 s12, v41")
A("s_nop 1")
A("s_cmp_lg_u32 s12, 31")
A("s_cbranch_scc1 L_a5")
A("v_lshlrev_b32 v62, 7, v2")
for t in range(4):
    A(f"s_mov_b32 s13, 0x{WS_MB + t*8192:x}")
    A(f"buffer_store_dword v61, v62, {R4(S_WS)}, s13 offen offset:4 sc1")
k.label("L_a5")
A("s_setprio 0")
stamp(5)
if OPT['noaux'] == 1:
    A("s_barrier")
    stamp(11)
    A("s_branch L_fin")
for t in range(2):
    A(f"buffer_load_dwordx4 v[{XF+4*t}:{XF+4*t+3}], {vXF}, {R4(S_X)}, {s_XF} offen offset:{64*t}")
if not OPT['tilesS']:
    for i in range(8):
        dma(S_WG, vTF, s_TF, i * 8 * 7168, 32768 + i * 1024)
    for i in range(8):
        dma(S_WU, vTF, s_TF, i * 8 * 7168, 65536 + i * 1024)
for i in range(8):
    dma(S_WO, vTO, s_TO, i * 8 * 2048, i * 1024)
if not OPT['tilesS']:
    for i in range(8):
        dma(S_WD, vTO, s_TO, i * 8 * 2048, 98304 + i * 1024)
srd(S_WQ, 34, 2048)
A("s_lshl_b32 s13, s7, 11")
A("v_lshlrev_b32 v5, 5, v2")
A(f"buffer_load_dwordx4 v[{GX}:{GX+3}], v5, {R4(S_X)}, s13 offen")
A(f"buffer_load_dwordx4 v[{GX+4}:{GX+7}], v5, {R4(S_X)}, s13 offen offset:16")
A(f"buffer_load_dwordx4 v[{GX+8}:{GX+11}], v5, {R4(S_WQ)}, 0 offen")
A(f"buffer_load_dwordx4 v[{GX+12}:{GX+15}], v5, {R4(S_WQ)}, 0 offen offset:16")
if OPT['tilesS']:
    A(f"s_lshl_b32 s12, {sW}, 2")
    A("v_mov_b32 v62, s12")
    k.label("L_tw")
    A(f"ds_read_b32 v63, v62 offset:{L_CNT+16}")
    A("s_waitcnt lgkmcnt(0)")
    A("v_readfirstlane_b32 s12, v63")
    A("s_nop 1")
    A("s_cmp_lg_u32 s12, 0")
    A("s_cbranch_scc1 L_tw_done")
    A("s_sleep 4")
    A("s_branch L_tw")
    k.label("L_tw_done")
    A("s_waitcnt vmcnt(12)")
else:
    A("s_waitcnt vmcnt(20)")
tr_reads(WF, vT01, 32768)
tr_reads(WF + 32, vT23, 0)
A("s_waitcnt lgkmcnt(0)")
tile_gemm(WF, XF, SEL)
put_partial(vW01, 32768)
tile_gemm(WF + 32, XF, SEL)
put_partial(vW23, 0)
A("s_mov_b32 s84, 0")
arrive(L_CNT + 4, "L_a6")
sum4(WF, vR01, 32768, 8192)
sum4(WF + 32, vR23, 0, 8192)
A("s_waitcnt lgkmcnt(0)")
sum4b(WF)
sum4b(WF + 32)
for t, r in enumerate((WF, WF + 4, WF + 32, WF + 36)):
    A(f"buffer_store_dwordx4 v[{r}:{r+3}], {vL16}, {R4(S_WS1)}, s28 offen offset:{1024*t} sc1")
A("s_mov_b32 s84, 1")
k.label("L_a6")
stamp(3)
A("s_waitcnt vmcnt(0)")
stamp(6)
tr_reads(TF0, vT01, 0)
tr_reads(TF1, vT23, 32768)
srd(S_WU, 36, 16384)
A(f"v_mov_b32 v{VG}, 0")
for r in range(8):
    A(f"v_lshlrev_b32 v60, 16, v{GX+r}")
    A(f"v_and_b32 v61, s8, v{GX+r}")
    A(f"v_lshlrev_b32 v62, 16, v{GX+8+r}")
    A(f"v_and_b32 v63, s8, v{GX+8+r}")
    A("v_mul_f32 v60, v60, v62")
    A("v_mul_f32 v61, v61, v63")
    A("v_cvt_pk_bf16_f32 v60, v60, v61")
    A("v_lshlrev_b32 v61, 16, v60")
    A("v_and_b32 v60, s8, v60")
    A(f"v_add_f32 v{VG}, v{VG}, v61")
    A(f"v_add_f32 v{VG}, v{VG}, v60")
for rot in (8, 4, 2, 1):
    A("s_nop 1")
    A(f"v_add_f32_dpp v{VG}, v{VG}, v{VG} row_ror:{rot} row_mask:0xf bank_mask:0xf")
A(f"v_mov_b32 v60, v{VG}")
A("s_nop 1")
A(f"v_permlane32_swap_b32 v{VG}, v60")
A(f"v_add_f32 v{VG}, v{VG}, v60")
A(f"v_mov_b32 v60, v{VG}")
A("s_nop 1")
A(f"v_permlane16_swap_b32 v{VG}, v60")
A(f"v_add_f32 v{VG}, v{VG}, v60")
round_bf16(VG, 60)
A(f"s_mov_b32 s10, {f32(-LOG2E)}")
A(f"v_mul_f32 v{VG}, s10, v{VG}")
A(f"v_exp_f32 v{VG}, v{VG}")
A("s_nop 0")
A(f"v_add_f32 v{VG}, 1.0, v{VG}")
A(f"v_rcp_f32 v{VG}, v{VG}")
A("s_nop 0")
round_bf16(VG, 60)
A(f"v_sub_f32 v60, 1.0, v{VG}")
round_bf16(60, 61)
A(f"v_cndmask_b32 v{VG}, v{VG}, v60, {sHI}")
for _ in range(OPT['preM']):
    A("s_sleep 127")
poll_mb("go2", 1, OPT['slpM'])
stamp(8)
A("s_cmp_eq_u32 s84, 0")
A("s_cbranch_scc1 L_a6b")
G0, U0, T0 = WF, WF + 32, WF + 8
for p in range(3):
    A(f"s_add_u32 s13, {s_GU}, {4096*p}")
    polln(f"pollG{p}", GX, [(vL16, S_WS0, "s13", 1024 * t) for t in range(4)], sleep=OPT['slpM'])
    for e in range(8):
        A(f"v_add_f32 v{G0+e}, v{G0+e}, v{GX+e}")
        A(f"v_add_f32 v{U0+e}, v{U0+e}, v{GX+8+e}")
for t in range(4):
    A(f"v_cvt_pk_bf16_f32 v{T0+t}, v{G0+2*t}, v{G0+2*t+1}")
    A(f"v_cvt_pk_bf16_f32 v{T0+4+t}, v{U0+2*t}, v{U0+2*t+1}")
for t in range(4):
    A(f"v_lshlrev_b32 v{G0+2*t}, 16, v{T0+t}")
    A(f"v_and_b32 v{G0+2*t+1}, s8, v{T0+t}")
    A(f"v_lshlrev_b32 v{U0+2*t}, 16, v{T0+4+t}")
    A(f"v_and_b32 v{U0+2*t+1}, s8, v{T0+4+t}")
A(f"s_mov_b32 s10, {f32(0.044715)}")
A(f"s_mov_b32 s11, {f32(-2.0*0.7978845608028654*LOG2E)}")
for e in range(8):
    A(f"v_mul_f32 v{T0+e}, v{G0+e}, v{G0+e}")
for e in range(8):
    A(f"v_fma_f32 v{T0+e}, v{T0+e}, s10, 1.0")
for e in range(8):
    A(f"v_mul_f32 v{T0+e}, v{T0+e}, v{G0+e}")
for e in range(8):
    A(f"v_mul_f32 v{T0+e}, s11, v{T0+e}")
for e in range(8):
    A(f"v_exp_f32 v{T0+e}, v{T0+e}")
for e in range(8):
    A(f"v_add_f32 v{T0+e}, 1.0, v{T0+e}")
for e in range(8):
    A(f"v_rcp_f32 v{T0+e}, v{T0+e}")
for e in range(8):
    A(f"v_mul_f32 v{G0+e}, v{G0+e}, v{T0+e}")
for t in range(4):
    A(f"v_cvt_pk_bf16_f32 v{T0+t}, v{G0+2*t}, v{G0+2*t+1}")
for t in range(4):
    A(f"v_lshlrev_b32 v{G0+2*t}, 16, v{T0+t}")
    A(f"v_and_b32 v{G0+2*t+1}, s8, v{T0+t}")
for e in range(8):
    A(f"v_mul_f32 v{G0+e}, v{G0+e}, v{U0+e}")
for t in range(4):
    A(f"v_cvt_pk_bf16_f32 v{PZ+t}, v{G0+2*t}, v{G0+2*t+1}")
for t in range(4):
    A(f"v_min_u32 v{PZ+t}, -2, v{PZ+t}")
A(f"buffer_store_dwordx2 v[{PZ}:{PZ+1}], {vHst}, {R4(S_WS0)}, {s_Hst} offen sc1")
A(f"buffer_store_dwordx2 v[{PZ+2}:{PZ+3}], {vHst}, {R4(S_WS0)}, {s_Hst} offen offset:64 sc1")
k.label("L_a6b")
polln("pollH", GX, [(vHg, S_WSF, s_Hin, 64 * t) for t in range(2)], sleep=OPT['slpM'])
A("s_waitcnt lgkmcnt(0)")
A("s_nop 2")
tile_gemm(TF1, GX, SEL)
put_partial(vW23, 32768)
stamp(9)
A(f"s_mov_b32 s10, {f32(LOG2E)}")
A(f"s_setprio {OPT['prio']}")
A("s_waitcnt lgkmcnt(0)")
A("s_barrier")
stamp(11)
A(f"s_cmp_lg_u32 {sW}, 0")
A("s_cbranch_scc1 L_gatherO")
CA = 96
A(f"ds_read_b64 v[60:61], {vML} offset:{L_ML}")
for s_ in range(16):
    A(f"ds_read_b64 v[{CA+2*s_}:{CA+2*s_+1}], {vAcc} offset:{L_ACC + s_*512}")
A("s_waitcnt lgkmcnt(15)")
A("v_max_f32_dpp v62, v60, v60 row_ror:8 row_mask:0xf bank_mask:0xf")
for rot in (4, 2, 1):
    A("s_nop 1")
    A(f"v_max_f32_dpp v62, v62, v62 row_ror:{rot} row_mask:0xf bank_mask:0xf")
A("v_sub_f32 v60, v60, v62")
A("v_mul_f32 v60, s10, v60")
A("v_exp_f32 v60, v60")
A("s_nop 0")
A("v_mul_f32 v61, v61, v60")
for rot in (8, 4, 2, 1):
    A("s_nop 1")
    A(f"v_add_f32_dpp v61, v61, v61 row_ror:{rot} row_mask:0xf bank_mask:0xf")
A("v_rcp_f32 v61, v61")
A("s_nop 0")
A("v_mul_f32 v60, v60, v61")
A("s_waitcnt lgkmcnt(0)")
A("s_nop 0")
A(f"v_mul_f32_dpp v62, v60, v{CA} row_newbcast:0 row_mask:0xf bank_mask:0xf")
A(f"v_mul_f32_dpp v63, v60, v{CA+1} row_newbcast:0 row_mask:0xf bank_mask:0xf")
for s_ in range(1, 16):
    A(f"v_fmac_f32_dpp v62, v60, v{CA+2*s_} row_newbcast:{s_} row_mask:0xf bank_mask:0xf")
    A(f"v_fmac_f32_dpp v63, v60, v{CA+2*s_+1} row_newbcast:{s_} row_mask:0xf bank_mask:0xf")
A("v_cvt_pk_bf16_f32 v62, v62, v63")
A("v_min_u32 v62, -2, v62")
A(f"buffer_store_dword v62, {vL4}, {R4(S_WS)}, {s_Ost} offen sc1")
k.label("L_gatherO")
stamp(12)
A(f"s_cmp_lg_u32 {sW}, 3")
A("s_cbranch_scc1 L_a6c")
sum4(WF, vR23, 32768, 8192)
A("s_waitcnt lgkmcnt(0)")
sum4b(WF)
A(f"buffer_store_dwordx4 v[{WF}:{WF+3}], {vPst}, {R4(S_WS)}, {s_PAst} offen offset:128 sc1")
A(f"buffer_store_dwordx4 v[{WF+4}:{WF+7}], {vPst}, {R4(S_WS)}, s30 offen offset:128 sc1")
k.label("L_a6c")
polln("pollO", GX, [(vOg, S_WS, s_Oin, 64 * t) for t in range(2)], sleep=OPT['slpO'])
stamp(13)
A("v_mov_b32 v60, 0")
A("v_mov_b32 v61, 1")
A("s_nop 1")
tile_gemm(TF0, GX, SEL)
put_partial(vW01, 0)
arrive(L_CNT + 12, "L_a7")
sum4(WF, vR01, 0, 8192)
A("s_waitcnt lgkmcnt(0)")
sum4b(WF)
A(f"buffer_store_dwordx4 v[{WF}:{WF+3}], {vPst}, {R4(S_WS)}, {s_PAst} offen sc1")
A(f"buffer_store_dwordx4 v[{WF+4}:{WF+7}], {vPst}, {R4(S_WS)}, s30 offen sc1")
k.label("L_a7")
A(f"s_cmp_lg_u32 {sW}, 0")
A("s_cbranch_scc1 L_fin")
stamp(14)
polln("pollA", GX, [(vL16, S_WS, s_PAin, 1024 * t) for t in range(4)], sleep=OPT['slpA'])
stamp(15)
for e in range(8):
    A(f"v_add_f32 v{GX+e}, v{GX+e}, v{GX+e+8}")
for e in range(4):
    A(f"v_add_f32 v{GX+e}, v{GX+e}, v{GX+e+4}")
A("s_nop 0")
for e in range(2):
    A(f"v_permlane32_swap_b32 v{GX+e}, v{GX+e+2}")
for e in range(2):
    A(f"v_add_f32 v{GX+e}, v{GX+e}, v{GX+e+2}")
A("s_nop 1")
A(f"v_permlane16_swap_b32 v{GX}, v{GX+1}")
A(f"v_add_f32 v{VOUT}, v{GX}, v{GX+1}")
round_bf16(VOUT, 60)
A(f"v_mul_f32 v{VOUT}, v{VOUT}, v{VG}")
round_bf16(VOUT, 60)
A("s_nop 1")
A(f"v_add_f32_dpp v{VOUT}, v{VOUT}, v{VOUT} row_ror:8 row_mask:0xf bank_mask:0xf")
A(f"v_cvt_pk_bf16_f32 v{VOUT}, v{VOUT}, v{VOUT}")
A(f"buffer_store_short v{VOUT}, {vOut}, {R4(S_WU)}, s15 offen")
stamp(16)
k.label("L_fin")
stamp_dump()
k.label("L_end")
A("s_endpgm")

body = "\n".join(k.L)
ref = open('cdna_kernels/%s.s.ref' % NAME).read().split('\n')
head = [l for l in ref if l.startswith(';') and '@launch' not in l]
out = "\n".join(head) + "\n"
out += f"; @launch grid=(256,1,1) block=(512,1,1) lds={LDS_BYTES}\n"
out += f""".amdgcn_target "amdgcn-amd-amdhsa--gfx950"
.text
.globl {NAME}_kernel
.p2align 8
.type {NAME}_kernel,@function
{NAME}_kernel:
{body}
.section .rodata,"a"
.p2align 6
.amdhsa_kernel {NAME}_kernel
  .amdhsa_next_free_vgpr 256
  .amdhsa_next_free_sgpr 102
  .amdhsa_accum_offset 256
  .amdhsa_group_segment_fixed_size 0
  .amdhsa_kernarg_size 104
  .amdhsa_user_sgpr_count 2
  .amdhsa_user_sgpr_kernarg_segment_ptr 1
  .amdhsa_system_sgpr_workgroup_id_x 1
  .amdhsa_float_denorm_mode_32 3
.end_amdhsa_kernel
"""
open(sys.argv[1], 'w').write(out)
```

```python
import sys, struct

NAME = "gated_mix__mha_block_cached__geglu_ffn__decode"
OPT = dict(stamps=0, nokv=0, slpO=0, slpA=0, slpG=1, prio=3, npre=1, D=8, nocomp=0, noaux=0, empty=0, bar0late=1, D2=0, NE=0, DE=16, kpol=1, vpol=1, wpol=1, trace=0, slpM=127, preM=0, bar0early=0, tilesS=0, cnt2=0, oracle=0, vopt=1, DL=5, DH=10, TA=930, TT=226, dpoll=0, DM=0, T1=120)
for a in sys.argv[2:]:
    kk_, v_ = a.split('=')
    assert kk_ in OPT, kk_
    OPT[kk_] = int(v_)

POL = {0: '', 1: ' nt', 2: ' sc1', 3: ' sc1 nt', 4: ' sc0 sc1', 5: ' sc0 sc1 nt', 6: ' sc0', 7: ' sc0 nt'}
def f32(x):
    return "0x%08x" % struct.unpack('<I', struct.pack('<f', x))[0]

WS_H = 0x0
WS_O = 0x10000
WS_MB = 0x20000
WS_Q = 0x80000
WS_PA = 0x100000
WS_GU = 0x200000
WS_SIZE = 0x2b0000
WS_STAMP = 0x800000
L_Q = 0
L_CNT = 256
L_ML = 512
L_ACC = 4096
L_T = 12288
LDS_BYTES = L_T + 4 * 32768

HUGE = 0x7ffffff0
LOG2E = 1.4426950408889634
SCALE = 128 ** -0.5
SPIN_MAX = 50000

class K:
    def __init__(self):
        self.L = []
    def __call__(self, s):
        self.L.append("    " + s)
    def label(self, s):
        self.L.append(s + ":")
k = K()
A = k

def srd(d, base, nbytes, addlo=None, addhi=None):
    if addlo is None:
        A(f"s_mov_b32 s{d}, s{base}")
        A(f"s_mov_b32 s{d+1}, s{base+1}")
    else:
        A(f"s_add_u32 s{d}, s{base}, {addlo}")
        A(f"s_addc_u32 s{d+1}, s{base+1}, {addhi}")
    A(f"s_mov_b32 s{d+2}, {nbytes}" if isinstance(nbytes, str) else f"s_mov_b32 s{d+2}, 0x{nbytes:x}")
    A(f"s_mov_b32 s{d+3}, 0x00020000")

def stamp_setup():
    if not OPT['stamps']:
        return
    srd(92, 40, WS_STAMP + 0x100000)
    A("s_lshl_b32 s98, s2, 3")
    A("s_add_u32 s98, s98, s3")
    A("s_lshl_b32 s98, s98, 7")
    A(f"s_add_u32 s98, s98, 0x{WS_STAMP:x}")
    A("v_writelane_b32 v255, s100, 31")

def stamp(idx):
    if not OPT['stamps']:
        return
    A("s_memrealtime s[96:97]")
    A("s_waitcnt lgkmcnt(0)")
    A(f"v_writelane_b32 v255, s96, {idx}")

def trace():
    if not OPT['trace']:
        return
    A("s_memrealtime s[96:97]")
    A("s_waitcnt lgkmcnt(0)")
    A("s_mov_b32 m0, s15")
    A("v_writelane_b32 v253, s96, m0")

def stamp_dump():
    if not OPT['stamps']:
        return
    A("v_lshlrev_b32 v254, 2, v2")
    A("v_cmp_gt_u32 vcc, 32, v2")
    A("s_and_saveexec_b64 s[96:97], vcc")
    A("buffer_store_dword v255, v254, s[92:95], s98 offen")
    if OPT['trace']:
        A("s_add_u32 s98, s98, 0x80000")
        A("buffer_store_dword v253, v254, s[92:95], s98 offen")
    A("s_mov_b64 exec, s[96:97]")

if OPT['stamps']:
    A("s_memrealtime s[100:101]")
A("s_cmp_ge_u32 s2, %d" % (0 if OPT['empty'] else 256))
A("s_cbranch_scc1 L_end")
A("s_load_dwordx16 s[16:31], s[0:1], 0")
A("s_load_dwordx8 s[32:39], s[0:1], 64")
A("s_load_dwordx2 s[40:41], s[0:1], 96")
A("v_lshrrev_b32 v1, 6, v0")
A("v_and_b32 v2, 63, v0")
A("v_readfirstlane_b32 s3, v1")
A("s_and_b32 s10, s2, 7")
A("s_lshr_b32 s11, s2, 3")
A("s_and_b32 s6, s11, 3")
A("s_lshl_b32 s7, s10, 2")
A("s_add_u32 s6, s6, s7")
A("s_lshr_b32 s7, s11, 2")
A("s_mul_i32 s15, s10, 7")
A("s_add_u32 s15, s15, s7")
A("s_and_b32 s99, s11, 3")
A("s_mov_b32 s8, 0xffff0000")
A("v_and_b32 v3, 15, v2")
A("v_lshrrev_b32 v4, 4, v2")
if OPT['stamps']:
    A("v_mov_b32 v255, 0")
A("s_cmp_ge_u32 s3, 4")
A("s_cbranch_scc1 L_aux")

NB = 8
NPRE = OPT['npre']
NBLK = 1024 // (4 * NB)
RK = 60
RV = RK + 4 * NB
XB = RV + 4 * NB
VQ = 8
VS = 16
VP = 24
VACC = 32
VM, VL, VMN, VAL = 40, 41, 42, 43
VT = 44
STEP = 4 * NB * 1024
if OPT['DL']:
    A("s_memrealtime s[82:83]")
A("s_lshl_b32 s9, s7, 5")
A("s_add_u32 s9, s9, s6")
A("s_lshl_b32 s10, s9, 20")
A("v_lshlrev_b32 v5, 4, v2")
A(f"s_mul_i32 s12, s3, {NB*1024}")
A("v_add_u32 v5, s12, v5")
NS = NB // 4
DD = OPT['D']
DCUR = [DD]
FIRSTHAVE = [16]
for i in range(NS):
    A(f"s_mov_b32 s{52+i}, {4096*i}")
    A(f"s_mov_b32 s{56+i}, {4096*i + STEP}")
A("v_mov_b32 v6, 0")
A("v_mov_b32 v7, 0")
A(f"ds_write_b64 v6, v[6:7] offset:{L_CNT}")
A(f"ds_write_b64 v6, v[6:7] offset:{L_CNT+8}")
A(f"ds_write_b64 v6, v[6:7] offset:{L_CNT+16}")
A(f"ds_write_b64 v6, v[6:7] offset:{L_CNT+24}")
A("s_waitcnt lgkmcnt(0)")
srd(44, 18, 0 if OPT['nokv'] else 0x100000, "s10", "0")
srd(48, 20, 0 if OPT['nokv'] else 0x100000, "s10", "0")
stamp_setup()
A("s_barrier")

def ldk(base, i, so=52):
    A(f"buffer_load_dwordx4 v[{base+4*i}:{base+4*i+3}], v5, s[44:47], s{so+i//4} offen offset:{(i%4)*1024}{POL[OPT['kpol']]}")
def ldv(base, i, so=52):
    A(f"buffer_load_dwordx4 v[{base+4*i}:{base+4*i+3}], v5, s[48:51], s{so+i//4} offen offset:{(i%4)*1024}{POL[OPT['vpol']]}")
def adv():
    for i in range(NS):
        A(f"s_add_u32 s{52+i}, s{52+i}, 0x{STEP:x}")
        A(f"s_add_u32 s{56+i}, s{56+i}, 0x{STEP:x}")
def issue_after(sq, first=False):
    t = sq + DCUR[0]
    if first and t < FIRSTHAVE[0]:
        return False
    so = 52 if t < 2 * NB else 56
    t %= 2 * NB
    if t < NB:
        ldk(RK, t, so)
    else:
        ldv(RV, t - NB, so)
    return True

DPPM = "row_mask:0xf bank_mask:"
def kphase(base, waits, issue):
    for i in range(NB):
        A(f"s_waitcnt vmcnt({waits(i)})")
        A(f"v_dot2_f32_bf16 v{VS+i}, v{base+4*i}, v{VQ}, 0")
        for r in range(1, 4):
            A(f"v_dot2_f32_bf16 v{VS+i}, v{base+4*i+r}, v{VQ+r}, v{VS+i}")
        if not (issue and issue_after(i, issue == 'first')):
            A("s_nop 0")
        if i >= 3 and i % 2 == 1:
            p = i - 3
            A(f"v_add_f32_dpp v{VS+p}, v{VS+p}, v{VS+p} row_ror:8 {DPPM}0x3")
            A(f"v_add_f32_dpp v{VS+p}, v{VS+p+1}, v{VS+p+1} row_ror:8 {DPPM}0xc")
    A(f"v_add_f32_dpp v{VS}, v{VS}, v{VS} row_ror:12 {DPPM}0x5")
    A(f"v_add_f32_dpp v{VS}, v{VS+2}, v{VS+2} row_ror:4 {DPPM}0xa")
    A(f"v_add_f32_dpp v{VS+6}, v{VS+6}, v{VS+6} row_ror:8 {DPPM}0x3")
    A(f"v_add_f32_dpp v{VS+6}, v{VS+7}, v{VS+7} row_ror:8 {DPPM}0xc")
    A(f"v_add_f32_dpp v{VS+4}, v{VS+4}, v{VS+4} row_ror:12 {DPPM}0x5")
    A(f"v_add_f32_dpp v{VS}, v{VS}, v{VS} quad_perm:[1,0,3,2] {DPPM}0xf")
    A(f"v_add_f32_dpp v{VS+4}, v{VS+6}, v{VS+6} row_ror:4 {DPPM}0xa")
    A("s_nop 0")
    A(f"v_add_f32_dpp v{VS}, v{VS}, v{VS} quad_perm:[2,3,0,1] {DPPM}0xf")
    A(f"v_add_f32_dpp v{VS+4}, v{VS+4}, v{VS+4} quad_perm:[1,0,3,2] {DPPM}0xf")
    A("s_nop 1")
    A(f"v_add_f32_dpp v{VS+4}, v{VS+4}, v{VS+4} quad_perm:[2,3,0,1] {DPPM}0xf")

def softmax():
    W0, W1 = VS, VS + 4
    A(f"v_cvt_pk_bf16_f32 v{VT}, v{W0}, v{W1}")
    A(f"v_lshlrev_b32 v{W0}, 16, v{VT}")
    A(f"v_and_b32 v{W1}, s8, v{VT}")
    A(f"v_mul_f32 v{W0}, s13, v{W0}")
    A(f"v_mul_f32 v{W1}, s13, v{W1}")
    A(f"v_cvt_pk_bf16_f32 v{VT}, v{W0}, v{W1}")
    A(f"v_lshlrev_b32 v{W0}, 16, v{VT}")
    A(f"v_and_b32 v{W1}, s8, v{VT}")
    A(f"v_max3_f32 v{VMN}, v{W0}, v{W1}, v{VM}")
    A("s_nop 1")
    A(f"v_max_f32_dpp v{VMN}, v{VMN}, v{VMN} row_ror:4 {DPPM}0xf")
    A("s_nop 1")
    A(f"v_max_f32_dpp v{VMN}, v{VMN}, v{VMN} row_ror:8 {DPPM}0xf")
    A(f"v_sub_f32 v{VAL}, v{VM}, v{VMN}")
    A(f"v_sub_f32 v{W0}, v{W0}, v{VMN}")
    A(f"v_sub_f32 v{W1}, v{W1}, v{VMN}")
    A(f"v_mul_f32 v{VAL}, s14, v{VAL}")
    A(f"v_mul_f32 v{W0}, s14, v{W0}")
    A(f"v_mul_f32 v{W1}, s14, v{W1}")
    A(f"v_exp_f32 v{W0}, v{W0}")
    A(f"v_exp_f32 v{W1}, v{W1}")
    A(f"v_exp_f32 v{VAL}, v{VAL}")
    A(f"v_mov_b32 v{VM}, v{VMN}")
    for i in range(NB):
        r, q = i >> 2, ((i & 1) << 1) | ((i >> 1) & 1)
        A(f"v_mov_b32_dpp v{VP+i}, v{VS+4*r} row_newbcast:{4*q} {DPPM}0xf")
    A(f"v_fma_f32 v{VL}, v{VL}, v{VAL}, v{W0}")
    for e in range(4):
        A(f"v_pk_mul_f32 v[{VACC+2*e}:{VACC+2*e+1}], v[{VACC+2*e}:{VACC+2*e+1}], v[{VAL-1}:{VAL}] op_sel:[0,1] op_sel_hi:[1,1]")
    A(f"v_add_f32 v{VL}, v{VL}, v{W1}")

def vphase(base, waits, issue):
    for i in range(NB):
        A(f"s_waitcnt vmcnt({waits(i)})")
        tb = VT + 8 * (i & 1)
        for r in range(4):
            A(f"v_lshlrev_b32 v{tb+2*r}, 16, v{base+4*i+r}")
            A(f"v_and_b32 v{tb+2*r+1}, s8, v{base+4*i+r}")
        if issue:
            issue_after(NB + i, issue == 'first')
        pp = VP + (i & ~1)
        sel = "op_sel:[0,1,0] op_sel_hi:[1,1,1]" if i & 1 else "op_sel_hi:[1,0,1]"
        for e in range(4):
            A(f"v_pk_fma_f32 v[{VACC+2*e}:{VACC+2*e+1}], v[{tb+2*e}:{tb+2*e+1}], v[{pp}:{pp+1}], v[{VACC+2*e}:{VACC+2*e+1}] {sel}")

stamp(0)
if OPT['tilesS']:
    A("s_cmp_lt_u32 s7, 7")
    A("s_cselect_b32 s13, 0x700000, 0")
    srd(64, 28, "s13")
    srd(68, 30, "s13")
    srd(72, 32, "s13")
    A("v_lshrrev_b32 v10, 3, v2")
    A("v_and_b32 v11, 7, v2")
    A("v_lshlrev_b32 v11, 4, v11")
    A("v_mul_u32_u24 v12, 7168, v10")
    A("v_add_u32 v12, v12, v11")
    A("v_lshl_add_u32 v13, v10, 11, v11")
    A("s_lshl_b32 s12, s99, 2")
    A("s_add_u32 s12, s12, s3")
    A(f"s_mul_i32 s76, s12, {64 * 7168}")
    A("s_lshl_b32 s12, s15, 7")
    A("s_add_u32 s76, s76, s12")
    A("s_lshl_b32 s12, s7, 1")
    A("s_lshr_b32 s13, s6, 4")
    A("s_add_u32 s12, s12, s13")
    A("s_lshl_b32 s12, s12, 2")
    A("s_add_u32 s12, s12, s3")
    A("s_lshl_b32 s77, s12, 17")
    A("s_and_b32 s13, s6, 15")
    A("s_lshl_b32 s13, s13, 7")
    A("s_add_u32 s77, s77, s13")
    A("s_lshl_b32 s78, s3, 13")
    A(f"s_add_u32 s78, s78, {L_T}")
    for sr, v, so, pitch, reg in ((64, "v12", "s76", 7168, 1), (68, "v12", "s76", 7168, 2), (72, "v13", "s77", 2048, 3)):
        for i in range(8):
            A(f"s_add_u32 m0, s78, {reg*32768 + i*1024}")
            A(f"s_add_u32 s11, {so}, {i*8*pitch}")
            A(f"buffer_load_dwordx4 {v}, s[{sr}:{sr+3}], s11 offen{POL[OPT['wpol']]} lds")
for p in range(NPRE + 1):
    kb = XB + p * 8 * NB if p < NPRE else RK
    vb = kb + 4 * NB
    for i in range(NB):
        ldk(kb, i)
    for i in range(NB):
        ldv(vb, i)
    if p < NPRE:
        adv()
for e in range(8):
    A(f"v_mov_b32 v{VACC+e}, 0")
A(f"v_mov_b32 v{VM}, 0xff61b1e6")
A(f"v_mov_b32 v{VL}, 0")
A(f"s_mov_b32 s13, {f32(SCALE)}")
A(f"s_mov_b32 s14, {f32(LOG2E)}")
A(f"s_mov_b32 s15, {NPRE}")
A("v_lshlrev_b32 v6, 4, v3")
stamp(1)
A("v_mov_b32 v7, 0")
if OPT['tilesS']:
    A(f"s_waitcnt vmcnt({(NPRE + 1) * 2 * NB})")
    A("s_lshl_b32 s12, s3, 2")
    A("v_mov_b32 v12, s12")
    A("v_mov_b32 v13, 1")
    A(f"ds_write_b32 v12, v13 offset:{L_CNT+16}")
k.label("L_qwait")
A(f"ds_read_b32 v12, v7 offset:{L_CNT+8}")
A("s_waitcnt lgkmcnt(0)")
A("v_readfirstlane_b32 s12, v12")
A("s_nop 1")
A("s_cmp_lg_u32 s12, 0")
A("s_cbranch_scc1 L_qdone")
A("s_sleep 1")
A("s_branch L_qwait")
k.label("L_qdone")
A(f"ds_read_b128 v[{VQ}:{VQ+3}], v6 offset:{L_Q}")
A("v_lshlrev_b32 v6, 5, v3")
A("s_waitcnt lgkmcnt(0)")
stamp(2)
tot = (NPRE + 1) * 2 * NB
for p in range(NPRE):
    kb = XB + p * 8 * NB
    kphase(kb, lambda i: tot - 1 - (2 * NB * p + i), False)
    softmax()
    vphase(kb + 4 * NB, lambda i: tot - 1 - (2 * NB * p + NB + i), False)
    if OPT['trace']:
        A("s_memrealtime s[96:97]")
        A("s_waitcnt lgkmcnt(0)")
        A(f"v_writelane_b32 v253, s96, {p}")
def stream_loop(D, tag):
    DCUR[0] = D
    first_wait = lambda sq: 2 * NB - 1 - sq + max(0, sq - (2 * NB - D))
    kphase(RK, first_wait, 'first')
    if D >= NB:
        A(f"s_branch L_mid{tag}")
    else:
        softmax()
        vphase(RV, lambda i: first_wait(NB + i), 'first')
        adv()
        trace()
        A("s_add_u32 s15, s15, 1")
    A(".p2align 6")
    k.label(f"L_loop{tag}")
    kphase(RK, lambda i: D - 1, True)
    k.label(f"L_mid{tag}")
    softmax()
    vphase(RV, lambda i: D - 1, True)
    adv()
    trace()
    A("s_add_u32 s15, s15, 1")
    A(f"s_cmp_lt_u32 s15, {NBLK - OPT['NE']}")
    A(f"s_cbranch_scc1 L_loop{tag}")
    if OPT['NE']:
        DE = OPT['DE']
        for t in range(D, DE):
            if t < NB:
                ldk(RK, t, 52)
            else:
                ldv(RV, t - NB, 52)
        if tag == "b":
            A("s_branch L_loopE")
            return
        DCUR[0] = DE
        k.label("L_loopE")
        kphase(RK, lambda i: DE - 1, True)
        softmax()
        vphase(RV, lambda i: DE - 1, True)
        adv()
        trace()
        A("s_add_u32 s15, s15, 1")
        A(f"s_cmp_lt_u32 s15, {NBLK}")
        A("s_cbranch_scc1 L_loopE")
def paced_loops(levels, thresholds):
    n = len(levels)
    def target(frm, to):
        return f"L_s{to}" if frm == to else f"L_t{frm}_{to}"
    def decide(cur):
        adv()
        trace()
        A("s_add_u32 s15, s15, 1")
        A(f"s_cmp_ge_u32 s15, {NBLK}")
        A("s_cbranch_scc1 L_sdone")
        A("s_waitcnt lgkmcnt(0)")
        A("s_sub_u32 s12, s80, s62")
        A(f"s_add_u32 s62, s62, {OPT['TT']}")
        for i in range(n - 1):
            A(f"s_cmp_lt_i32 s12, {thresholds[i]}")
            A(f"s_cbranch_scc1 {target(cur, i)}")
        A(f"s_branch {target(cur, n - 1)}")
    def body(D, waitsK, waitsV, mode):
        DCUR[0] = D
        kphase(RK, waitsK, mode)
        softmax()
        A("s_memrealtime s[80:81]")
        vphase(RV, waitsV, mode)
    fw = lambda D, have: (lambda sq: have - 1 - sq + max(0, sq - (have - D)))
    A(f"s_add_u32 s62, s82, {OPT['TA'] + OPT['TT'] * NPRE}")
    top = n - 1
    FIRSTHAVE[0] = 2 * NB
    body(levels[top], fw(levels[top], 2 * NB), lambda i: fw(levels[top], 2 * NB)(NB + i), 'first')
    decide(top)
    for to in range(n):
        D = levels[to]
        for frm in range(to):
            k.label(f"L_t{frm}_{to}")
            for t in range(levels[frm], levels[frm + 1]):
                if t < NB:
                    ldk(RK, t, 52)
                else:
                    ldv(RV, t - NB, 52)
        k.label(f"L_s{to}")
        body(D, lambda i: D - 1, lambda i: D - 1, True)
        decide(to)
        for frm in range(to + 1, n):
            k.label(f"L_t{frm}_{to}")
            FIRSTHAVE[0] = levels[frm]
            body(D, fw(D, levels[frm]), lambda i: fw(D, levels[frm])(NB + i), 'first')
            decide(to)
if OPT['DL']:
    if OPT['DM']:
        paced_loops([OPT['DL'], OPT['DM'], OPT['DH']], [0, OPT['T1']])
    else:
        paced_loops([OPT['DL'], OPT['DH']], [0])
else:
    if OPT['D2']:
        A("s_getreg_b32 s12, hwreg(HW_REG_XCC_ID)")
        A("s_and_b32 s12, s12, 1")
        A("s_cmp_eq_u32 s12, 0")
        A("s_cbranch_scc1 L_even")
        stream_loop(OPT['D2'], "b")
        A("s_branch L_sdone")
        k.label("L_even")
    stream_loop(DD, "a")
k.label("L_sdone")
A(f"v_add_f32_dpp v{VL}, v{VL}, v{VL} row_ror:4 {DPPM}0xf")
A("s_lshl_b32 s12, s3, 2")
A("v_add_u32 v7, s12, v4")
A("v_lshlrev_b32 v9, 9, v7")
A("v_add_u32 v9, v9, v6")
A(f"v_add_f32_dpp v{VL}, v{VL}, v{VL} row_ror:8 {DPPM}0xf")
A(f"ds_write_b128 v9, v[{VACC}:{VACC+3}] offset:{L_ACC}")
A(f"ds_write_b128 v9, v[{VACC+4}:{VACC+7}] offset:{L_ACC+16}")
A("v_lshlrev_b32 v7, 3, v7")
A("v_cmp_eq_u32 vcc, 0, v3")
A("s_and_saveexec_b64 s[60:61], vcc")
A(f"ds_write_b64 v7, v[{VM}:{VL}] offset:{L_ML}")
A("s_mov_b64 exec, s[60:61]")
A("s_waitcnt lgkmcnt(0)")
A("s_barrier")
stamp(3)
stamp_dump()
A("s_endpgm")


S_WQ, S_X, S_WS, S_WG, S_WU, S_WD, S_WO, S_WSF, S_DBG = 44, 48, 52, 56, 60, 64, 68, 72, 76
S_WS0, S_WS1 = 16, 20
def R4(n): return f"s[{n}:{n+3}]"
sW = "s9"
s_PAst, s_Ost, s_Qst, s_Hin, s_MB, s_Hst = "s80", "s82", "s83", "s85", "s86", "s87"
s_TQ, s_TF, s_TO, s_LDS, s_Oin, s_last, s_PAin, s_Qin = "s88", "s89", "s90", "s91", "s42", "s43", "s14", "s81"
s_GU, s_XF = "s26", "s27"
sHI = "s[4:5]"
vHUGE, vPst, vQst, vL4, vTQ, vTO, vTF, vXF, vOg, vHg = "v1", "v6", "v7", "v8", "v9", "v10", "v12", "v13", "v14", "v15"
vL16, vOut, vML, vAcc, vHst, vT23, vT01, vR01, vR23, vW01, vW23 = "v40", "v42", "v43", "v0", "v47", "v48", "v49", "v50", "v51", "v11", "v45"
XF = 16
SEL = 24
PZ = 32
DD0 = 208
WF = 96
TF0, TF1 = 160, 64
GX = 192
VG, VOUT = 44, 46

k.label("L_aux")
if OPT['prio']:
    A(f"s_setprio {OPT['prio']}")
A(f"s_sub_u32 {sW}, s3, 4")
A(f"v_cmp_lt_u32 {sHI}, 7, v3")
A("v_and_b32 v5, 7, v3")
A("v_lshrrev_b32 v62, 3, v2")
A("v_lshlrev_b32 v63, 4, v5")
A(f"v_lshl_add_u32 {vTQ}, v62, 13, v63")
A(f"v_mul_u32_u24 {vTF}, 7168, v62")
A(f"v_add_u32 {vTF}, {vTF}, v63")
A(f"v_lshl_add_u32 {vTO}, v62, 11, v63")
A(f"v_lshlrev_b32 {vXF}, 11, v5")
A(f"v_lshl_add_u32 {vXF}, v4, 4, {vXF}")
A("s_lshr_b32 s12, s7, 1")
A("s_lshl_b32 s12, s12, 2")
A(f"s_add_u32 s12, s12, {sW}")
A(f"s_lshl_b32 {s_TQ}, s12, 19")
A("s_lshl_b32 s84, s12, 7")
A("s_lshl_b32 s10, s6, 8")
A(f"s_add_u32 {s_TQ}, {s_TQ}, s10")
A("s_and_b32 s12, s7, 1")
A("s_lshl_b32 s12, s12, 7")
A(f"s_add_u32 {s_TQ}, {s_TQ}, s12")
A(f"s_lshl_b32 {s_LDS}, {sW}, 13")
A(f"s_add_u32 {s_LDS}, {s_LDS}, {L_T}")
if OPT['bar0early']:
    A("s_barrier")
A(f"s_cmp_lg_u32 {sW}, 0")
A("s_waitcnt lgkmcnt(0)")
stamp(20)
srd(S_WS, 40, WS_SIZE)
srd(S_X, 16, 0x4000)
srd(S_WQ, 22, 0x800000)
def dma(sr, v, so, goff, loff):
    A(f"s_add_u32 m0, {s_LDS}, {loff}")
    A(f"s_add_u32 s11, {so}, {goff}")
    A(f"buffer_load_dwordx4 {v}, {R4(sr)}, s11 offen{POL[OPT['wpol']]} lds")
def slot_consts():
    A("v_lshrrev_b32 v62, 3, v3")
    A("v_lshlrev_b32 v63, 5, v62")
    A("v_lshl_add_u32 v63, v4, 3, v63")
    A(f"v_mul_u32_u24 {vHst}, 7168, v5")
    A(f"v_add_u32 {vHst}, {vHst}, v63")
    A("v_lshlrev_b32 v62, 6, v62")
    A("v_lshl_add_u32 v62, v4, 4, v62")
    A(f"v_lshl_add_u32 {vPst}, v5, 17, v62")
    A(f"v_lshl_add_u32 {vQst}, v5, 11, v62")
    A(f"v_lshlrev_b32 {vL4}, 2, v2")
    A(f"v_lshlrev_b32 {vL16}, 4, v2")
    A("s_lshl_b32 s12, s6, 3")
    A("s_add_u32 s12, s12, s7")
    A(f"s_lshl_b32 {s_MB}, s12, 7")
    A(f"s_add_u32 {s_MB}, {s_MB}, 0x{WS_MB:x}")
    A(f"s_lshl_b32 {s_Ost}, s12, 8")
    A(f"s_add_u32 {s_Ost}, {s_Ost}, 0x{WS_O:x}")
    A(f"s_lshl_b32 {s_Qin}, s12, 11")
    A(f"s_add_u32 {s_Qin}, {s_Qin}, 0x{WS_Q:x}")
    A(f"s_lshl_b32 {s_Qst}, s6, 14")
    A("s_lshl_b32 s12, s7, 8")
    A(f"s_add_u32 {s_Qst}, {s_Qst}, s12")
    A(f"s_add_u32 {s_Qst}, {s_Qst}, 0x{WS_Q:x}")
    A("s_and_b32 s12, s6, 15")
    A(f"s_lshl_b32 {s_PAst}, s12, 12")
    A("s_lshl_b32 s12, s7, 1")
    A("s_lshr_b32 s13, s6, 4")
    A("s_add_u32 s12, s12, s13")
    A("s_lshl_b32 s12, s12, 8")
    A(f"s_add_u32 {s_PAst}, {s_PAst}, s12")
    A(f"s_add_u32 {s_PAst}, {s_PAst}, 0x{WS_PA:x}")
    A(f"s_lshl_b32 {s_Hst}, s15, 7")
    A(f"s_mul_i32 {s_GU}, s15, 12288")
    A(f"s_add_u32 {s_GU}, {s_GU}, 0x{WS_GU:x}")
    A("s_cmp_lt_u32 s7, 7")
    A("s_cselect_b32 s13, 0x%x, 0" % WS_SIZE)
    srd(S_WSF, 40, "s13")
    A("s_cmp_eq_u32 s99, 0")
    A("s_cselect_b32 s12, s13, 0")
    A("s_cselect_b32 s13, 0, s13")
    srd(S_WS0, 40, "s12")
    srd(S_WS1, 40, "s13")
    A("s_lshl_b32 s12, s99, 12")
    A(f"s_add_u32 s10, {s_GU}, s12")
    A("s_sub_u32 s10, s10, 4096")
    A(f"s_add_u32 s13, {s_PAst}, 0x10000")
A("s_cbranch_scc1 L_a1")
slot_consts()
for r in range(4):
    A(f"v_mov_b32 v{PZ+r}, -1")
A("v_mov_b32 v60, 0")
A("v_mov_b32 v61, 0")
P = f"v[{PZ}:{PZ+3}]"
A(f"buffer_store_dwordx4 {P}, {vQst}, {R4(S_WS)}, {s_Qst} offen sc1")
A(f"buffer_store_dwordx4 {P}, {vQst}, {R4(S_WS)}, {s_Qst} offen offset:128 sc1")
A(f"buffer_store_dwordx2 v[60:61], off, {R4(S_WS)}, {s_MB} sc1")
A(f"buffer_store_dwordx2 v[{PZ}:{PZ+1}], {vHst}, {R4(S_WS0)}, {s_Hst} offen sc1")
A(f"buffer_store_dwordx2 v[{PZ}:{PZ+1}], {vHst}, {R4(S_WS0)}, {s_Hst} offen offset:64 sc1")
for t in range(4):
    A(f"buffer_store_dwordx4 {P}, {vL16}, {R4(S_WS1)}, s10 offen offset:{1024*t} sc1")
for so in (s_PAst, "s13"):
    A(f"buffer_store_dwordx4 {P}, {vPst}, {R4(S_WS)}, {so} offen sc1")
    A(f"buffer_store_dwordx4 {P}, {vPst}, {R4(S_WS)}, {so} offen offset:128 sc1")
A(f"buffer_store_dword v{PZ}, {vL4}, {R4(S_WS)}, {s_Ost} offen sc1")
k.label("L_a1")
stamp(21)
for t in range(2):
    A(f"buffer_load_dwordx4 v[{XF+4*t}:{XF+4*t+3}], {vXF}, {R4(S_X)}, s84 offen offset:{64*t}")
for i in range(8):
    dma(S_WQ, vTQ, s_TQ, i * 8 * 8192, i * 1024)
stamp(22)
if OPT['bar0late']:
    A(f"s_cmp_lg_u32 {sW}, 0")
    A("s_cbranch_scc1 L_a1b")
    A("s_waitcnt vmcnt(10)")
    k.label("L_a1b")
if not OPT['bar0early']:
    A("s_barrier")
stamp_setup()
stamp(0)
srd(S_DBG, 38, 256)
A("v_mov_b32 v60, 0")
A("v_mov_b32 v61, 1")
A(f"s_cmp_lg_u32 {sW}, 0")
A("s_cbranch_scc1 L_a2")
A("s_waitcnt vmcnt(10)")
if OPT['cnt2']:
    A("s_and_b32 s13, s6, 1")
    A("s_lshl_b32 s13, s13, 7")
    A("s_lshr_b32 s12, s6, 1")
    A("s_lshl_b32 s12, s12, 2")
    A("s_add_u32 s13, s13, s12")
else:
    A("s_lshl_b32 s13, s6, 2")
A("v_mov_b32 v41, 1")
A("s_mov_b64 exec, 1")
A(f"buffer_atomic_add v41, off, {R4(S_DBG)}, s13 sc0 sc1")
A("s_mov_b64 exec, -1")
k.label("L_a2")
stamp(1)
slot_consts()
A("v_bfe_u32 v62, v2, 2, 2")
A("v_and_b32 v63, 3, v2")
A(f"v_lshlrev_b32 {vT01}, 10, v4")
A(f"v_lshl_add_u32 {vT01}, v62, 7, {vT01}")
A(f"v_lshl_add_u32 {vT01}, v63, 3, {vT01}")
A(f"v_add_u32 {vT01}, {s_LDS}, {vT01}")
A(f"v_add_u32 {vT23}, 0x10000, {vT01}")
A(f"v_add_u32 {vW01}, {s_LDS}, {vL16}")
A(f"v_add_u32 {vW23}, 0x10000, {vW01}")
A(f"v_add_u32 {vR01}, {L_T}, {vL16}")
A(f"v_add_u32 {vR23}, 0x10000, {vR01}")
A(f"s_lshl_b32 s13, {sW}, 11")
A(f"v_add_u32 v39, s13, {vL16}")

def tr_reads(base, vaddr, lo):
    for nb in range(4):
        for kk in range(2):
            r = base + (nb * 2 + kk) * 4
            A(f"ds_read_b64_tr_b16 v[{r}:{r+1}], {vaddr} offset:{lo + kk*4096 + nb*32}")
            A(f"ds_read_b64_tr_b16 v[{r+2}:{r+3}], {vaddr} offset:{lo + kk*4096 + 512 + nb*32}")
def tile_gemm(frag, xf, dst):
    for kk in range(2):
        for nb in range(4):
            r = frag + (nb * 2 + kk) * 4
            D = DD0 + 4 * nb
            c = "0" if kk == 0 else f"v[{D}:{D+3}]"
            A(f"v_mfma_f32_16x16x32_bf16 v[{D}:{D+3}], v[{r}:{r+3}], v[{xf+4*kk}:{xf+4*kk+3}], {c}")
    A("s_nop 5")
    for e in range(4):
        A(f"v_cndmask_b32 v{dst+e}, v{DD0+e}, v{DD0+4+e}, {sHI}")
    for e in range(4):
        A(f"v_cndmask_b32 v{dst+4+e}, v{DD0+8+e}, v{DD0+12+e}, {sHI}")
def put_partial(vaddr, lo):
    A(f"ds_write_b128 {vaddr}, v[{SEL}:{SEL+3}] offset:{lo}")
    A(f"ds_write_b128 {vaddr}, v[{SEL+4}:{SEL+7}] offset:{lo+1024}")
def arrive(cnt_off, lab):
    A("s_mov_b64 exec, 1")
    A("s_waitcnt lgkmcnt(0)")
    A(f"ds_add_rtn_u32 v62, v60, v61 offset:{cnt_off}")
    A("s_waitcnt lgkmcnt(0)")
    A("v_readfirstlane_b32 s12, v62")
    A("s_mov_b64 exec, -1")
    A("s_cmp_lg_u32 s12, 3")
    A(f"s_cbranch_scc1 {lab}")
def sum4(dst, vaddr, lo, stride):
    for w in range(4):
        for t in range(2):
            A(f"ds_read_b128 v[{dst+8*w+4*t}:{dst+8*w+4*t+3}], {vaddr} offset:{lo + w*stride + t*1024}")
def sum4b(dst, clean=True):
    for e in range(8):
        A(f"v_add_f32 v{dst+e}, v{dst+e}, v{dst+8+e}")
        A(f"v_add_f32 v{dst+16+e}, v{dst+16+e}, v{dst+24+e}")
    for e in range(8):
        A(f"v_add_f32 v{dst+e}, v{dst+e}, v{dst+16+e}")
    for e in range(8 if clean else 0):
        A(f"v_min_u32 v{dst+e}, -2, v{dst+e}")
def poll_mb(name, dword, sleep):
    A("s_mov_b32 s12, 0")
    k.label(f"L_{name}")
    A(f"buffer_load_dword v62, off, {R4(S_WS)}, {s_MB} offset:{4*dword} sc1")
    A("s_waitcnt vmcnt(0)")
    A("v_readfirstlane_b32 s10, v62")
    A("s_nop 1")
    A("s_cmp_lg_u32 s10, 0")
    A(f"s_cbranch_scc1 L_{name}_done")
    A(f"s_sleep {sleep}")
    A("s_add_u32 s12, s12, 1")
    A(f"s_cmp_lt_u32 s12, {SPIN_MAX}")
    A(f"s_cbranch_scc1 L_{name}")
    k.label(f"L_{name}_done")
def polln(name, dst, loads, sleep=2, two=False):
    n = len(loads)
    A("s_mov_b32 s12, 0")
    def round_():
        for t, (vo, sr, so, im) in enumerate(loads):
            A(f"buffer_load_dwordx4 v[{dst+4*t}:{dst+4*t+3}], {vo}, {R4(sr)}, {so} offen offset:{im} sc1")
    if two:
        round_()
        A(f"s_sleep {two}")
    k.label(f"L_{name}")
    round_()
    A(f"s_waitcnt vmcnt({n if two else 0})")
    regs = [f"v{dst+i}" for i in range(4 * n)]
    tmp = ["v60", "v61", "v62", "v63"]
    acc = []
    i = 0
    while len(acc) < 4 and i + 3 <= len(regs):
        A(f"v_max3_u32 {tmp[len(acc)]}, {regs[i]}, {regs[i+1]}, {regs[i+2]}")
        acc.append(tmp[len(acc)]); i += 3
    j = 0
    while i < len(regs):
        if i + 2 <= len(regs):
            A(f"v_max3_u32 {acc[j]}, {acc[j]}, {regs[i]}, {regs[i+1]}"); i += 2
        else:
            A(f"v_max_u32 {acc[j]}, {acc[j]}, {regs[i]}"); i += 1
        j = (j + 1) % len(acc)
    if len(acc) == 4:
        A(f"v_max3_u32 {acc[0]}, {acc[0]}, {acc[1]}, {acc[2]}")
        A(f"v_max_u32 {acc[0]}, {acc[0]}, {acc[3]}")
    else:
        assert len(acc) == 2
        A(f"v_max_u32 {acc[0]}, {acc[0]}, {acc[1]}")
    A("v_cmp_eq_u32 vcc, -1, v60")
    A(f"s_cbranch_vccz L_{name}_done")
    A("s_mov_b64 exec, vcc")
    if sleep:
        A(f"s_sleep {sleep}")
    A("s_add_u32 s12, s12, 1")
    A(f"s_cmp_lt_u32 s12, {SPIN_MAX}")
    A(f"s_cbranch_scc1 L_{name}")
    k.label(f"L_{name}_done")
    A("s_mov_b64 exec, -1")
def round_bf16(r, tmp):
    A(f"v_cvt_pk_bf16_f32 v{tmp}, v{r}, v{r}")
    A(f"v_and_b32 v{r}, s8, v{tmp}")

A(f"s_cmp_lg_u32 {sW}, 0")
A("s_cbranch_scc1 L_a2b")
A("s_waitcnt vmcnt(1)")
A("s_branch L_a2c")
k.label("L_a2b")
A("s_waitcnt vmcnt(0)")
k.label("L_a2c")
stamp(2)
tr_reads(WF, vT01, 0)
A(f"s_mov_b32 {s_last}, 0")
A("s_mov_b32 s84, 0")
A("s_waitcnt lgkmcnt(0)")
tile_gemm(WF, XF, SEL)
put_partial("v39", L_ACC)
arrive(L_CNT, "L_a4")
sum4(WF, vL16, L_ACC, 2048)
A("s_waitcnt lgkmcnt(0)")
sum4b(WF)
A(f"buffer_store_dwordx4 v[{WF}:{WF+3}], {vQst}, {R4(S_WS)}, {s_Qst} offen sc1")
A(f"buffer_store_dwordx4 v[{WF+4}:{WF+7}], {vQst}, {R4(S_WS)}, {s_Qst} offen offset:128 sc1")
A("s_mov_b32 s84, 1")
k.label("L_a4")
stamp(23)
A("s_cmp_lt_u32 s7, 7")
A("s_cselect_b32 s13, 0x700000, 0")
srd(S_WG, 28, "s13")
srd(S_WU, 30, "s13")
srd(S_WD, 32, "s13")
srd(S_WO, 24, 0x800000)
A("s_mov_b32 s28, s10")
A("s_lshl_b32 s12, s99, 2")
A(f"s_add_u32 s12, s12, {sW}")
A(f"s_lshl_b32 {s_XF}, s12, 7")
A(f"s_mul_i32 {s_TF}, s12, {64 * 7168}")
A(f"s_add_u32 {s_TF}, {s_TF}, {s_Hst}")
A("s_lshl_b32 s12, s7, 1")
A("s_lshr_b32 s13, s6, 4")
A("s_add_u32 s12, s12, s13")
A("s_lshl_b32 s12, s12, 2")
A(f"s_add_u32 s12, s12, {sW}")
A(f"s_lshl_b32 {s_TO}, s12, 17")
A("s_and_b32 s13, s6, 15")
A("s_lshl_b32 s29, s13, 7")
A(f"s_add_u32 {s_TO}, {s_TO}, s29")
A(f"s_lshl_b32 {s_Hin}, s12, 7")
A("s_lshr_b32 s13, s12, 1")
A(f"s_lshl_b32 {s_Oin}, s13, 11")
A("s_and_b32 s13, s12, 1")
A("s_lshl_b32 s13, s13, 7")
A(f"s_add_u32 {s_Oin}, {s_Oin}, s13")
A(f"s_add_u32 {s_Oin}, {s_Oin}, 0x{WS_O:x}")
A(f"s_lshl_b32 {s_PAin}, s7, 5")
A(f"s_add_u32 {s_PAin}, {s_PAin}, s6")
A(f"s_lshl_b32 {s_PAin}, {s_PAin}, 12")
A(f"s_add_u32 {s_PAin}, {s_PAin}, 0x{WS_PA:x}")
A("s_lshl_b32 s15, s7, 11")
A("s_add_u32 s15, s15, s29")
A("s_lshr_b32 s13, s6, 4")
A("s_lshl_b32 s13, s13, 6")
A("s_add_u32 s15, s15, s13")
A(f"s_add_u32 s30, {s_PAst}, 0x10000")
A(f"v_mov_b32 {vHUGE}, 0x{HUGE:x}")
A(f"v_lshlrev_b32 {vOut}, 3, v5")
A(f"v_lshl_add_u32 {vOut}, v4, 1, {vOut}")
A(f"v_cndmask_b32 {vOut}, {vOut}, {vHUGE}, {sHI}")
A(f"v_lshlrev_b32 {vML}, 3, v3")
A(f"v_lshlrev_b32 {vAcc}, 3, v2")
A(f"v_lshlrev_b32 {vOg}, 8, v5")
A(f"v_lshl_add_u32 {vOg}, v4, 4, {vOg}")
A(f"v_mul_u32_u24 {vHg}, 7168, v5")
A(f"v_lshl_add_u32 {vHg}, v4, 4, {vHg}")
A(f"s_cmp_lg_u32 {sW}, 0")
A("s_cbranch_scc1 L_a5")
A("s_waitcnt vmcnt(2)")
A("s_cmp_lg_u32 s84, 0")
A("s_cbranch_scc1 L_a4b")
A("s_waitcnt vmcnt(0)")
k.label("L_a4b")
stamp(7)
A("v_readfirstlane_b32 s12, v41")
A("s_nop 1")
A("s_cmp_lg_u32 s12, 7")
A("s_cbranch_scc1 L_a3")
A("v_lshlrev_b32 v62, 7, v2")
A("s_lshl_b32 s13, s6, 10")
A(f"s_add_u32 s13, s13, 0x{WS_MB:x}")
A("s_mov_b64 exec, 0xff")
A(f"buffer_store_dword v61, v62, {R4(S_WS)}, s13 offen sc1")
A("s_mov_b64 exec, 1")
A("v_mov_b32 v41, 1")
A(f"buffer_atomic_add v41, off, {R4(S_DBG)}, 0 offset:{192 if OPT['cnt2'] else 128} sc0 sc1")
A(f"s_mov_b32 {s_last}, 2")
A("s_mov_b64 exec, -1")
k.label("L_a3")
if not OPT['oracle']:
    poll_mb("go1", 0, OPT['slpG'])
stamp(4)
polln("pollQ", GX, [(vL16, S_WS, s_Qin, 1024 * t) for t in range(2)], sleep=1)
for e in range(4):
    A(f"v_add_f32 v{GX+e}, v{GX+e}, v{GX+4+e}")
A("v_and_b32 v63, 31, v2")
A("v_lshlrev_b32 v63, 3, v63")
for e in range(2):
    A(f"v_permlane32_swap_b32 v{GX+e}, v{GX+e+2}")
for e in range(2):
    A(f"v_add_f32 v{GX+e}, v{GX+e}, v{GX+e+2}")
A(f"v_cvt_pk_bf16_f32 v62, v{GX}, v{GX+1}")
A("v_lshrrev_b32 v36, 5, v2")
A("v_lshl_add_u32 v63, v36, 2, v63")
A(f"ds_write_b32 v63, v62 offset:{L_Q}")
A("v_mov_b32 v60, 0")
A("v_mov_b32 v61, 1")
A("s_waitcnt lgkmcnt(0)")
A(f"ds_write_b32 v60, v61 offset:{L_CNT+8}")
A(f"s_cmp_lg_u32 {s_last}, 2")
A("s_cbranch_scc1 L_a5")
A("v_readfirstlane_b32 s12, v41")
A("s_nop 1")
A("s_cmp_lg_u32 s12, 31")
A("s_cbranch_scc1 L_a5")
A("v_lshlrev_b32 v62, 7, v2")
for t in range(4):
    A(f"s_mov_b32 s13, 0x{WS_MB + t*8192:x}")
    A(f"buffer_store_dword v61, v62, {R4(S_WS)}, s13 offen offset:4 sc1")
k.label("L_a5")
A("s_setprio 0")
stamp(5)
if OPT['noaux'] == 1:
    A("s_barrier")
    stamp(11)
    A("s_branch L_fin")
for t in range(2):
    A(f"buffer_load_dwordx4 v[{XF+4*t}:{XF+4*t+3}], {vXF}, {R4(S_X)}, {s_XF} offen offset:{64*t}")
if not OPT['tilesS']:
    for i in range(8):
        dma(S_WG, vTF, s_TF, i * 8 * 7168, 32768 + i * 1024)
    for i in range(8):
        dma(S_WU, vTF, s_TF, i * 8 * 7168, 65536 + i * 1024)
for i in range(8):
    dma(S_WO, vTO, s_TO, i * 8 * 2048, i * 1024)
if not OPT['tilesS']:
    for i in range(8):
        dma(S_WD, vTO, s_TO, i * 8 * 2048, 98304 + i * 1024)
srd(S_WQ, 34, 2048)
A("s_lshl_b32 s13, s7, 11")
A("v_lshlrev_b32 v5, 5, v2")
A(f"buffer_load_dwordx4 v[{GX}:{GX+3}], v5, {R4(S_X)}, s13 offen")
A(f"buffer_load_dwordx4 v[{GX+4}:{GX+7}], v5, {R4(S_X)}, s13 offen offset:16")
A(f"buffer_load_dwordx4 v[{GX+8}:{GX+11}], v5, {R4(S_WQ)}, 0 offen")
A(f"buffer_load_dwordx4 v[{GX+12}:{GX+15}], v5, {R4(S_WQ)}, 0 offen offset:16")
if OPT['tilesS']:
    A(f"s_lshl_b32 s12, {sW}, 2")
    A("v_mov_b32 v62, s12")
    k.label("L_tw")
    A(f"ds_read_b32 v63, v62 offset:{L_CNT+16}")
    A("s_waitcnt lgkmcnt(0)")
    A("v_readfirstlane_b32 s12, v63")
    A("s_nop 1")
    A("s_cmp_lg_u32 s12, 0")
    A("s_cbranch_scc1 L_tw_done")
    A("s_sleep 4")
    A("s_branch L_tw")
    k.label("L_tw_done")
    A("s_waitcnt vmcnt(12)")
else:
    A("s_waitcnt vmcnt(20)")
tr_reads(WF, vT01, 32768)
tr_reads(WF + 32, vT23, 0)
A("s_waitcnt lgkmcnt(0)")
tile_gemm(WF, XF, SEL)
put_partial(vW01, 32768)
tile_gemm(WF + 32, XF, SEL)
put_partial(vW23, 0)
A("s_mov_b32 s84, 0")
arrive(L_CNT + 4, "L_a6")
sum4(WF, vR01, 32768, 8192)
sum4(WF + 32, vR23, 0, 8192)
A("s_waitcnt lgkmcnt(0)")
sum4b(WF)
sum4b(WF + 32)
for t, r in enumerate((WF, WF + 4, WF + 32, WF + 36)):
    A(f"buffer_store_dwordx4 v[{r}:{r+3}], {vL16}, {R4(S_WS1)}, s28 offen offset:{1024*t} sc1")
A("s_mov_b32 s84, 1")
k.label("L_a6")
stamp(3)
A("s_waitcnt vmcnt(0)")
stamp(6)
tr_reads(TF0, vT01, 0)
tr_reads(TF1, vT23, 32768)
srd(S_WU, 36, 16384)
A(f"v_mov_b32 v{VG}, 0")
for r in range(8):
    A(f"v_lshlrev_b32 v60, 16, v{GX+r}")
    A(f"v_and_b32 v61, s8, v{GX+r}")
    A(f"v_lshlrev_b32 v62, 16, v{GX+8+r}")
    A(f"v_and_b32 v63, s8, v{GX+8+r}")
    A("v_mul_f32 v60, v60, v62")
    A("v_mul_f32 v61, v61, v63")
    A("v_cvt_pk_bf16_f32 v60, v60, v61")
    A("v_lshlrev_b32 v61, 16, v60")
    A("v_and_b32 v60, s8, v60")
    A(f"v_add_f32 v{VG}, v{VG}, v61")
    A(f"v_add_f32 v{VG}, v{VG}, v60")
for rot in (8, 4, 2, 1):
    A("s_nop 1")
    A(f"v_add_f32_dpp v{VG}, v{VG}, v{VG} row_ror:{rot} row_mask:0xf bank_mask:0xf")
A(f"v_mov_b32 v60, v{VG}")
A("s_nop 1")
A(f"v_permlane32_swap_b32 v{VG}, v60")
A(f"v_add_f32 v{VG}, v{VG}, v60")
A(f"v_mov_b32 v60, v{VG}")
A("s_nop 1")
A(f"v_permlane16_swap_b32 v{VG}, v60")
A(f"v_add_f32 v{VG}, v{VG}, v60")
round_bf16(VG, 60)
A(f"s_mov_b32 s10, {f32(-LOG2E)}")
A(f"v_mul_f32 v{VG}, s10, v{VG}")
A(f"v_exp_f32 v{VG}, v{VG}")
A("s_nop 0")
A(f"v_add_f32 v{VG}, 1.0, v{VG}")
A(f"v_rcp_f32 v{VG}, v{VG}")
A("s_nop 0")
round_bf16(VG, 60)
A(f"v_sub_f32 v60, 1.0, v{VG}")
round_bf16(60, 61)
A(f"v_cndmask_b32 v{VG}, v{VG}, v60, {sHI}")
for _ in range(OPT['preM']):
    A("s_sleep 127")
poll_mb("go2", 1, OPT['slpM'])
stamp(8)
A("s_cmp_eq_u32 s84, 0")
A("s_cbranch_scc1 L_a6b")
G0, U0, T0 = WF, WF + 32, WF + 8
for p in range(3):
    A(f"s_add_u32 s13, {s_GU}, {4096*p}")
    polln(f"pollG{p}", GX, [(vL16, S_WS0, "s13", 1024 * t) for t in range(4)], sleep=OPT['slpM'])
    for e in range(8):
        A(f"v_add_f32 v{G0+e}, v{G0+e}, v{GX+e}")
        A(f"v_add_f32 v{U0+e}, v{U0+e}, v{GX+8+e}")
for t in range(4):
    A(f"v_cvt_pk_bf16_f32 v{T0+t}, v{G0+2*t}, v{G0+2*t+1}")
    A(f"v_cvt_pk_bf16_f32 v{T0+4+t}, v{U0+2*t}, v{U0+2*t+1}")
for t in range(4):
    A(f"v_lshlrev_b32 v{G0+2*t}, 16, v{T0+t}")
    A(f"v_and_b32 v{G0+2*t+1}, s8, v{T0+t}")
    A(f"v_lshlrev_b32 v{U0+2*t}, 16, v{T0+4+t}")
    A(f"v_and_b32 v{U0+2*t+1}, s8, v{T0+4+t}")
A(f"s_mov_b32 s10, {f32(0.044715)}")
A(f"s_mov_b32 s11, {f32(-2.0*0.7978845608028654*LOG2E)}")
for e in range(8):
    A(f"v_mul_f32 v{T0+e}, v{G0+e}, v{G0+e}")
for e in range(8):
    A(f"v_fma_f32 v{T0+e}, v{T0+e}, s10, 1.0")
for e in range(8):
    A(f"v_mul_f32 v{T0+e}, v{T0+e}, v{G0+e}")
for e in range(8):
    A(f"v_mul_f32 v{T0+e}, s11, v{T0+e}")
for e in range(8):
    A(f"v_exp_f32 v{T0+e}, v{T0+e}")
for e in range(8):
    A(f"v_add_f32 v{T0+e}, 1.0, v{T0+e}")
for e in range(8):
    A(f"v_rcp_f32 v{T0+e}, v{T0+e}")
for e in range(8):
    A(f"v_mul_f32 v{G0+e}, v{G0+e}, v{T0+e}")
for t in range(4):
    A(f"v_cvt_pk_bf16_f32 v{T0+t}, v{G0+2*t}, v{G0+2*t+1}")
for t in range(4):
    A(f"v_lshlrev_b32 v{G0+2*t}, 16, v{T0+t}")
    A(f"v_and_b32 v{G0+2*t+1}, s8, v{T0+t}")
for e in range(8):
    A(f"v_mul_f32 v{G0+e}, v{G0+e}, v{U0+e}")
for t in range(4):
    A(f"v_cvt_pk_bf16_f32 v{PZ+t}, v{G0+2*t}, v{G0+2*t+1}")
for t in range(4):
    A(f"v_min_u32 v{PZ+t}, -2, v{PZ+t}")
A(f"buffer_store_dwordx2 v[{PZ}:{PZ+1}], {vHst}, {R4(S_WS0)}, {s_Hst} offen sc1")
A(f"buffer_store_dwordx2 v[{PZ+2}:{PZ+3}], {vHst}, {R4(S_WS0)}, {s_Hst} offen offset:64 sc1")
k.label("L_a6b")
polln("pollH", GX, [(vHg, S_WSF, s_Hin, 64 * t) for t in range(2)], sleep=OPT['slpM'])
A("s_waitcnt lgkmcnt(0)")
A("s_nop 2")
tile_gemm(TF1, GX, SEL)
put_partial(vW23, 32768)
stamp(9)
A(f"s_mov_b32 s10, {f32(LOG2E)}")
A(f"s_setprio {OPT['prio']}")
A("s_waitcnt lgkmcnt(0)")
A("s_barrier")
stamp(11)
A(f"s_cmp_lg_u32 {sW}, 0")
A("s_cbranch_scc1 L_gatherO")
CA = 96
A(f"ds_read_b64 v[60:61], {vML} offset:{L_ML}")
for s_ in range(16):
    A(f"ds_read_b64 v[{CA+2*s_}:{CA+2*s_+1}], {vAcc} offset:{L_ACC + s_*512}")
A("s_waitcnt lgkmcnt(15)")
A("v_max_f32_dpp v62, v60, v60 row_ror:8 row_mask:0xf bank_mask:0xf")
for rot in (4, 2, 1):
    A("s_nop 1")
    A(f"v_max_f32_dpp v62, v62, v62 row_ror:{rot} row_mask:0xf bank_mask:0xf")
A("v_sub_f32 v60, v60, v62")
A("v_mul_f32 v60, s10, v60")
A("v_exp_f32 v60, v60")
A("s_nop 0")
A("v_mul_f32 v61, v61, v60")
for rot in (8, 4, 2, 1):
    A("s_nop 1")
    A(f"v_add_f32_dpp v61, v61, v61 row_ror:{rot} row_mask:0xf bank_mask:0xf")
A("v_rcp_f32 v61, v61")
A("s_nop 0")
A("v_mul_f32 v60, v60, v61")
A("s_waitcnt lgkmcnt(0)")
A("s_nop 0")
A(f"v_mul_f32_dpp v62, v60, v{CA} row_newbcast:0 row_mask:0xf bank_mask:0xf")
A(f"v_mul_f32_dpp v63, v60, v{CA+1} row_newbcast:0 row_mask:0xf bank_mask:0xf")
for s_ in range(1, 16):
    A(f"v_fmac_f32_dpp v62, v60, v{CA+2*s_} row_newbcast:{s_} row_mask:0xf bank_mask:0xf")
    A(f"v_fmac_f32_dpp v63, v60, v{CA+2*s_+1} row_newbcast:{s_} row_mask:0xf bank_mask:0xf")
A("v_cvt_pk_bf16_f32 v62, v62, v63")
A("v_min_u32 v62, -2, v62")
A(f"buffer_store_dword v62, {vL4}, {R4(S_WS)}, {s_Ost} offen sc1")
k.label("L_gatherO")
stamp(12)
A(f"s_cmp_lg_u32 {sW}, 3")
A("s_cbranch_scc1 L_a6c")
sum4(WF, vR23, 32768, 8192)
A("s_waitcnt lgkmcnt(0)")
sum4b(WF)
A(f"buffer_store_dwordx4 v[{WF}:{WF+3}], {vPst}, {R4(S_WS)}, {s_PAst} offen offset:128 sc1")
A(f"buffer_store_dwordx4 v[{WF+4}:{WF+7}], {vPst}, {R4(S_WS)}, s30 offen offset:128 sc1")
k.label("L_a6c")
polln("pollO", GX, [(vOg, S_WS, s_Oin, 64 * t) for t in range(2)], sleep=OPT['slpO'], two=OPT['dpoll'])
stamp(13)
A("v_mov_b32 v60, 0")
A("v_mov_b32 v61, 1")
A("s_nop 1")
tile_gemm(TF0, GX, SEL)
put_partial(vW01, 0)
arrive(L_CNT + 12, "L_a7")
sum4(WF, vR01, 0, 8192)
A("s_waitcnt lgkmcnt(0)")
sum4b(WF)
A(f"buffer_store_dwordx4 v[{WF}:{WF+3}], {vPst}, {R4(S_WS)}, {s_PAst} offen sc1")
A(f"buffer_store_dwordx4 v[{WF+4}:{WF+7}], {vPst}, {R4(S_WS)}, s30 offen sc1")
k.label("L_a7")
A(f"s_cmp_lg_u32 {sW}, 0")
A("s_cbranch_scc1 L_fin")
stamp(14)
GX = 64
polln("pollA", GX, [(vL16, S_WS, s_PAin, 1024 * t) for t in range(4)], sleep=OPT['slpA'], two=OPT['dpoll'])
stamp(15)
for e in range(8):
    A(f"v_add_f32 v{GX+16+e}, v{GX+e}, v{GX+e+8}")
GX += 16
for e in range(4):
    A(f"v_add_f32 v{GX+e}, v{GX+e}, v{GX+e+4}")
A("s_nop 0")
for e in range(2):
    A(f"v_permlane32_swap_b32 v{GX+e}, v{GX+e+2}")
for e in range(2):
    A(f"v_add_f32 v{GX+e}, v{GX+e}, v{GX+e+2}")
A("s_nop 1")
A(f"v_permlane16_swap_b32 v{GX}, v{GX+1}")
A(f"v_add_f32 v{VOUT}, v{GX}, v{GX+1}")
round_bf16(VOUT, 60)
A(f"v_mul_f32 v{VOUT}, v{VOUT}, v{VG}")
round_bf16(VOUT, 60)
A("s_nop 1")
A(f"v_add_f32_dpp v{VOUT}, v{VOUT}, v{VOUT} row_ror:8 row_mask:0xf bank_mask:0xf")
A(f"v_cvt_pk_bf16_f32 v{VOUT}, v{VOUT}, v{VOUT}")
A(f"buffer_store_short v{VOUT}, {vOut}, {R4(S_WU)}, s15 offen")
stamp(16)
k.label("L_fin")
stamp_dump()
k.label("L_end")
A("s_endpgm")

body = "\n".join(k.L)
ref = open('cdna_kernels/%s.s.ref' % NAME).read().split('\n')
head = [l for l in ref if l.startswith(';') and '@launch' not in l]
out = "\n".join(head) + "\n"
out += f"; @launch grid=(256,1,1) block=(512,1,1) lds={LDS_BYTES}\n"
out += f""".amdgcn_target "amdgcn-amd-amdhsa--gfx950"
.text
.globl {NAME}_kernel
.p2align 8
.type {NAME}_kernel,@function
{NAME}_kernel:
{body}
.section .rodata,"a"
.p2align 6
.amdhsa_kernel {NAME}_kernel
  .amdhsa_next_free_vgpr 256
  .amdhsa_next_free_sgpr 102
  .amdhsa_accum_offset 256
  .amdhsa_group_segment_fixed_size 0
  .amdhsa_kernarg_size 104
  .amdhsa_user_sgpr_count 2
  .amdhsa_user_sgpr_kernarg_segment_ptr 1
  .amdhsa_system_sgpr_workgroup_id_x 1
  .amdhsa_float_denorm_mode_32 3
.end_amdhsa_kernel
"""
open(sys.argv[1], 'w').write(out)
```

```python
import sys, struct

NAME = "gated_mix__mha_block_cached__geglu_ffn__decode"
OPT = dict(stamps=0, nokv=0, slpO=0, slpA=0, slpG=1, prio=3, npre=1, D=8, nocomp=0, noaux=0, empty=0, bar0late=1, D2=0, NE=0, DE=16, kpol=1, vpol=1, wpol=1, trace=0, slpM=127, preM=0, bar0early=0, tilesS=0, cnt2=0, oracle=0, vopt=1, DL=5, DH=10, TA=950, TT=232, dpoll=0, DM=0, T1=120)
for a in sys.argv[2:]:
    kk_, v_ = a.split('=')
    assert kk_ in OPT, kk_
    OPT[kk_] = int(v_)

POL = {0: '', 1: ' nt', 2: ' sc1', 3: ' sc1 nt', 4: ' sc0 sc1', 5: ' sc0 sc1 nt', 6: ' sc0', 7: ' sc0 nt'}
def f32(x):
    return "0x%08x" % struct.unpack('<I', struct.pack('<f', x))[0]

WS_H = 0x0
WS_O = 0x10000
WS_MB = 0x20000
WS_Q = 0x80000
WS_PA = 0x100000
WS_SIZE = 0x200000
WS_STAMP = 0x800000
L_Q = 0
L_CNT = 256
L_ML = 512
L_ACC = 4096
L_T = 12288
LDS_BYTES = L_T + 4 * 32768

HUGE = 0x7ffffff0
LOG2E = 1.4426950408889634
SCALE = 128 ** -0.5
SPIN_MAX = 50000

class K:
    def __init__(self):
        self.L = []
    def __call__(self, s):
        self.L.append("    " + s)
    def label(self, s):
        self.L.append(s + ":")
k = K()
A = k

def srd(d, base, nbytes, addlo=None, addhi=None):
    if addlo is None:
        A(f"s_mov_b32 s{d}, s{base}")
        A(f"s_mov_b32 s{d+1}, s{base+1}")
    else:
        A(f"s_add_u32 s{d}, s{base}, {addlo}")
        A(f"s_addc_u32 s{d+1}, s{base+1}, {addhi}")
    A(f"s_mov_b32 s{d+2}, {nbytes}" if isinstance(nbytes, str) else f"s_mov_b32 s{d+2}, 0x{nbytes:x}")
    A(f"s_mov_b32 s{d+3}, 0x00020000")

def stamp_setup():
    if not OPT['stamps']:
        return
    srd(92, 40, WS_STAMP + 0x100000)
    A("s_lshl_b32 s98, s2, 3")
    A("s_add_u32 s98, s98, s3")
    A("s_lshl_b32 s98, s98, 7")
    A(f"s_add_u32 s98, s98, 0x{WS_STAMP:x}")
    A("v_writelane_b32 v255, s100, 31")

def stamp(idx):
    if not OPT['stamps']:
        return
    A("s_memrealtime s[96:97]")
    A("s_waitcnt lgkmcnt(0)")
    A(f"v_writelane_b32 v255, s96, {idx}")

def trace():
    if not OPT['trace']:
        return
    A("s_memrealtime s[96:97]")
    A("s_waitcnt lgkmcnt(0)")
    A("s_mov_b32 m0, s15")
    A("v_writelane_b32 v253, s96, m0")

def stamp_dump():
    if not OPT['stamps']:
        return
    A("v_lshlrev_b32 v254, 2, v2")
    A("v_cmp_gt_u32 vcc, 32, v2")
    A("s_and_saveexec_b64 s[96:97], vcc")
    A("buffer_store_dword v255, v254, s[92:95], s98 offen")
    if OPT['trace']:
        A("s_add_u32 s98, s98, 0x80000")
        A("buffer_store_dword v253, v254, s[92:95], s98 offen")
    A("s_mov_b64 exec, s[96:97]")

if OPT['stamps']:
    A("s_memrealtime s[100:101]")
A("s_cmp_ge_u32 s2, %d" % (0 if OPT['empty'] else 256))
A("s_cbranch_scc1 L_end")
A("s_load_dwordx16 s[16:31], s[0:1], 0")
A("s_load_dwordx8 s[32:39], s[0:1], 64")
A("s_load_dwordx2 s[40:41], s[0:1], 96")
A("v_lshrrev_b32 v1, 6, v0")
A("v_and_b32 v2, 63, v0")
A("v_readfirstlane_b32 s3, v1")
A("s_and_b32 s10, s2, 7")
A("s_lshr_b32 s11, s2, 3")
A("s_and_b32 s6, s11, 3")
A("s_lshl_b32 s7, s10, 2")
A("s_add_u32 s6, s6, s7")
A("s_lshr_b32 s7, s11, 2")
A("s_mul_i32 s15, s10, 7")
A("s_add_u32 s15, s15, s7")
A("s_and_b32 s99, s11, 3")
A("s_mov_b32 s8, 0xffff0000")
A("v_and_b32 v3, 15, v2")
A("v_lshrrev_b32 v4, 4, v2")
if OPT['stamps']:
    A("v_mov_b32 v255, 0")
A("s_cmp_ge_u32 s3, 4")
A("s_cbranch_scc1 L_aux")

NB = 8
NPRE = OPT['npre']
NBLK = 1024 // (4 * NB)
RK = 60
RV = RK + 4 * NB
XB = RV + 4 * NB
VQ = 8
VS = 16
VP = 24
VACC = 32
VM, VL, VMN, VAL = 40, 41, 42, 43
VT = 44
STEP = 4 * NB * 1024
if OPT['DL']:
    A("s_memrealtime s[82:83]")
A("s_lshl_b32 s9, s7, 5")
A("s_add_u32 s9, s9, s6")
A("s_lshl_b32 s10, s9, 20")
A("v_lshlrev_b32 v5, 4, v2")
A(f"s_mul_i32 s12, s3, {NB*1024}")
A("v_add_u32 v5, s12, v5")
NS = NB // 4
DD = OPT['D']
DCUR = [DD]
FIRSTHAVE = [16]
for i in range(NS):
    A(f"s_mov_b32 s{52+i}, {4096*i}")
    A(f"s_mov_b32 s{56+i}, {4096*i + STEP}")
A("v_mov_b32 v6, 0")
A("v_mov_b32 v7, 0")
A(f"ds_write_b64 v6, v[6:7] offset:{L_CNT}")
A(f"ds_write_b64 v6, v[6:7] offset:{L_CNT+8}")
A(f"ds_write_b64 v6, v[6:7] offset:{L_CNT+16}")
A(f"ds_write_b64 v6, v[6:7] offset:{L_CNT+24}")
A("s_waitcnt lgkmcnt(0)")
srd(44, 18, 0 if OPT['nokv'] else 0x100000, "s10", "0")
srd(48, 20, 0 if OPT['nokv'] else 0x100000, "s10", "0")
stamp_setup()
A("s_barrier")

def ldk(base, i, so=52):
    A(f"buffer_load_dwordx4 v[{base+4*i}:{base+4*i+3}], v5, s[44:47], s{so+i//4} offen offset:{(i%4)*1024}{POL[OPT['kpol']]}")
def ldv(base, i, so=52):
    A(f"buffer_load_dwordx4 v[{base+4*i}:{base+4*i+3}], v5, s[48:51], s{so+i//4} offen offset:{(i%4)*1024}{POL[OPT['vpol']]}")
def adv():
    for i in range(NS):
        A(f"s_add_u32 s{52+i}, s{52+i}, 0x{STEP:x}")
        A(f"s_add_u32 s{56+i}, s{56+i}, 0x{STEP:x}")
def issue_after(sq, first=False):
    t = sq + DCUR[0]
    if first and t < FIRSTHAVE[0]:
        return False
    so = 52 if t < 2 * NB else 56
    t %= 2 * NB
    if t < NB:
        ldk(RK, t, so)
    else:
        ldv(RV, t - NB, so)
    return True

DPPM = "row_mask:0xf bank_mask:"
def kphase(base, waits, issue):
    for i in range(NB):
        A(f"s_waitcnt vmcnt({waits(i)})")
        A(f"v_dot2_f32_bf16 v{VS+i}, v{base+4*i}, v{VQ}, 0")
        for r in range(1, 4):
            A(f"v_dot2_f32_bf16 v{VS+i}, v{base+4*i+r}, v{VQ+r}, v{VS+i}")
        if not (issue and issue_after(i, issue == 'first')):
            A("s_nop 0")
        if i >= 3 and i % 2 == 1:
            p = i - 3
            A(f"v_add_f32_dpp v{VS+p}, v{VS+p}, v{VS+p} row_ror:8 {DPPM}0x3")
            A(f"v_add_f32_dpp v{VS+p}, v{VS+p+1}, v{VS+p+1} row_ror:8 {DPPM}0xc")
    A(f"v_add_f32_dpp v{VS}, v{VS}, v{VS} row_ror:12 {DPPM}0x5")
    A(f"v_add_f32_dpp v{VS}, v{VS+2}, v{VS+2} row_ror:4 {DPPM}0xa")
    A(f"v_add_f32_dpp v{VS+6}, v{VS+6}, v{VS+6} row_ror:8 {DPPM}0x3")
    A(f"v_add_f32_dpp v{VS+6}, v{VS+7}, v{VS+7} row_ror:8 {DPPM}0xc")
    A(f"v_add_f32_dpp v{VS+4}, v{VS+4}, v{VS+4} row_ror:12 {DPPM}0x5")
    A(f"v_add_f32_dpp v{VS}, v{VS}, v{VS} quad_perm:[1,0,3,2] {DPPM}0xf")
    A(f"v_add_f32_dpp v{VS+4}, v{VS+6}, v{VS+6} row_ror:4 {DPPM}0xa")
    A("s_nop 0")
    A(f"v_add_f32_dpp v{VS}, v{VS}, v{VS} quad_perm:[2,3,0,1] {DPPM}0xf")
    A(f"v_add_f32_dpp v{VS+4}, v{VS+4}, v{VS+4} quad_perm:[1,0,3,2] {DPPM}0xf")
    A("s_nop 1")
    A(f"v_add_f32_dpp v{VS+4}, v{VS+4}, v{VS+4} quad_perm:[2,3,0,1] {DPPM}0xf")

def softmax():
    W0, W1 = VS, VS + 4
    A(f"v_cvt_pk_bf16_f32 v{VT}, v{W0}, v{W1}")
    A(f"v_lshlrev_b32 v{W0}, 16, v{VT}")
    A(f"v_and_b32 v{W1}, s8, v{VT}")
    A(f"v_mul_f32 v{W0}, s13, v{W0}")
    A(f"v_mul_f32 v{W1}, s13, v{W1}")
    A(f"v_cvt_pk_bf16_f32 v{VT}, v{W0}, v{W1}")
    A(f"v_lshlrev_b32 v{W0}, 16, v{VT}")
    A(f"v_and_b32 v{W1}, s8, v{VT}")
    A(f"v_max3_f32 v{VMN}, v{W0}, v{W1}, v{VM}")
    A("s_nop 1")
    A(f"v_max_f32_dpp v{VMN}, v{VMN}, v{VMN} row_ror:4 {DPPM}0xf")
    A("s_nop 1")
    A(f"v_max_f32_dpp v{VMN}, v{VMN}, v{VMN} row_ror:8 {DPPM}0xf")
    A(f"v_sub_f32 v{VAL}, v{VM}, v{VMN}")
    A(f"v_sub_f32 v{W0}, v{W0}, v{VMN}")
    A(f"v_sub_f32 v{W1}, v{W1}, v{VMN}")
    A(f"v_mul_f32 v{VAL}, s14, v{VAL}")
    A(f"v_mul_f32 v{W0}, s14, v{W0}")
    A(f"v_mul_f32 v{W1}, s14, v{W1}")
    A(f"v_exp_f32 v{W0}, v{W0}")
    A(f"v_exp_f32 v{W1}, v{W1}")
    A(f"v_exp_f32 v{VAL}, v{VAL}")
    A(f"v_mov_b32 v{VM}, v{VMN}")
    for i in range(NB):
        r, q = i >> 2, ((i & 1) << 1) | ((i >> 1) & 1)
        A(f"v_mov_b32_dpp v{VP+i}, v{VS+4*r} row_newbcast:{4*q} {DPPM}0xf")
    A(f"v_fma_f32 v{VL}, v{VL}, v{VAL}, v{W0}")
    for e in range(4):
        A(f"v_pk_mul_f32 v[{VACC+2*e}:{VACC+2*e+1}], v[{VACC+2*e}:{VACC+2*e+1}], v[{VAL-1}:{VAL}] op_sel:[0,1] op_sel_hi:[1,1]")
    A(f"v_add_f32 v{VL}, v{VL}, v{W1}")

def vphase(base, waits, issue):
    for i in range(NB):
        A(f"s_waitcnt vmcnt({waits(i)})")
        tb = VT + 8 * (i & 1)
        for r in range(4):
            A(f"v_lshlrev_b32 v{tb+2*r}, 16, v{base+4*i+r}")
            A(f"v_and_b32 v{tb+2*r+1}, s8, v{base+4*i+r}")
        if issue:
            issue_after(NB + i, issue == 'first')
        pp = VP + (i & ~1)
        sel = "op_sel:[0,1,0] op_sel_hi:[1,1,1]" if i & 1 else "op_sel_hi:[1,0,1]"
        for e in range(4):
            A(f"v_pk_fma_f32 v[{VACC+2*e}:{VACC+2*e+1}], v[{tb+2*e}:{tb+2*e+1}], v[{pp}:{pp+1}], v[{VACC+2*e}:{VACC+2*e+1}] {sel}")

stamp(0)
if OPT['tilesS']:
    A("s_cmp_lt_u32 s7, 7")
    A("s_cselect_b32 s13, 0x700000, 0")
    srd(64, 28, "s13")
    srd(68, 30, "s13")
    srd(72, 32, "s13")
    A("v_lshrrev_b32 v10, 3, v2")
    A("v_and_b32 v11, 7, v2")
    A("v_lshlrev_b32 v11, 4, v11")
    A("v_mul_u32_u24 v12, 7168, v10")
    A("v_add_u32 v12, v12, v11")
    A("v_lshl_add_u32 v13, v10, 11, v11")
    A("s_lshl_b32 s12, s99, 2")
    A("s_add_u32 s12, s12, s3")
    A(f"s_mul_i32 s76, s12, {64 * 7168}")
    A("s_lshl_b32 s12, s15, 7")
    A("s_add_u32 s76, s76, s12")
    A("s_lshl_b32 s12, s7, 1")
    A("s_lshr_b32 s13, s6, 4")
    A("s_add_u32 s12, s12, s13")
    A("s_lshl_b32 s12, s12, 2")
    A("s_add_u32 s12, s12, s3")
    A("s_lshl_b32 s77, s12, 17")
    A("s_and_b32 s13, s6, 15")
    A("s_lshl_b32 s13, s13, 7")
    A("s_add_u32 s77, s77, s13")
    A("s_lshl_b32 s78, s3, 13")
    A(f"s_add_u32 s78, s78, {L_T}")
    for sr, v, so, pitch, reg in ((64, "v12", "s76", 7168, 1), (68, "v12", "s76", 7168, 2), (72, "v13", "s77", 2048, 3)):
        for i in range(8):
            A(f"s_add_u32 m0, s78, {reg*32768 + i*1024}")
            A(f"s_add_u32 s11, {so}, {i*8*pitch}")
            A(f"buffer_load_dwordx4 {v}, s[{sr}:{sr+3}], s11 offen{POL[OPT['wpol']]} lds")
for p in range(NPRE + 1):
    kb = XB + p * 8 * NB if p < NPRE else RK
    vb = kb + 4 * NB
    for i in range(NB):
        ldk(kb, i)
    for i in range(NB):
        ldv(vb, i)
    if p < NPRE:
        adv()
for e in range(8):
    A(f"v_mov_b32 v{VACC+e}, 0")
A(f"v_mov_b32 v{VM}, 0xff61b1e6")
A(f"v_mov_b32 v{VL}, 0")
A(f"s_mov_b32 s13, {f32(SCALE)}")
A(f"s_mov_b32 s14, {f32(LOG2E)}")
A(f"s_mov_b32 s15, {NPRE}")
A("v_lshlrev_b32 v6, 4, v3")
stamp(1)
A("v_mov_b32 v7, 0")
if OPT['tilesS']:
    A(f"s_waitcnt vmcnt({(NPRE + 1) * 2 * NB})")
    A("s_lshl_b32 s12, s3, 2")
    A("v_mov_b32 v12, s12")
    A("v_mov_b32 v13, 1")
    A(f"ds_write_b32 v12, v13 offset:{L_CNT+16}")
k.label("L_qwait")
A(f"ds_read_b32 v12, v7 offset:{L_CNT+8}")
A("s_waitcnt lgkmcnt(0)")
A("v_readfirstlane_b32 s12, v12")
A("s_nop 1")
A("s_cmp_lg_u32 s12, 0")
A("s_cbranch_scc1 L_qdone")
A("s_sleep 1")
A("s_branch L_qwait")
k.label("L_qdone")
A(f"ds_read_b128 v[{VQ}:{VQ+3}], v6 offset:{L_Q}")
A("v_lshlrev_b32 v6, 5, v3")
A("s_waitcnt lgkmcnt(0)")
stamp(2)
tot = (NPRE + 1) * 2 * NB
for p in range(NPRE):
    kb = XB + p * 8 * NB
    kphase(kb, lambda i: tot - 1 - (2 * NB * p + i), False)
    softmax()
    vphase(kb + 4 * NB, lambda i: tot - 1 - (2 * NB * p + NB + i), False)
    if OPT['trace']:
        A("s_memrealtime s[96:97]")
        A("s_waitcnt lgkmcnt(0)")
        A(f"v_writelane_b32 v253, s96, {p}")
def stream_loop(D, tag):
    DCUR[0] = D
    first_wait = lambda sq: 2 * NB - 1 - sq + max(0, sq - (2 * NB - D))
    kphase(RK, first_wait, 'first')
    if D >= NB:
        A(f"s_branch L_mid{tag}")
    else:
        softmax()
        vphase(RV, lambda i: first_wait(NB + i), 'first')
        adv()
        trace()
        A("s_add_u32 s15, s15, 1")
    A(".p2align 6")
    k.label(f"L_loop{tag}")
    kphase(RK, lambda i: D - 1, True)
    k.label(f"L_mid{tag}")
    softmax()
    vphase(RV, lambda i: D - 1, True)
    adv()
    trace()
    A("s_add_u32 s15, s15, 1")
    A(f"s_cmp_lt_u32 s15, {NBLK - OPT['NE']}")
    A(f"s_cbranch_scc1 L_loop{tag}")
    if OPT['NE']:
        DE = OPT['DE']
        for t in range(D, DE):
            if t < NB:
                ldk(RK, t, 52)
            else:
                ldv(RV, t - NB, 52)
        if tag == "b":
            A("s_branch L_loopE")
            return
        DCUR[0] = DE
        k.label("L_loopE")
        kphase(RK, lambda i: DE - 1, True)
        softmax()
        vphase(RV, lambda i: DE - 1, True)
        adv()
        trace()
        A("s_add_u32 s15, s15, 1")
        A(f"s_cmp_lt_u32 s15, {NBLK}")
        A("s_cbranch_scc1 L_loopE")
def paced_loops(levels, thresholds):
    n = len(levels)
    def target(frm, to):
        return f"L_s{to}" if frm == to else f"L_t{frm}_{to}"
    def decide(cur):
        adv()
        trace()
        A("s_add_u32 s15, s15, 1")
        A(f"s_cmp_ge_u32 s15, {NBLK}")
        A("s_cbranch_scc1 L_sdone")
        A("s_waitcnt lgkmcnt(0)")
        A("s_sub_u32 s12, s80, s62")
        A(f"s_add_u32 s62, s62, {OPT['TT']}")
        for i in range(n - 1):
            A(f"s_cmp_lt_i32 s12, {thresholds[i]}")
            A(f"s_cbranch_scc1 {target(cur, i)}")
        A(f"s_branch {target(cur, n - 1)}")
    def body(D, waitsK, waitsV, mode):
        DCUR[0] = D
        kphase(RK, waitsK, mode)
        softmax()
        A("s_memrealtime s[80:81]")
        vphase(RV, waitsV, mode)
    fw = lambda D, have: (lambda sq: have - 1 - sq + max(0, sq - (have - D)))
    A(f"s_add_u32 s62, s82, {OPT['TA'] + OPT['TT'] * NPRE}")
    top = n - 1
    FIRSTHAVE[0] = 2 * NB
    body(levels[top], fw(levels[top], 2 * NB), lambda i: fw(levels[top], 2 * NB)(NB + i), 'first')
    decide(top)
    for to in range(n):
        D = levels[to]
        for frm in range(to):
            k.label(f"L_t{frm}_{to}")
            for t in range(levels[frm], levels[frm + 1]):
                if t < NB:
                    ldk(RK, t, 52)
                else:
                    ldv(RV, t - NB, 52)
        k.label(f"L_s{to}")
        body(D, lambda i: D - 1, lambda i: D - 1, True)
        decide(to)
        for frm in range(to + 1, n):
            k.label(f"L_t{frm}_{to}")
            FIRSTHAVE[0] = levels[frm]
            body(D, fw(D, levels[frm]), lambda i: fw(D, levels[frm])(NB + i), 'first')
            decide(to)
if OPT['DL']:
    if OPT['DM']:
        paced_loops([OPT['DL'], OPT['DM'], OPT['DH']], [0, OPT['T1']])
    else:
        paced_loops([OPT['DL'], OPT['DH']], [0])
else:
    if OPT['D2']:
        A("s_getreg_b32 s12, hwreg(HW_REG_XCC_ID)")
        A("s_and_b32 s12, s12, 1")
        A("s_cmp_eq_u32 s12, 0")
        A("s_cbranch_scc1 L_even")
        stream_loop(OPT['D2'], "b")
        A("s_branch L_sdone")
        k.label("L_even")
    stream_loop(DD, "a")
k.label("L_sdone")
A(f"v_add_f32_dpp v{VL}, v{VL}, v{VL} row_ror:4 {DPPM}0xf")
A("s_lshl_b32 s12, s3, 2")
A("v_add_u32 v7, s12, v4")
A("v_lshlrev_b32 v9, 9, v7")
A("v_add_u32 v9, v9, v6")
A(f"v_add_f32_dpp v{VL}, v{VL}, v{VL} row_ror:8 {DPPM}0xf")
A(f"ds_write_b128 v9, v[{VACC}:{VACC+3}] offset:{L_ACC}")
A(f"ds_write_b128 v9, v[{VACC+4}:{VACC+7}] offset:{L_ACC+16}")
A("v_lshlrev_b32 v7, 3, v7")
A("v_cmp_eq_u32 vcc, 0, v3")
A("s_and_saveexec_b64 s[60:61], vcc")
A(f"ds_write_b64 v7, v[{VM}:{VL}] offset:{L_ML}")
A("s_mov_b64 exec, s[60:61]")
A("s_waitcnt lgkmcnt(0)")
A("s_barrier")
stamp(3)
stamp_dump()
A("s_endpgm")


S_WQ, S_X, S_WS, S_WG, S_WU, S_WD, S_WO, S_WSF, S_DBG = 44, 48, 52, 56, 60, 64, 68, 72, 76
S_WS0, S_WS1 = 16, 20
def R4(n): return f"s[{n}:{n+3}]"
sW = "s9"
s_PAst, s_Ost, s_Qst, s_Hin, s_MB, s_Hst = "s80", "s82", "s83", "s85", "s86", "s87"
s_TQ, s_TF, s_TO, s_LDS, s_Oin, s_last, s_PAin, s_Qin = "s88", "s89", "s90", "s91", "s42", "s43", "s14", "s81"
s_GU, s_XF = "s26", "s27"
sHI = "s[4:5]"
vHUGE, vPst, vQst, vL4, vTQ, vTO, vTF, vXF, vOg, vHg = "v1", "v6", "v7", "v8", "v9", "v10", "v12", "v13", "v14", "v15"
vL16, vOut, vML, vAcc, vHst, vT23, vT01, vR01, vR23, vW01, vW23 = "v40", "v42", "v43", "v0", "v47", "v48", "v49", "v50", "v51", "v11", "v45"
XF = 16
SEL = 24
PZ = 32
DD0 = 208
WF = 96
TF0, TF1 = 160, 64
GX = 192
VG, VOUT = 44, 46

k.label("L_aux")
if OPT['prio']:
    A(f"s_setprio {OPT['prio']}")
A(f"s_sub_u32 {sW}, s3, 4")
A(f"v_cmp_lt_u32 {sHI}, 7, v3")
A("v_and_b32 v5, 7, v3")
A("v_lshrrev_b32 v62, 3, v2")
A("v_lshlrev_b32 v63, 4, v5")
A(f"v_lshl_add_u32 {vTQ}, v62, 13, v63")
A(f"v_mul_u32_u24 {vTF}, 7168, v62")
A(f"v_add_u32 {vTF}, {vTF}, v63")
A(f"v_lshl_add_u32 {vTO}, v62, 11, v63")
A(f"v_lshlrev_b32 {vXF}, 11, v5")
A(f"v_lshl_add_u32 {vXF}, v4, 4, {vXF}")
A("s_lshr_b32 s12, s7, 1")
A("s_lshl_b32 s12, s12, 2")
A(f"s_add_u32 s12, s12, {sW}")
A(f"s_lshl_b32 {s_TQ}, s12, 19")
A("s_lshl_b32 s84, s12, 7")
A("s_lshl_b32 s10, s6, 8")
A(f"s_add_u32 {s_TQ}, {s_TQ}, s10")
A("s_and_b32 s12, s7, 1")
A("s_lshl_b32 s12, s12, 7")
A(f"s_add_u32 {s_TQ}, {s_TQ}, s12")
A(f"s_lshl_b32 {s_LDS}, {sW}, 13")
A(f"s_add_u32 {s_LDS}, {s_LDS}, {L_T}")
if OPT['bar0early']:
    A("s_barrier")
A(f"s_cmp_lg_u32 {sW}, 0")
A("s_waitcnt lgkmcnt(0)")
stamp(20)
srd(S_WS, 40, WS_SIZE)
srd(S_X, 16, 0x4000)
srd(S_WQ, 22, 0x800000)
def dma(sr, v, so, goff, loff):
    A(f"s_add_u32 m0, {s_LDS}, {loff}")
    A(f"s_add_u32 s11, {so}, {goff}")
    A(f"buffer_load_dwordx4 {v}, {R4(sr)}, s11 offen{POL[OPT['wpol']]} lds")
def slot_consts():
    A("v_lshrrev_b32 v62, 3, v3")
    A("v_lshlrev_b32 v63, 5, v62")
    A("v_lshl_add_u32 v63, v4, 3, v63")
    A(f"v_mul_u32_u24 {vHst}, 7168, v5")
    A(f"v_add_u32 {vHst}, {vHst}, v63")
    A("v_lshlrev_b32 v62, 6, v62")
    A("v_lshl_add_u32 v62, v4, 4, v62")
    A(f"v_lshl_add_u32 {vPst}, v5, 17, v62")
    A(f"v_lshl_add_u32 {vQst}, v5, 11, v62")
    A(f"v_lshlrev_b32 {vL4}, 2, v2")
    A(f"v_lshlrev_b32 {vL16}, 4, v2")
    A("s_lshl_b32 s12, s6, 3")
    A("s_add_u32 s12, s12, s7")
    A(f"s_lshl_b32 {s_MB}, s12, 7")
    A(f"s_add_u32 {s_MB}, {s_MB}, 0x{WS_MB:x}")
    A(f"s_lshl_b32 {s_Ost}, s12, 8")
    A(f"s_add_u32 {s_Ost}, {s_Ost}, 0x{WS_O:x}")
    A(f"s_lshl_b32 {s_Qin}, s12, 11")
    A(f"s_add_u32 {s_Qin}, {s_Qin}, 0x{WS_Q:x}")
    A(f"s_lshl_b32 {s_Qst}, s6, 14")
    A("s_lshl_b32 s12, s7, 8")
    A(f"s_add_u32 {s_Qst}, {s_Qst}, s12")
    A(f"s_add_u32 {s_Qst}, {s_Qst}, 0x{WS_Q:x}")
    A("s_and_b32 s12, s6, 15")
    A(f"s_lshl_b32 {s_PAst}, s12, 12")
    A("s_lshl_b32 s12, s7, 1")
    A("s_lshr_b32 s13, s6, 4")
    A("s_add_u32 s12, s12, s13")
    A("s_lshl_b32 s12, s12, 8")
    A(f"s_add_u32 {s_PAst}, {s_PAst}, s12")
    A(f"s_add_u32 {s_PAst}, {s_PAst}, 0x{WS_PA:x}")
    A(f"s_lshl_b32 {s_Hst}, s15, 7")
    A("s_cmp_lt_u32 s7, 7")
    A("s_cselect_b32 s13, 0x%x, 0" % WS_SIZE)
    srd(S_WSF, 40, "s13")
    A("s_cmp_eq_u32 s99, 0")
    A("s_cselect_b32 s12, s13, 0")
    srd(S_WS0, 40, "s12")
    A(f"s_add_u32 s13, {s_PAst}, 0x10000")
A("s_cbranch_scc1 L_a1")
slot_consts()
for r in range(4):
    A(f"v_mov_b32 v{PZ+r}, -1")
A("v_mov_b32 v60, 0")
A("v_mov_b32 v61, 0")
P = f"v[{PZ}:{PZ+3}]"
A(f"buffer_store_dwordx4 {P}, {vQst}, {R4(S_WS)}, {s_Qst} offen sc1")
A(f"buffer_store_dwordx4 {P}, {vQst}, {R4(S_WS)}, {s_Qst} offen offset:128 sc1")
A(f"buffer_store_dwordx2 v[60:61], off, {R4(S_WS)}, {s_MB} sc1")
A(f"buffer_store_dwordx2 v[{PZ}:{PZ+1}], {vHst}, {R4(S_WS0)}, {s_Hst} offen sc1")
A(f"buffer_store_dwordx2 v[{PZ}:{PZ+1}], {vHst}, {R4(S_WS0)}, {s_Hst} offen offset:64 sc1")
for so in (s_PAst, "s13"):
    A(f"buffer_store_dwordx4 {P}, {vPst}, {R4(S_WS)}, {so} offen sc1")
    A(f"buffer_store_dwordx4 {P}, {vPst}, {R4(S_WS)}, {so} offen offset:128 sc1")
A(f"buffer_store_dword v{PZ}, {vL4}, {R4(S_WS)}, {s_Ost} offen sc1")
k.label("L_a1")
stamp(21)
for t in range(2):
    A(f"buffer_load_dwordx4 v[{XF+4*t}:{XF+4*t+3}], {vXF}, {R4(S_X)}, s84 offen offset:{64*t}")
for i in range(8):
    dma(S_WQ, vTQ, s_TQ, i * 8 * 8192, i * 1024)
stamp(22)
if OPT['bar0late']:
    A(f"s_cmp_lg_u32 {sW}, 0")
    A("s_cbranch_scc1 L_a1b")
    A("s_waitcnt vmcnt(10)")
    k.label("L_a1b")
if not OPT['bar0early']:
    A("s_barrier")
stamp_setup()
stamp(0)
srd(S_DBG, 38, 256)
A("v_mov_b32 v60, 0")
A("v_mov_b32 v61, 1")
A(f"s_cmp_lg_u32 {sW}, 0")
A("s_cbranch_scc1 L_a2")
A("s_waitcnt vmcnt(10)")
if OPT['cnt2']:
    A("s_and_b32 s13, s6, 1")
    A("s_lshl_b32 s13, s13, 7")
    A("s_lshr_b32 s12, s6, 1")
    A("s_lshl_b32 s12, s12, 2")
    A("s_add_u32 s13, s13, s12")
else:
    A("s_lshl_b32 s13, s6, 2")
A("v_mov_b32 v41, 1")
A("s_mov_b64 exec, 1")
A(f"buffer_atomic_add v41, off, {R4(S_DBG)}, s13 sc0 sc1")
A("s_mov_b64 exec, -1")
k.label("L_a2")
stamp(1)
slot_consts()
A("v_bfe_u32 v62, v2, 2, 2")
A("v_and_b32 v63, 3, v2")
A(f"v_lshlrev_b32 {vT01}, 10, v4")
A(f"v_lshl_add_u32 {vT01}, v62, 7, {vT01}")
A(f"v_lshl_add_u32 {vT01}, v63, 3, {vT01}")
A(f"v_add_u32 {vT01}, {s_LDS}, {vT01}")
A(f"v_add_u32 {vT23}, 0x10000, {vT01}")
A(f"v_add_u32 {vW01}, {s_LDS}, {vL16}")
A(f"v_add_u32 {vW23}, 0x10000, {vW01}")
A(f"v_add_u32 {vR01}, {L_T}, {vL16}")
A(f"v_add_u32 {vR23}, 0x10000, {vR01}")
A(f"s_lshl_b32 s13, {sW}, 11")
A(f"v_add_u32 v39, s13, {vL16}")

def tr_reads(base, vaddr, lo):
    for nb in range(4):
        for kk in range(2):
            r = base + (nb * 2 + kk) * 4
            A(f"ds_read_b64_tr_b16 v[{r}:{r+1}], {vaddr} offset:{lo + kk*4096 + nb*32}")
            A(f"ds_read_b64_tr_b16 v[{r+2}:{r+3}], {vaddr} offset:{lo + kk*4096 + 512 + nb*32}")
def tile_gemm(frag, xf, dst):
    for kk in range(2):
        for nb in range(4):
            r = frag + (nb * 2 + kk) * 4
            D = DD0 + 4 * nb
            c = "0" if kk == 0 else f"v[{D}:{D+3}]"
            A(f"v_mfma_f32_16x16x32_bf16 v[{D}:{D+3}], v[{r}:{r+3}], v[{xf+4*kk}:{xf+4*kk+3}], {c}")
    A("s_nop 5")
    for e in range(4):
        A(f"v_cndmask_b32 v{dst+e}, v{DD0+e}, v{DD0+4+e}, {sHI}")
    for e in range(4):
        A(f"v_cndmask_b32 v{dst+4+e}, v{DD0+8+e}, v{DD0+12+e}, {sHI}")
def put_partial(vaddr, lo):
    A(f"ds_write_b128 {vaddr}, v[{SEL}:{SEL+3}] offset:{lo}")
    A(f"ds_write_b128 {vaddr}, v[{SEL+4}:{SEL+7}] offset:{lo+1024}")
def arrive(cnt_off, lab):
    A("s_mov_b64 exec, 1")
    A("s_waitcnt lgkmcnt(0)")
    A(f"ds_add_rtn_u32 v62, v60, v61 offset:{cnt_off}")
    A("s_waitcnt lgkmcnt(0)")
    A("v_readfirstlane_b32 s12, v62")
    A("s_mov_b64 exec, -1")
    A("s_cmp_lg_u32 s12, 3")
    A(f"s_cbranch_scc1 {lab}")
def sum4(dst, vaddr, lo, stride):
    for w in range(4):
        for t in range(2):
            A(f"ds_read_b128 v[{dst+8*w+4*t}:{dst+8*w+4*t+3}], {vaddr} offset:{lo + w*stride + t*1024}")
def sum4b(dst, clean=True):
    for e in range(8):
        A(f"v_add_f32 v{dst+e}, v{dst+e}, v{dst+8+e}")
        A(f"v_add_f32 v{dst+16+e}, v{dst+16+e}, v{dst+24+e}")
    for e in range(8):
        A(f"v_add_f32 v{dst+e}, v{dst+e}, v{dst+16+e}")
    for e in range(8 if clean else 0):
        A(f"v_min_u32 v{dst+e}, -2, v{dst+e}")
def poll_mb(name, dword, sleep):
    A("s_mov_b32 s12, 0")
    k.label(f"L_{name}")
    A(f"buffer_load_dword v62, off, {R4(S_WS)}, {s_MB} offset:{4*dword} sc1")
    A("s_waitcnt vmcnt(0)")
    A("v_readfirstlane_b32 s10, v62")
    A("s_nop 1")
    A("s_cmp_lg_u32 s10, 0")
    A(f"s_cbranch_scc1 L_{name}_done")
    A(f"s_sleep {sleep}")
    A("s_add_u32 s12, s12, 1")
    A(f"s_cmp_lt_u32 s12, {SPIN_MAX}")
    A(f"s_cbranch_scc1 L_{name}")
    k.label(f"L_{name}_done")
def polln(name, dst, loads, sleep=2, two=False):
    n = len(loads)
    A("s_mov_b32 s12, 0")
    def round_():
        for t, (vo, sr, so, im) in enumerate(loads):
            A(f"buffer_load_dwordx4 v[{dst+4*t}:{dst+4*t+3}], {vo}, {R4(sr)}, {so} offen offset:{im} sc1")
    if two:
        round_()
        A(f"s_sleep {two}")
    k.label(f"L_{name}")
    round_()
    A(f"s_waitcnt vmcnt({n if two else 0})")
    regs = [f"v{dst+i}" for i in range(4 * n)]
    tmp = ["v60", "v61", "v62", "v63"]
    acc = []
    i = 0
    while len(acc) < 4 and i + 3 <= len(regs):
        A(f"v_max3_u32 {tmp[len(acc)]}, {regs[i]}, {regs[i+1]}, {regs[i+2]}")
        acc.append(tmp[len(acc)]); i += 3
    j = 0
    while i < len(regs):
        if i + 2 <= len(regs):
            A(f"v_max3_u32 {acc[j]}, {acc[j]}, {regs[i]}, {regs[i+1]}"); i += 2
        else:
            A(f"v_max_u32 {acc[j]}, {acc[j]}, {regs[i]}"); i += 1
        j = (j + 1) % len(acc)
    if len(acc) == 4:
        A(f"v_max3_u32 {acc[0]}, {acc[0]}, {acc[1]}, {acc[2]}")
        A(f"v_max_u32 {acc[0]}, {acc[0]}, {acc[3]}")
    else:
        assert len(acc) == 2
        A(f"v_max_u32 {acc[0]}, {acc[0]}, {acc[1]}")
    A("v_cmp_eq_u32 vcc, -1, v60")
    A(f"s_cbranch_vccz L_{name}_done")
    A("s_mov_b64 exec, vcc")
    if sleep:
        A(f"s_sleep {sleep}")
    A("s_add_u32 s12, s12, 1")
    A(f"s_cmp_lt_u32 s12, {SPIN_MAX}")
    A(f"s_cbranch_scc1 L_{name}")
    k.label(f"L_{name}_done")
    A("s_mov_b64 exec, -1")
def round_bf16(r, tmp):
    A(f"v_cvt_pk_bf16_f32 v{tmp}, v{r}, v{r}")
    A(f"v_and_b32 v{r}, s8, v{tmp}")

A(f"s_cmp_lg_u32 {sW}, 0")
A("s_cbranch_scc1 L_a2b")
A("s_waitcnt vmcnt(1)")
A("s_branch L_a2c")
k.label("L_a2b")
A("s_waitcnt vmcnt(0)")
k.label("L_a2c")
stamp(2)
tr_reads(WF, vT01, 0)
A(f"s_mov_b32 {s_last}, 0")
A("s_mov_b32 s84, 0")
A("s_waitcnt lgkmcnt(0)")
tile_gemm(WF, XF, SEL)
put_partial("v39", L_ACC)
arrive(L_CNT, "L_a4")
sum4(WF, vL16, L_ACC, 2048)
A("s_waitcnt lgkmcnt(0)")
sum4b(WF)
A(f"buffer_store_dwordx4 v[{WF}:{WF+3}], {vQst}, {R4(S_WS)}, {s_Qst} offen sc1")
A(f"buffer_store_dwordx4 v[{WF+4}:{WF+7}], {vQst}, {R4(S_WS)}, {s_Qst} offen offset:128 sc1")
A("s_mov_b32 s84, 1")
k.label("L_a4")
stamp(23)
A("s_cmp_lt_u32 s7, 7")
A("s_cselect_b32 s13, 0x700000, 0")
srd(S_WG, 28, "s13")
srd(S_WU, 30, "s13")
srd(S_WD, 32, "s13")
srd(S_WO, 24, 0x800000)
A(f"s_lshl_b32 {s_XF}, {sW}, 7")
A(f"s_mul_i32 {s_TF}, {sW}, {64 * 7168}")
A(f"s_add_u32 {s_TF}, {s_TF}, {s_Hst}")
A("s_lshl_b32 s12, s7, 1")
A("s_lshr_b32 s13, s6, 4")
A("s_add_u32 s12, s12, s13")
A("s_lshl_b32 s12, s12, 2")
A(f"s_add_u32 s12, s12, {sW}")
A(f"s_lshl_b32 {s_TO}, s12, 17")
A("s_and_b32 s13, s6, 15")
A("s_lshl_b32 s29, s13, 7")
A(f"s_add_u32 {s_TO}, {s_TO}, s29")
A(f"s_lshl_b32 {s_Hin}, s12, 7")
A("s_lshr_b32 s13, s12, 1")
A(f"s_lshl_b32 {s_Oin}, s13, 11")
A("s_and_b32 s13, s12, 1")
A("s_lshl_b32 s13, s13, 7")
A(f"s_add_u32 {s_Oin}, {s_Oin}, s13")
A(f"s_add_u32 {s_Oin}, {s_Oin}, 0x{WS_O:x}")
A(f"s_lshl_b32 {s_PAin}, s7, 5")
A(f"s_add_u32 {s_PAin}, {s_PAin}, s6")
A(f"s_lshl_b32 {s_PAin}, {s_PAin}, 12")
A(f"s_add_u32 {s_PAin}, {s_PAin}, 0x{WS_PA:x}")
A("s_lshl_b32 s15, s7, 11")
A("s_add_u32 s15, s15, s29")
A("s_lshr_b32 s13, s6, 4")
A("s_lshl_b32 s13, s13, 6")
A("s_add_u32 s15, s15, s13")
A(f"s_add_u32 s30, {s_PAst}, 0x10000")
A(f"v_mov_b32 {vHUGE}, 0x{HUGE:x}")
A(f"v_lshlrev_b32 {vOut}, 3, v5")
A(f"v_lshl_add_u32 {vOut}, v4, 1, {vOut}")
A(f"v_cndmask_b32 {vOut}, {vOut}, {vHUGE}, {sHI}")
A(f"v_lshlrev_b32 {vML}, 3, v3")
A(f"v_lshlrev_b32 {vAcc}, 3, v2")
A(f"v_lshlrev_b32 {vOg}, 8, v5")
A(f"v_lshl_add_u32 {vOg}, v4, 4, {vOg}")
A(f"v_mul_u32_u24 {vHg}, 7168, v5")
A(f"v_lshl_add_u32 {vHg}, v4, 4, {vHg}")
A(f"s_cmp_lg_u32 {sW}, 0")
A("s_cbranch_scc1 L_a5")
A("s_waitcnt vmcnt(2)")
A("s_cmp_lg_u32 s84, 0")
A("s_cbranch_scc1 L_a4b")
A("s_waitcnt vmcnt(0)")
k.label("L_a4b")
stamp(7)
A("v_readfirstlane_b32 s12, v41")
A("s_nop 1")
A("s_cmp_lg_u32 s12, 7")
A("s_cbranch_scc1 L_a3")
A("v_lshlrev_b32 v62, 7, v2")
A("s_lshl_b32 s13, s6, 10")
A(f"s_add_u32 s13, s13, 0x{WS_MB:x}")
A("s_mov_b64 exec, 0xff")
A(f"buffer_store_dword v61, v62, {R4(S_WS)}, s13 offen sc1")
A("s_mov_b64 exec, 1")
A("v_mov_b32 v41, 1")
A(f"buffer_atomic_add v41, off, {R4(S_DBG)}, 0 offset:{192 if OPT['cnt2'] else 128} sc0 sc1")
A(f"s_mov_b32 {s_last}, 2")
A("s_mov_b64 exec, -1")
k.label("L_a3")
if not OPT['oracle']:
    poll_mb("go1", 0, OPT['slpG'])
stamp(4)
polln("pollQ", GX, [(vL16, S_WS, s_Qin, 1024 * t) for t in range(2)], sleep=1)
for e in range(4):
    A(f"v_add_f32 v{GX+e}, v{GX+e}, v{GX+4+e}")
A("v_and_b32 v63, 31, v2")
A("v_lshlrev_b32 v63, 3, v63")
for e in range(2):
    A(f"v_permlane32_swap_b32 v{GX+e}, v{GX+e+2}")
for e in range(2):
    A(f"v_add_f32 v{GX+e}, v{GX+e}, v{GX+e+2}")
A(f"v_cvt_pk_bf16_f32 v62, v{GX}, v{GX+1}")
A("v_lshrrev_b32 v36, 5, v2")
A("v_lshl_add_u32 v63, v36, 2, v63")
A(f"ds_write_b32 v63, v62 offset:{L_Q}")
A("v_mov_b32 v60, 0")
A("v_mov_b32 v61, 1")
A("s_waitcnt lgkmcnt(0)")
A(f"ds_write_b32 v60, v61 offset:{L_CNT+8}")
A(f"s_cmp_lg_u32 {s_last}, 2")
A("s_cbranch_scc1 L_a5")
A("v_readfirstlane_b32 s12, v41")
A("s_nop 1")
A("s_cmp_lg_u32 s12, 31")
A("s_cbranch_scc1 L_a5")
A("v_lshlrev_b32 v62, 7, v2")
for t in range(4):
    A(f"s_mov_b32 s13, 0x{WS_MB + t*8192:x}")
    A(f"buffer_store_dword v61, v62, {R4(S_WS)}, s13 offen offset:4 sc1")
k.label("L_a5")
A("s_setprio 0")
stamp(5)
if OPT['noaux'] == 1:
    A("s_barrier")
    stamp(11)
    A("s_branch L_fin")
for i in range(8):
    dma(S_WO, vTO, s_TO, i * 8 * 2048, i * 1024)
for i in range(8):
    dma(S_WD, vTO, s_TO, i * 8 * 2048, 98304 + i * 1024)
srd(S_WQ, 34, 2048)
A("s_lshl_b32 s13, s7, 11")
A("v_lshlrev_b32 v5, 5, v2")
A(f"buffer_load_dwordx4 v[{GX}:{GX+3}], v5, {R4(S_X)}, s13 offen")
A(f"buffer_load_dwordx4 v[{GX+4}:{GX+7}], v5, {R4(S_X)}, s13 offen offset:16")
A(f"buffer_load_dwordx4 v[{GX+8}:{GX+11}], v5, {R4(S_WQ)}, 0 offen")
A(f"buffer_load_dwordx4 v[{GX+12}:{GX+15}], v5, {R4(S_WQ)}, 0 offen offset:16")
A(f"s_cmp_eq_u32 s{S_WS0+2}, 0")
A("s_cbranch_scc1 L_a6b")
DU0 = DD0 + 16
for r in range(32):
    A(f"v_mov_b32 v{DD0+r}, 0")
A("s_mov_b32 s84, 0")
k.label("L_f1")
for t in range(2):
    A(f"buffer_load_dwordx4 v[{XF+4*t}:{XF+4*t+3}], {vXF}, {R4(S_X)}, {s_XF} offen offset:{64*t}")
for i in range(8):
    dma(S_WG, vTF, s_TF, i * 8 * 7168, 32768 + i * 1024)
for i in range(8):
    dma(S_WU, vTF, s_TF, i * 8 * 7168, 65536 + i * 1024)
A(f"s_add_u32 {s_XF}, {s_XF}, 512")
A(f"s_add_u32 {s_TF}, {s_TF}, {256 * 7168}")
A("s_waitcnt vmcnt(8)")
tr_reads(WF, vT01, 32768)
A("s_waitcnt vmcnt(0)")
tr_reads(WF + 32, vT23, 0)
A("s_waitcnt lgkmcnt(0)")
for frag, D0_ in ((WF, DD0), (WF + 32, DU0)):
    for kk in range(2):
        for nb in range(4):
            r = frag + (nb * 2 + kk) * 4
            D = D0_ + 4 * nb
            A(f"v_mfma_f32_16x16x32_bf16 v[{D}:{D+3}], v[{r}:{r+3}], v[{XF+4*kk}:{XF+4*kk+3}], v[{D}:{D+3}]")
A("s_add_u32 s84, s84, 1")
A("s_cmp_lt_u32 s84, 4")
A("s_cbranch_scc1 L_f1")
A("s_nop 7")
for D0_, va, lo in ((DD0, vW01, 32768), (DU0, vW23, 0)):
    for e in range(4):
        A(f"v_cndmask_b32 v{SEL+e}, v{D0_+e}, v{D0_+4+e}, {sHI}")
    for e in range(4):
        A(f"v_cndmask_b32 v{SEL+4+e}, v{D0_+8+e}, v{D0_+12+e}, {sHI}")
    put_partial(va, lo)
    A("s_nop 1")
arrive(L_CNT + 4, "L_a6b")
sum4(WF, vR01, 32768, 8192)
sum4(WF + 32, vR23, 0, 8192)
A("s_waitcnt lgkmcnt(0)")
sum4b(WF, False)
sum4b(WF + 32, False)
G0, U0, T0 = WF, WF + 32, WF + 8
for t in range(4):
    A(f"v_cvt_pk_bf16_f32 v{T0+t}, v{G0+2*t}, v{G0+2*t+1}")
    A(f"v_cvt_pk_bf16_f32 v{T0+4+t}, v{U0+2*t}, v{U0+2*t+1}")
for t in range(4):
    A(f"v_lshlrev_b32 v{G0+2*t}, 16, v{T0+t}")
    A(f"v_and_b32 v{G0+2*t+1}, s8, v{T0+t}")
    A(f"v_lshlrev_b32 v{U0+2*t}, 16, v{T0+4+t}")
    A(f"v_and_b32 v{U0+2*t+1}, s8, v{T0+4+t}")
A(f"s_mov_b32 s10, {f32(0.044715)}")
A(f"s_mov_b32 s11, {f32(-2.0*0.7978845608028654*LOG2E)}")
for e in range(8):
    A(f"v_mul_f32 v{T0+e}, v{G0+e}, v{G0+e}")
for e in range(8):
    A(f"v_fma_f32 v{T0+e}, v{T0+e}, s10, 1.0")
for e in range(8):
    A(f"v_mul_f32 v{T0+e}, v{T0+e}, v{G0+e}")
for e in range(8):
    A(f"v_mul_f32 v{T0+e}, s11, v{T0+e}")
for e in range(8):
    A(f"v_exp_f32 v{T0+e}, v{T0+e}")
for e in range(8):
    A(f"v_add_f32 v{T0+e}, 1.0, v{T0+e}")
for e in range(8):
    A(f"v_rcp_f32 v{T0+e}, v{T0+e}")
for e in range(8):
    A(f"v_mul_f32 v{G0+e}, v{G0+e}, v{T0+e}")
for t in range(4):
    A(f"v_cvt_pk_bf16_f32 v{T0+t}, v{G0+2*t}, v{G0+2*t+1}")
for t in range(4):
    A(f"v_lshlrev_b32 v{G0+2*t}, 16, v{T0+t}")
    A(f"v_and_b32 v{G0+2*t+1}, s8, v{T0+t}")
for e in range(8):
    A(f"v_mul_f32 v{G0+e}, v{G0+e}, v{U0+e}")
for t in range(4):
    A(f"v_cvt_pk_bf16_f32 v{PZ+t}, v{G0+2*t}, v{G0+2*t+1}")
for t in range(4):
    A(f"v_min_u32 v{PZ+t}, -2, v{PZ+t}")
A(f"buffer_store_dwordx2 v[{PZ}:{PZ+1}], {vHst}, {R4(S_WS0)}, {s_Hst} offen sc1")
A(f"buffer_store_dwordx2 v[{PZ+2}:{PZ+3}], {vHst}, {R4(S_WS0)}, {s_Hst} offen offset:64 sc1")
k.label("L_a6b")
stamp(3)
A("s_waitcnt vmcnt(0)")
stamp(6)
tr_reads(TF0, vT01, 0)
tr_reads(TF1, vT23, 32768)
srd(S_WU, 36, 16384)
A(f"v_mov_b32 v{VG}, 0")
for r in range(8):
    A(f"v_lshlrev_b32 v60, 16, v{GX+r}")
    A(f"v_and_b32 v61, s8, v{GX+r}")
    A(f"v_lshlrev_b32 v62, 16, v{GX+8+r}")
    A(f"v_and_b32 v63, s8, v{GX+8+r}")
    A("v_mul_f32 v60, v60, v62")
    A("v_mul_f32 v61, v61, v63")
    A("v_cvt_pk_bf16_f32 v60, v60, v61")
    A("v_lshlrev_b32 v61, 16, v60")
    A("v_and_b32 v60, s8, v60")
    A(f"v_add_f32 v{VG}, v{VG}, v61")
    A(f"v_add_f32 v{VG}, v{VG}, v60")
for rot in (8, 4, 2, 1):
    A("s_nop 1")
    A(f"v_add_f32_dpp v{VG}, v{VG}, v{VG} row_ror:{rot} row_mask:0xf bank_mask:0xf")
A(f"v_mov_b32 v60, v{VG}")
A("s_nop 1")
A(f"v_permlane32_swap_b32 v{VG}, v60")
A(f"v_add_f32 v{VG}, v{VG}, v60")
A(f"v_mov_b32 v60, v{VG}")
A("s_nop 1")
A(f"v_permlane16_swap_b32 v{VG}, v60")
A(f"v_add_f32 v{VG}, v{VG}, v60")
round_bf16(VG, 60)
A(f"s_mov_b32 s10, {f32(-LOG2E)}")
A(f"v_mul_f32 v{VG}, s10, v{VG}")
A(f"v_exp_f32 v{VG}, v{VG}")
A("s_nop 0")
A(f"v_add_f32 v{VG}, 1.0, v{VG}")
A(f"v_rcp_f32 v{VG}, v{VG}")
A("s_nop 0")
round_bf16(VG, 60)
A(f"v_sub_f32 v60, 1.0, v{VG}")
round_bf16(60, 61)
A(f"v_cndmask_b32 v{VG}, v{VG}, v60, {sHI}")
poll_mb("go2", 1, OPT['slpM'])
stamp(8)
polln("pollH", GX, [(vHg, S_WSF, s_Hin, 64 * t) for t in range(2)], sleep=OPT['slpM'])
A("s_waitcnt lgkmcnt(0)")
A("s_nop 2")
tile_gemm(TF1, GX, SEL)
put_partial(vW23, 32768)
stamp(9)
A(f"s_mov_b32 s10, {f32(LOG2E)}")
A(f"s_setprio {OPT['prio']}")
A("s_waitcnt lgkmcnt(0)")
A("s_barrier")
stamp(11)
A(f"s_cmp_lg_u32 {sW}, 0")
A("s_cbranch_scc1 L_gatherO")
CA = 96
A(f"ds_read_b64 v[60:61], {vML} offset:{L_ML}")
for s_ in range(16):
    A(f"ds_read_b64 v[{CA+2*s_}:{CA+2*s_+1}], {vAcc} offset:{L_ACC + s_*512}")
A("s_waitcnt lgkmcnt(15)")
A("v_max_f32_dpp v62, v60, v60 row_ror:8 row_mask:0xf bank_mask:0xf")
for rot in (4, 2, 1):
    A("s_nop 1")
    A(f"v_max_f32_dpp v62, v62, v62 row_ror:{rot} row_mask:0xf bank_mask:0xf")
A("v_sub_f32 v60, v60, v62")
A("v_mul_f32 v60, s10, v60")
A("v_exp_f32 v60, v60")
A("s_nop 0")
A("v_mul_f32 v61, v61, v60")
for rot in (8, 4, 2, 1):
    A("s_nop 1")
    A(f"v_add_f32_dpp v61, v61, v61 row_ror:{rot} row_mask:0xf bank_mask:0xf")
A("v_rcp_f32 v61, v61")
A("s_nop 0")
A("v_mul_f32 v60, v60, v61")
A("s_waitcnt lgkmcnt(0)")
A("s_nop 0")
A(f"v_mul_f32_dpp v62, v60, v{CA} row_newbcast:0 row_mask:0xf bank_mask:0xf")
A(f"v_mul_f32_dpp v63, v60, v{CA+1} row_newbcast:0 row_mask:0xf bank_mask:0xf")
for s_ in range(1, 16):
    A(f"v_fmac_f32_dpp v62, v60, v{CA+2*s_} row_newbcast:{s_} row_mask:0xf bank_mask:0xf")
    A(f"v_fmac_f32_dpp v63, v60, v{CA+2*s_+1} row_newbcast:{s_} row_mask:0xf bank_mask:0xf")
A("v_cvt_pk_bf16_f32 v62, v62, v63")
A("v_min_u32 v62, -2, v62")
A(f"buffer_store_dword v62, {vL4}, {R4(S_WS)}, {s_Ost} offen sc1")
k.label("L_gatherO")
stamp(12)
A(f"s_cmp_lg_u32 {sW}, 3")
A("s_cbranch_scc1 L_a6c")
sum4(WF, vR23, 32768, 8192)
A("s_waitcnt lgkmcnt(0)")
sum4b(WF)
A(f"buffer_store_dwordx4 v[{WF}:{WF+3}], {vPst}, {R4(S_WS)}, {s_PAst} offen offset:128 sc1")
A(f"buffer_store_dwordx4 v[{WF+4}:{WF+7}], {vPst}, {R4(S_WS)}, s30 offen offset:128 sc1")
k.label("L_a6c")
polln("pollO", GX, [(vOg, S_WS, s_Oin, 64 * t) for t in range(2)], sleep=OPT['slpO'], two=OPT['dpoll'])
stamp(13)
A("v_mov_b32 v60, 0")
A("v_mov_b32 v61, 1")
A("s_nop 1")
tile_gemm(TF0, GX, SEL)
put_partial(vW01, 0)
arrive(L_CNT + 12, "L_a7")
sum4(WF, vR01, 0, 8192)
A("s_waitcnt lgkmcnt(0)")
sum4b(WF)
A(f"buffer_store_dwordx4 v[{WF}:{WF+3}], {vPst}, {R4(S_WS)}, {s_PAst} offen sc1")
A(f"buffer_store_dwordx4 v[{WF+4}:{WF+7}], {vPst}, {R4(S_WS)}, s30 offen sc1")
k.label("L_a7")
A(f"s_cmp_lg_u32 {sW}, 0")
A("s_cbranch_scc1 L_fin")
stamp(14)
GX = 64
polln("pollA", GX, [(vL16, S_WS, s_PAin, 1024 * t) for t in range(4)], sleep=OPT['slpA'], two=OPT['dpoll'])
stamp(15)
for e in range(8):
    A(f"v_add_f32 v{GX+16+e}, v{GX+e}, v{GX+e+8}")
GX += 16
for e in range(4):
    A(f"v_add_f32 v{GX+e}, v{GX+e}, v{GX+e+4}")
A("s_nop 0")
for e in range(2):
    A(f"v_permlane32_swap_b32 v{GX+e}, v{GX+e+2}")
for e in range(2):
    A(f"v_add_f32 v{GX+e}, v{GX+e}, v{GX+e+2}")
A("s_nop 1")
A(f"v_permlane16_swap_b32 v{GX}, v{GX+1}")
A(f"v_add_f32 v{VOUT}, v{GX}, v{GX+1}")
round_bf16(VOUT, 60)
A(f"v_mul_f32 v{VOUT}, v{VOUT}, v{VG}")
round_bf16(VOUT, 60)
A("s_nop 1")
A(f"v_add_f32_dpp v{VOUT}, v{VOUT}, v{VOUT} row_ror:8 row_mask:0xf bank_mask:0xf")
A(f"v_cvt_pk_bf16_f32 v{VOUT}, v{VOUT}, v{VOUT}")
A(f"buffer_store_short v{VOUT}, {vOut}, {R4(S_WU)}, s15 offen")
stamp(16)
k.label("L_fin")
stamp_dump()
k.label("L_end")
A("s_endpgm")

body = "\n".join(k.L)
ref = open('cdna_kernels/%s.s.ref' % NAME).read().split('\n')
head = [l for l in ref if l.startswith(';') and '@launch' not in l]
out = "\n".join(head) + "\n"
out += f"; @launch grid=(256,1,1) block=(512,1,1) lds={LDS_BYTES}\n"
out += f""".amdgcn_target "amdgcn-amd-amdhsa--gfx950"
.text
.globl {NAME}_kernel
.p2align 8
.type {NAME}_kernel,@function
{NAME}_kernel:
{body}
.section .rodata,"a"
.p2align 6
.amdhsa_kernel {NAME}_kernel
  .amdhsa_next_free_vgpr 256
  .amdhsa_next_free_sgpr 102
  .amdhsa_accum_offset 256
  .amdhsa_group_segment_fixed_size 0
  .amdhsa_kernarg_size 104
  .amdhsa_user_sgpr_count 2
  .amdhsa_user_sgpr_kernarg_segment_ptr 1
  .amdhsa_system_sgpr_workgroup_id_x 1
  .amdhsa_float_denorm_mode_32 3
.end_amdhsa_kernel
"""
open(sys.argv[1], 'w').write(out)
```

```python
import sys, struct

NAME = "gated_mix__mha_block_cached__geglu_ffn__decode"
OPT = dict(stamps=0, nokv=0, slpO=0, slpA=0, slpG=1, prio=3, npre=1, D=8, nocomp=0, noaux=0, empty=0, bar0late=1, D2=0, NE=0, DE=16, kpol=1, vpol=1, wpol=1, trace=0, slpM=127, preM=0, bar0early=0, tilesS=0, cnt2=0, oracle=0, vopt=1, DL=5, DH=10, TA=950, TT=231, dpoll=0, DM=0, T1=120)
for a in sys.argv[2:]:
    kk_, v_ = a.split('=')
    assert kk_ in OPT, kk_
    OPT[kk_] = int(v_)

POL = {0: '', 1: ' nt', 2: ' sc1', 3: ' sc1 nt', 4: ' sc0 sc1', 5: ' sc0 sc1 nt', 6: ' sc0', 7: ' sc0 nt'}
def f32(x):
    return "0x%08x" % struct.unpack('<I', struct.pack('<f', x))[0]

WS_H = 0x0
WS_O = 0x10000
WS_MB = 0x20000
WS_Q = 0x80000
WS_PA = 0x100000
WS_GU = 0x200000
WS_SIZE = 0x2b0000
WS_STAMP = 0x800000
L_Q = 0
L_CNT = 256
L_ML = 512
L_ACC = 4096
L_T = 12288
LDS_BYTES = L_T + 4 * 32768

HUGE = 0x7ffffff0
LOG2E = 1.4426950408889634
SCALE = 128 ** -0.5
SPIN_MAX = 50000

class K:
    def __init__(self):
        self.L = []
    def __call__(self, s):
        self.L.append("    " + s)
    def label(self, s):
        self.L.append(s + ":")
k = K()
A = k

def srd(d, base, nbytes, addlo=None, addhi=None):
    if addlo is None:
        A(f"s_mov_b32 s{d}, s{base}")
        A(f"s_mov_b32 s{d+1}, s{base+1}")
    else:
        A(f"s_add_u32 s{d}, s{base}, {addlo}")
        A(f"s_addc_u32 s{d+1}, s{base+1}, {addhi}")
    A(f"s_mov_b32 s{d+2}, {nbytes}" if isinstance(nbytes, str) else f"s_mov_b32 s{d+2}, 0x{nbytes:x}")
    A(f"s_mov_b32 s{d+3}, 0x00020000")

def stamp_setup():
    if not OPT['stamps']:
        return
    srd(92, 40, WS_STAMP + 0x100000)
    A("s_lshl_b32 s98, s2, 3")
    A("s_add_u32 s98, s98, s3")
    A("s_lshl_b32 s98, s98, 7")
    A(f"s_add_u32 s98, s98, 0x{WS_STAMP:x}")
    A("v_writelane_b32 v255, s100, 31")

def stamp(idx):
    if not OPT['stamps']:
        return
    A("s_memrealtime s[96:97]")
    A("s_waitcnt lgkmcnt(0)")
    A(f"v_writelane_b32 v255, s96, {idx}")

def trace():
    if not OPT['trace']:
        return
    A("s_memrealtime s[96:97]")
    A("s_waitcnt lgkmcnt(0)")
    A("s_mov_b32 m0, s15")
    A("v_writelane_b32 v253, s96, m0")

def stamp_dump():
    if not OPT['stamps']:
        return
    A("v_lshlrev_b32 v254, 2, v2")
    A("v_cmp_gt_u32 vcc, 32, v2")
    A("s_and_saveexec_b64 s[96:97], vcc")
    A("buffer_store_dword v255, v254, s[92:95], s98 offen")
    if OPT['trace']:
        A("s_add_u32 s98, s98, 0x80000")
        A("buffer_store_dword v253, v254, s[92:95], s98 offen")
    A("s_mov_b64 exec, s[96:97]")

if OPT['stamps']:
    A("s_memrealtime s[100:101]")
A("s_cmp_ge_u32 s2, %d" % (0 if OPT['empty'] else 256))
A("s_cbranch_scc1 L_end")
A("s_load_dwordx16 s[16:31], s[0:1], 0")
A("s_load_dwordx8 s[32:39], s[0:1], 64")
A("s_load_dwordx2 s[40:41], s[0:1], 96")
A("v_lshrrev_b32 v1, 6, v0")
A("v_and_b32 v2, 63, v0")
A("v_readfirstlane_b32 s3, v1")
A("s_and_b32 s10, s2, 7")
A("s_lshr_b32 s11, s2, 3")
A("s_and_b32 s6, s11, 3")
A("s_lshl_b32 s7, s10, 2")
A("s_add_u32 s6, s6, s7")
A("s_lshr_b32 s7, s11, 2")
A("s_mul_i32 s15, s10, 7")
A("s_add_u32 s15, s15, s7")
A("s_and_b32 s99, s11, 3")
A("s_mov_b32 s8, 0xffff0000")
A("v_and_b32 v3, 15, v2")
A("v_lshrrev_b32 v4, 4, v2")
if OPT['stamps']:
    A("v_mov_b32 v255, 0")
A("s_cmp_ge_u32 s3, 4")
A("s_cbranch_scc1 L_aux")

NB = 8
NPRE = OPT['npre']
NBLK = 1024 // (4 * NB)
RK = 60
RV = RK + 4 * NB
XB = RV + 4 * NB
VQ = 8
VS = 16
VP = 24
VACC = 32
VM, VL, VMN, VAL = 40, 41, 42, 43
VT = 44
STEP = 4 * NB * 1024
if OPT['DL']:
    A("s_memrealtime s[82:83]")
A("s_lshl_b32 s9, s7, 5")
A("s_add_u32 s9, s9, s6")
A("s_lshl_b32 s10, s9, 20")
A("v_lshlrev_b32 v5, 4, v2")
A(f"s_mul_i32 s12, s3, {NB*1024}")
A("v_add_u32 v5, s12, v5")
NS = NB // 4
DD = OPT['D']
DCUR = [DD]
FIRSTHAVE = [16]
for i in range(NS):
    A(f"s_mov_b32 s{52+i}, {4096*i}")
    A(f"s_mov_b32 s{56+i}, {4096*i + STEP}")
A("v_mov_b32 v6, 0")
A("v_mov_b32 v7, 0")
A(f"ds_write_b64 v6, v[6:7] offset:{L_CNT}")
A(f"ds_write_b64 v6, v[6:7] offset:{L_CNT+8}")
A(f"ds_write_b64 v6, v[6:7] offset:{L_CNT+16}")
A(f"ds_write_b64 v6, v[6:7] offset:{L_CNT+24}")
A("s_waitcnt lgkmcnt(0)")
srd(44, 18, 0 if OPT['nokv'] else 0x100000, "s10", "0")
srd(48, 20, 0 if OPT['nokv'] else 0x100000, "s10", "0")
stamp_setup()
A("s_barrier")

def ldk(base, i, so=52):
    A(f"buffer_load_dwordx4 v[{base+4*i}:{base+4*i+3}], v5, s[44:47], s{so+i//4} offen offset:{(i%4)*1024}{POL[OPT['kpol']]}")
def ldv(base, i, so=52):
    A(f"buffer_load_dwordx4 v[{base+4*i}:{base+4*i+3}], v5, s[48:51], s{so+i//4} offen offset:{(i%4)*1024}{POL[OPT['vpol']]}")
def adv():
    for i in range(NS):
        A(f"s_add_u32 s{52+i}, s{52+i}, 0x{STEP:x}")
        A(f"s_add_u32 s{56+i}, s{56+i}, 0x{STEP:x}")
def issue_after(sq, first=False):
    t = sq + DCUR[0]
    if first and t < FIRSTHAVE[0]:
        return False
    so = 52 if t < 2 * NB else 56
    t %= 2 * NB
    if t < NB:
        ldk(RK, t, so)
    else:
        ldv(RV, t - NB, so)
    return True

DPPM = "row_mask:0xf bank_mask:"
def kphase(base, waits, issue):
    for i in range(NB):
        A(f"s_waitcnt vmcnt({waits(i)})")
        A(f"v_dot2_f32_bf16 v{VS+i}, v{base+4*i}, v{VQ}, 0")
        for r in range(1, 4):
            A(f"v_dot2_f32_bf16 v{VS+i}, v{base+4*i+r}, v{VQ+r}, v{VS+i}")
        if not (issue and issue_after(i, issue == 'first')):
            A("s_nop 0")
        if i >= 3 and i % 2 == 1:
            p = i - 3
            A(f"v_add_f32_dpp v{VS+p}, v{VS+p}, v{VS+p} row_ror:8 {DPPM}0x3")
            A(f"v_add_f32_dpp v{VS+p}, v{VS+p+1}, v{VS+p+1} row_ror:8 {DPPM}0xc")
    A(f"v_add_f32_dpp v{VS}, v{VS}, v{VS} row_ror:12 {DPPM}0x5")
    A(f"v_add_f32_dpp v{VS}, v{VS+2}, v{VS+2} row_ror:4 {DPPM}0xa")
    A(f"v_add_f32_dpp v{VS+6}, v{VS+6}, v{VS+6} row_ror:8 {DPPM}0x3")
    A(f"v_add_f32_dpp v{VS+6}, v{VS+7}, v{VS+7} row_ror:8 {DPPM}0xc")
    A(f"v_add_f32_dpp v{VS+4}, v{VS+4}, v{VS+4} row_ror:12 {DPPM}0x5")
    A(f"v_add_f32_dpp v{VS}, v{VS}, v{VS} quad_perm:[1,0,3,2] {DPPM}0xf")
    A(f"v_add_f32_dpp v{VS+4}, v{VS+6}, v{VS+6} row_ror:4 {DPPM}0xa")
    A("s_nop 0")
    A(f"v_add_f32_dpp v{VS}, v{VS}, v{VS} quad_perm:[2,3,0,1] {DPPM}0xf")
    A(f"v_add_f32_dpp v{VS+4}, v{VS+4}, v{VS+4} quad_perm:[1,0,3,2] {DPPM}0xf")
    A("s_nop 1")
    A(f"v_add_f32_dpp v{VS+4}, v{VS+4}, v{VS+4} quad_perm:[2,3,0,1] {DPPM}0xf")

def softmax():
    W0, W1 = VS, VS + 4
    A(f"v_cvt_pk_bf16_f32 v{VT}, v{W0}, v{W1}")
    A(f"v_lshlrev_b32 v{W0}, 16, v{VT}")
    A(f"v_and_b32 v{W1}, s8, v{VT}")
    A(f"v_mul_f32 v{W0}, s13, v{W0}")
    A(f"v_mul_f32 v{W1}, s13, v{W1}")
    A(f"v_cvt_pk_bf16_f32 v{VT}, v{W0}, v{W1}")
    A(f"v_lshlrev_b32 v{W0}, 16, v{VT}")
    A(f"v_and_b32 v{W1}, s8, v{VT}")
    A(f"v_max3_f32 v{VMN}, v{W0}, v{W1}, v{VM}")
    A("s_nop 1")
    A(f"v_max_f32_dpp v{VMN}, v{VMN}, v{VMN} row_ror:4 {DPPM}0xf")
    A("s_nop 1")
    A(f"v_max_f32_dpp v{VMN}, v{VMN}, v{VMN} row_ror:8 {DPPM}0xf")
    A(f"v_sub_f32 v{VAL}, v{VM}, v{VMN}")
    A(f"v_sub_f32 v{W0}, v{W0}, v{VMN}")
    A(f"v_sub_f32 v{W1}, v{W1}, v{VMN}")
    A(f"v_mul_f32 v{VAL}, s14, v{VAL}")
    A(f"v_mul_f32 v{W0}, s14, v{W0}")
    A(f"v_mul_f32 v{W1}, s14, v{W1}")
    A(f"v_exp_f32 v{W0}, v{W0}")
    A(f"v_exp_f32 v{W1}, v{W1}")
    A(f"v_exp_f32 v{VAL}, v{VAL}")
    A(f"v_mov_b32 v{VM}, v{VMN}")
    for i in range(NB):
        r, q = i >> 2, ((i & 1) << 1) | ((i >> 1) & 1)
        A(f"v_mov_b32_dpp v{VP+i}, v{VS+4*r} row_newbcast:{4*q} {DPPM}0xf")
    A(f"v_fma_f32 v{VL}, v{VL}, v{VAL}, v{W0}")
    for e in range(4):
        A(f"v_pk_mul_f32 v[{VACC+2*e}:{VACC+2*e+1}], v[{VACC+2*e}:{VACC+2*e+1}], v[{VAL-1}:{VAL}] op_sel:[0,1] op_sel_hi:[1,1]")
    A(f"v_add_f32 v{VL}, v{VL}, v{W1}")

def vphase(base, waits, issue):
    for i in range(NB):
        A(f"s_waitcnt vmcnt({waits(i)})")
        tb = VT + 8 * (i & 1)
        for r in range(4):
            A(f"v_lshlrev_b32 v{tb+2*r}, 16, v{base+4*i+r}")
            A(f"v_and_b32 v{tb+2*r+1}, s8, v{base+4*i+r}")
        if issue:
            issue_after(NB + i, issue == 'first')
        pp = VP + (i & ~1)
        sel = "op_sel:[0,1,0] op_sel_hi:[1,1,1]" if i & 1 else "op_sel_hi:[1,0,1]"
        for e in range(4):
            A(f"v_pk_fma_f32 v[{VACC+2*e}:{VACC+2*e+1}], v[{tb+2*e}:{tb+2*e+1}], v[{pp}:{pp+1}], v[{VACC+2*e}:{VACC+2*e+1}] {sel}")

stamp(0)
if OPT['tilesS']:
    A("s_cmp_lt_u32 s7, 7")
    A("s_cselect_b32 s13, 0x700000, 0")
    srd(64, 28, "s13")
    srd(68, 30, "s13")
    srd(72, 32, "s13")
    A("v_lshrrev_b32 v10, 3, v2")
    A("v_and_b32 v11, 7, v2")
    A("v_lshlrev_b32 v11, 4, v11")
    A("v_mul_u32_u24 v12, 7168, v10")
    A("v_add_u32 v12, v12, v11")
    A("v_lshl_add_u32 v13, v10, 11, v11")
    A("s_lshl_b32 s12, s99, 2")
    A("s_add_u32 s12, s12, s3")
    A(f"s_mul_i32 s76, s12, {64 * 7168}")
    A("s_lshl_b32 s12, s15, 7")
    A("s_add_u32 s76, s76, s12")
    A("s_lshl_b32 s12, s7, 1")
    A("s_lshr_b32 s13, s6, 4")
    A("s_add_u32 s12, s12, s13")
    A("s_lshl_b32 s12, s12, 2")
    A("s_add_u32 s12, s12, s3")
    A("s_lshl_b32 s77, s12, 17")
    A("s_and_b32 s13, s6, 15")
    A("s_lshl_b32 s13, s13, 7")
    A("s_add_u32 s77, s77, s13")
    A("s_lshl_b32 s78, s3, 13")
    A(f"s_add_u32 s78, s78, {L_T}")
    for sr, v, so, pitch, reg in ((64, "v12", "s76", 7168, 1), (68, "v12", "s76", 7168, 2), (72, "v13", "s77", 2048, 3)):
        for i in range(8):
            A(f"s_add_u32 m0, s78, {reg*32768 + i*1024}")
            A(f"s_add_u32 s11, {so}, {i*8*pitch}")
            A(f"buffer_load_dwordx4 {v}, s[{sr}:{sr+3}], s11 offen{POL[OPT['wpol']]} lds")
for p in range(NPRE + 1):
    kb = XB + p * 8 * NB if p < NPRE else RK
    vb = kb + 4 * NB
    for i in range(NB):
        ldk(kb, i)
    for i in range(NB):
        ldv(vb, i)
    if p < NPRE:
        adv()
for e in range(8):
    A(f"v_mov_b32 v{VACC+e}, 0")
A(f"v_mov_b32 v{VM}, 0xff61b1e6")
A(f"v_mov_b32 v{VL}, 0")
A(f"s_mov_b32 s13, {f32(SCALE)}")
A(f"s_mov_b32 s14, {f32(LOG2E)}")
A(f"s_mov_b32 s15, {NPRE}")
A("v_lshlrev_b32 v6, 4, v3")
stamp(1)
A("v_mov_b32 v7, 0")
if OPT['tilesS']:
    A(f"s_waitcnt vmcnt({(NPRE + 1) * 2 * NB})")
    A("s_lshl_b32 s12, s3, 2")
    A("v_mov_b32 v12, s12")
    A("v_mov_b32 v13, 1")
    A(f"ds_write_b32 v12, v13 offset:{L_CNT+16}")
k.label("L_qwait")
A(f"ds_read_b32 v12, v7 offset:{L_CNT+8}")
A("s_waitcnt lgkmcnt(0)")
A("v_readfirstlane_b32 s12, v12")
A("s_nop 1")
A("s_cmp_lg_u32 s12, 0")
A("s_cbranch_scc1 L_qdone")
A("s_sleep 1")
A("s_branch L_qwait")
k.label("L_qdone")
A(f"ds_read_b128 v[{VQ}:{VQ+3}], v6 offset:{L_Q}")
A("v_lshlrev_b32 v6, 5, v3")
A("s_waitcnt lgkmcnt(0)")
stamp(2)
tot = (NPRE + 1) * 2 * NB
for p in range(NPRE):
    kb = XB + p * 8 * NB
    kphase(kb, lambda i: tot - 1 - (2 * NB * p + i), False)
    softmax()
    vphase(kb + 4 * NB, lambda i: tot - 1 - (2 * NB * p + NB + i), False)
    if OPT['trace']:
        A("s_memrealtime s[96:97]")
        A("s_waitcnt lgkmcnt(0)")
        A(f"v_writelane_b32 v253, s96, {p}")
def stream_loop(D, tag):
    DCUR[0] = D
    first_wait = lambda sq: 2 * NB - 1 - sq + max(0, sq - (2 * NB - D))
    kphase(RK, first_wait, 'first')
    if D >= NB:
        A(f"s_branch L_mid{tag}")
    else:
        softmax()
        vphase(RV, lambda i: first_wait(NB + i), 'first')
        adv()
        trace()
        A("s_add_u32 s15, s15, 1")
    A(".p2align 6")
    k.label(f"L_loop{tag}")
    kphase(RK, lambda i: D - 1, True)
    k.label(f"L_mid{tag}")
    softmax()
    vphase(RV, lambda i: D - 1, True)
    adv()
    trace()
    A("s_add_u32 s15, s15, 1")
    A(f"s_cmp_lt_u32 s15, {NBLK - OPT['NE']}")
    A(f"s_cbranch_scc1 L_loop{tag}")
    if OPT['NE']:
        DE = OPT['DE']
        for t in range(D, DE):
            if t < NB:
                ldk(RK, t, 52)
            else:
                ldv(RV, t - NB, 52)
        if tag == "b":
            A("s_branch L_loopE")
            return
        DCUR[0] = DE
        k.label("L_loopE")
        kphase(RK, lambda i: DE - 1, True)
        softmax()
        vphase(RV, lambda i: DE - 1, True)
        adv()
        trace()
        A("s_add_u32 s15, s15, 1")
        A(f"s_cmp_lt_u32 s15, {NBLK}")
        A("s_cbranch_scc1 L_loopE")
def paced_loops(levels, thresholds):
    n = len(levels)
    def target(frm, to):
        return f"L_s{to}" if frm == to else f"L_t{frm}_{to}"
    def decide(cur):
        adv()
        trace()
        A("s_add_u32 s15, s15, 1")
        A(f"s_cmp_ge_u32 s15, {NBLK}")
        A("s_cbranch_scc1 L_sdone")
        A("s_waitcnt lgkmcnt(0)")
        A("s_sub_u32 s12, s80, s62")
        A(f"s_add_u32 s62, s62, {OPT['TT']}")
        for i in range(n - 1):
            A(f"s_cmp_lt_i32 s12, {thresholds[i]}")
            A(f"s_cbranch_scc1 {target(cur, i)}")
        A(f"s_branch {target(cur, n - 1)}")
    def body(D, waitsK, waitsV, mode):
        DCUR[0] = D
        kphase(RK, waitsK, mode)
        softmax()
        A("s_memrealtime s[80:81]")
        vphase(RV, waitsV, mode)
    fw = lambda D, have: (lambda sq: have - 1 - sq + max(0, sq - (have - D)))
    A(f"s_add_u32 s62, s82, {OPT['TA'] + OPT['TT'] * NPRE}")
    top = n - 1
    FIRSTHAVE[0] = 2 * NB
    body(levels[top], fw(levels[top], 2 * NB), lambda i: fw(levels[top], 2 * NB)(NB + i), 'first')
    decide(top)
    for to in range(n):
        D = levels[to]
        for frm in range(to):
            k.label(f"L_t{frm}_{to}")
            for t in range(levels[frm], levels[frm + 1]):
                if t < NB:
                    ldk(RK, t, 52)
                else:
                    ldv(RV, t - NB, 52)
        k.label(f"L_s{to}")
        body(D, lambda i: D - 1, lambda i: D - 1, True)
        decide(to)
        for frm in range(to + 1, n):
            k.label(f"L_t{frm}_{to}")
            FIRSTHAVE[0] = levels[frm]
            body(D, fw(D, levels[frm]), lambda i: fw(D, levels[frm])(NB + i), 'first')
            decide(to)
if OPT['DL']:
    if OPT['DM']:
        paced_loops([OPT['DL'], OPT['DM'], OPT['DH']], [0, OPT['T1']])
    else:
        paced_loops([OPT['DL'], OPT['DH']], [0])
else:
    if OPT['D2']:
        A("s_getreg_b32 s12, hwreg(HW_REG_XCC_ID)")
        A("s_and_b32 s12, s12, 1")
        A("s_cmp_eq_u32 s12, 0")
        A("s_cbranch_scc1 L_even")
        stream_loop(OPT['D2'], "b")
        A("s_branch L_sdone")
        k.label("L_even")
    stream_loop(DD, "a")
k.label("L_sdone")
A(f"v_add_f32_dpp v{VL}, v{VL}, v{VL} row_ror:4 {DPPM}0xf")
A("s_lshl_b32 s12, s3, 2")
A("v_add_u32 v7, s12, v4")
A("v_lshlrev_b32 v9, 9, v7")
A("v_add_u32 v9, v9, v6")
A(f"v_add_f32_dpp v{VL}, v{VL}, v{VL} row_ror:8 {DPPM}0xf")
A(f"ds_write_b128 v9, v[{VACC}:{VACC+3}] offset:{L_ACC}")
A(f"ds_write_b128 v9, v[{VACC+4}:{VACC+7}] offset:{L_ACC+16}")
A("v_lshlrev_b32 v7, 3, v7")
A("v_cmp_eq_u32 vcc, 0, v3")
A("s_and_saveexec_b64 s[60:61], vcc")
A(f"ds_write_b64 v7, v[{VM}:{VL}] offset:{L_ML}")
A("s_mov_b64 exec, s[60:61]")
A("s_waitcnt lgkmcnt(0)")
A("s_barrier")
stamp(3)
stamp_dump()
A("s_endpgm")


S_WQ, S_X, S_WS, S_WG, S_WU, S_WD, S_WO, S_WSF, S_DBG = 44, 48, 52, 56, 60, 64, 68, 72, 76
S_WS0, S_WS1 = 16, 20
def R4(n): return f"s[{n}:{n+3}]"
sW = "s9"
s_PAst, s_Ost, s_Qst, s_Hin, s_MB, s_Hst = "s80", "s82", "s83", "s85", "s86", "s87"
s_TQ, s_TF, s_TO, s_LDS, s_Oin, s_last, s_PAin, s_Qin = "s88", "s89", "s90", "s91", "s42", "s43", "s14", "s81"
s_GU, s_XF = "s26", "s27"
sHI = "s[4:5]"
vHUGE, vPst, vQst, vL4, vTQ, vTO, vTF, vXF, vOg, vHg = "v1", "v6", "v7", "v8", "v9", "v10", "v12", "v13", "v14", "v15"
vL16, vOut, vML, vAcc, vHst, vT23, vT01, vR01, vR23, vW01, vW23 = "v40", "v42", "v43", "v0", "v47", "v48", "v49", "v50", "v51", "v11", "v45"
XF = 16
SEL = 24
PZ = 32
DD0 = 208
WF = 96
TF0, TF1 = 160, 64
GX = 192
VG, VOUT = 44, 46

k.label("L_aux")
if OPT['prio']:
    A(f"s_setprio {OPT['prio']}")
A(f"s_sub_u32 {sW}, s3, 4")
A(f"v_cmp_lt_u32 {sHI}, 7, v3")
A("v_and_b32 v5, 7, v3")
A("v_lshrrev_b32 v62, 3, v2")
A("v_lshlrev_b32 v63, 4, v5")
A(f"v_lshl_add_u32 {vTQ}, v62, 13, v63")
A(f"v_mul_u32_u24 {vTF}, 7168, v62")
A(f"v_add_u32 {vTF}, {vTF}, v63")
A(f"v_lshl_add_u32 {vTO}, v62, 11, v63")
A(f"v_lshlrev_b32 {vXF}, 11, v5")
A(f"v_lshl_add_u32 {vXF}, v4, 4, {vXF}")
A("s_lshr_b32 s12, s7, 1")
A("s_lshl_b32 s12, s12, 2")
A(f"s_add_u32 s12, s12, {sW}")
A(f"s_lshl_b32 {s_TQ}, s12, 19")
A("s_lshl_b32 s84, s12, 7")
A("s_lshl_b32 s10, s6, 8")
A(f"s_add_u32 {s_TQ}, {s_TQ}, s10")
A("s_and_b32 s12, s7, 1")
A("s_lshl_b32 s12, s12, 7")
A(f"s_add_u32 {s_TQ}, {s_TQ}, s12")
A(f"s_lshl_b32 {s_LDS}, {sW}, 13")
A(f"s_add_u32 {s_LDS}, {s_LDS}, {L_T}")
if OPT['bar0early']:
    A("s_barrier")
A(f"s_cmp_lg_u32 {sW}, 0")
A("s_waitcnt lgkmcnt(0)")
stamp(20)
srd(S_WS, 40, WS_SIZE)
srd(S_X, 16, 0x4000)
srd(S_WQ, 22, 0x800000)
def dma(sr, v, so, goff, loff):
    A(f"s_add_u32 m0, {s_LDS}, {loff}")
    A(f"s_add_u32 s11, {so}, {goff}")
    A(f"buffer_load_dwordx4 {v}, {R4(sr)}, s11 offen{POL[OPT['wpol']]} lds")
def slot_consts():
    A("v_lshrrev_b32 v62, 3, v3")
    A("v_lshlrev_b32 v63, 5, v62")
    A("v_lshl_add_u32 v63, v4, 3, v63")
    A(f"v_mul_u32_u24 {vHst}, 7168, v5")
    A(f"v_add_u32 {vHst}, {vHst}, v63")
    A("v_lshlrev_b32 v62, 6, v62")
    A("v_lshl_add_u32 v62, v4, 4, v62")
    A(f"v_lshl_add_u32 {vPst}, v5, 17, v62")
    A(f"v_lshl_add_u32 {vQst}, v5, 11, v62")
    A(f"v_lshlrev_b32 {vL4}, 2, v2")
    A(f"v_lshlrev_b32 {vL16}, 4, v2")
    A("s_lshl_b32 s12, s6, 3")
    A("s_add_u32 s12, s12, s7")
    A(f"s_lshl_b32 {s_MB}, s12, 7")
    A(f"s_add_u32 {s_MB}, {s_MB}, 0x{WS_MB:x}")
    A(f"s_lshl_b32 {s_Ost}, s12, 8")
    A(f"s_add_u32 {s_Ost}, {s_Ost}, 0x{WS_O:x}")
    A(f"s_lshl_b32 {s_Qin}, s12, 11")
    A(f"s_add_u32 {s_Qin}, {s_Qin}, 0x{WS_Q:x}")
    A(f"s_lshl_b32 {s_Qst}, s6, 14")
    A("s_lshl_b32 s12, s7, 8")
    A(f"s_add_u32 {s_Qst}, {s_Qst}, s12")
    A(f"s_add_u32 {s_Qst}, {s_Qst}, 0x{WS_Q:x}")
    A("s_and_b32 s12, s6, 15")
    A(f"s_lshl_b32 {s_PAst}, s12, 12")
    A("s_lshl_b32 s12, s7, 1")
    A("s_lshr_b32 s13, s6, 4")
    A("s_add_u32 s12, s12, s13")
    A("s_lshl_b32 s12, s12, 8")
    A(f"s_add_u32 {s_PAst}, {s_PAst}, s12")
    A(f"s_add_u32 {s_PAst}, {s_PAst}, 0x{WS_PA:x}")
    A(f"s_lshl_b32 {s_Hst}, s15, 7")
    A(f"s_mul_i32 {s_GU}, s15, 12288")
    A(f"s_add_u32 {s_GU}, {s_GU}, 0x{WS_GU:x}")
    A("s_cmp_lt_u32 s7, 7")
    A("s_cselect_b32 s13, 0x%x, 0" % WS_SIZE)
    srd(S_WSF, 40, "s13")
    A("s_cmp_eq_u32 s99, 0")
    A("s_cselect_b32 s12, s13, 0")
    A("s_cselect_b32 s13, 0, s13")
    srd(S_WS0, 40, "s12")
    srd(S_WS1, 40, "s13")
    A("s_lshl_b32 s12, s99, 12")
    A(f"s_add_u32 s10, {s_GU}, s12")
    A("s_sub_u32 s10, s10, 4096")
    A(f"s_add_u32 s13, {s_PAst}, 0x10000")
A("s_cbranch_scc1 L_a1")
slot_consts()
for r in range(4):
    A(f"v_mov_b32 v{PZ+r}, -1")
A("v_mov_b32 v60, 0")
A("v_mov_b32 v61, 0")
P = f"v[{PZ}:{PZ+3}]"
A(f"buffer_store_dwordx4 {P}, {vQst}, {R4(S_WS)}, {s_Qst} offen sc1")
A(f"buffer_store_dwordx4 {P}, {vQst}, {R4(S_WS)}, {s_Qst} offen offset:128 sc1")
A(f"buffer_store_dwordx2 v[60:61], off, {R4(S_WS)}, {s_MB} sc1")
A(f"buffer_store_dwordx2 v[{PZ}:{PZ+1}], {vHst}, {R4(S_WS0)}, {s_Hst} offen sc1")
A(f"buffer_store_dwordx2 v[{PZ}:{PZ+1}], {vHst}, {R4(S_WS0)}, {s_Hst} offen offset:64 sc1")
for t in range(4):
    A(f"buffer_store_dwordx4 {P}, {vL16}, {R4(S_WS1)}, s10 offen offset:{1024*t} sc1")
for so in (s_PAst, "s13"):
    A(f"buffer_store_dwordx4 {P}, {vPst}, {R4(S_WS)}, {so} offen sc1")
    A(f"buffer_store_dwordx4 {P}, {vPst}, {R4(S_WS)}, {so} offen offset:128 sc1")
A(f"buffer_store_dword v{PZ}, {vL4}, {R4(S_WS)}, {s_Ost} offen sc1")
k.label("L_a1")
stamp(21)
for t in range(2):
    A(f"buffer_load_dwordx4 v[{XF+4*t}:{XF+4*t+3}], {vXF}, {R4(S_X)}, s84 offen offset:{64*t}")
for i in range(8):
    dma(S_WQ, vTQ, s_TQ, i * 8 * 8192, i * 1024)
stamp(22)
if OPT['bar0late']:
    A(f"s_cmp_lg_u32 {sW}, 0")
    A("s_cbranch_scc1 L_a1b")
    A("s_waitcnt vmcnt(10)")
    k.label("L_a1b")
if not OPT['bar0early']:
    A("s_barrier")
stamp_setup()
stamp(0)
srd(S_DBG, 38, 256)
A("v_mov_b32 v60, 0")
A("v_mov_b32 v61, 1")
A(f"s_cmp_lg_u32 {sW}, 0")
A("s_cbranch_scc1 L_a2")
A("s_waitcnt vmcnt(10)")
if OPT['cnt2']:
    A("s_and_b32 s13, s6, 1")
    A("s_lshl_b32 s13, s13, 7")
    A("s_lshr_b32 s12, s6, 1")
    A("s_lshl_b32 s12, s12, 2")
    A("s_add_u32 s13, s13, s12")
else:
    A("s_lshl_b32 s13, s6, 2")
A("v_mov_b32 v41, 1")
A("s_mov_b64 exec, 1")
A(f"buffer_atomic_add v41, off, {R4(S_DBG)}, s13 sc0 sc1")
A("s_mov_b64 exec, -1")
k.label("L_a2")
stamp(1)
slot_consts()
A("v_bfe_u32 v62, v2, 2, 2")
A("v_and_b32 v63, 3, v2")
A(f"v_lshlrev_b32 {vT01}, 10, v4")
A(f"v_lshl_add_u32 {vT01}, v62, 7, {vT01}")
A(f"v_lshl_add_u32 {vT01}, v63, 3, {vT01}")
A(f"v_add_u32 {vT01}, {s_LDS}, {vT01}")
A(f"v_add_u32 {vT23}, 0x10000, {vT01}")
A(f"v_add_u32 {vW01}, {s_LDS}, {vL16}")
A(f"v_add_u32 {vW23}, 0x10000, {vW01}")
A(f"v_add_u32 {vR01}, {L_T}, {vL16}")
A(f"v_add_u32 {vR23}, 0x10000, {vR01}")
A(f"s_lshl_b32 s13, {sW}, 11")
A(f"v_add_u32 v39, s13, {vL16}")

def tr_reads(base, vaddr, lo):
    for nb in range(4):
        for kk in range(2):
            r = base + (nb * 2 + kk) * 4
            A(f"ds_read_b64_tr_b16 v[{r}:{r+1}], {vaddr} offset:{lo + kk*4096 + nb*32}")
            A(f"ds_read_b64_tr_b16 v[{r+2}:{r+3}], {vaddr} offset:{lo + kk*4096 + 512 + nb*32}")
def tile_gemm(frag, xf, dst):
    for kk in range(2):
        for nb in range(4):
            r = frag + (nb * 2 + kk) * 4
            D = DD0 + 4 * nb
            c = "0" if kk == 0 else f"v[{D}:{D+3}]"
            A(f"v_mfma_f32_16x16x32_bf16 v[{D}:{D+3}], v[{r}:{r+3}], v[{xf+4*kk}:{xf+4*kk+3}], {c}")
    A("s_nop 5")
    for e in range(4):
        A(f"v_cndmask_b32 v{dst+e}, v{DD0+e}, v{DD0+4+e}, {sHI}")
    for e in range(4):
        A(f"v_cndmask_b32 v{dst+4+e}, v{DD0+8+e}, v{DD0+12+e}, {sHI}")
def put_partial(vaddr, lo):
    A(f"ds_write_b128 {vaddr}, v[{SEL}:{SEL+3}] offset:{lo}")
    A(f"ds_write_b128 {vaddr}, v[{SEL+4}:{SEL+7}] offset:{lo+1024}")
def arrive(cnt_off, lab):
    A("s_mov_b64 exec, 1")
    A("s_waitcnt lgkmcnt(0)")
    A(f"ds_add_rtn_u32 v62, v60, v61 offset:{cnt_off}")
    A("s_waitcnt lgkmcnt(0)")
    A("v_readfirstlane_b32 s12, v62")
    A("s_mov_b64 exec, -1")
    A("s_cmp_lg_u32 s12, 3")
    A(f"s_cbranch_scc1 {lab}")
def sum4(dst, vaddr, lo, stride):
    for w in range(4):
        for t in range(2):
            A(f"ds_read_b128 v[{dst+8*w+4*t}:{dst+8*w+4*t+3}], {vaddr} offset:{lo + w*stride + t*1024}")
def sum4b(dst, clean=True):
    for e in range(8):
        A(f"v_add_f32 v{dst+e}, v{dst+e}, v{dst+8+e}")
        A(f"v_add_f32 v{dst+16+e}, v{dst+16+e}, v{dst+24+e}")
    for e in range(8):
        A(f"v_add_f32 v{dst+e}, v{dst+e}, v{dst+16+e}")
    for e in range(8 if clean else 0):
        A(f"v_min_u32 v{dst+e}, -2, v{dst+e}")
def poll_mb(name, dword, sleep):
    A("s_mov_b32 s12, 0")
    k.label(f"L_{name}")
    A(f"buffer_load_dword v62, off, {R4(S_WS)}, {s_MB} offset:{4*dword} sc1")
    A("s_waitcnt vmcnt(0)")
    A("v_readfirstlane_b32 s10, v62")
    A("s_nop 1")
    A("s_cmp_lg_u32 s10, 0")
    A(f"s_cbranch_scc1 L_{name}_done")
    A(f"s_sleep {sleep}")
    A("s_add_u32 s12, s12, 1")
    A(f"s_cmp_lt_u32 s12, {SPIN_MAX}")
    A(f"s_cbranch_scc1 L_{name}")
    k.label(f"L_{name}_done")
def polln(name, dst, loads, sleep=2, two=False):
    n = len(loads)
    A("s_mov_b32 s12, 0")
    def round_():
        for t, (vo, sr, so, im) in enumerate(loads):
            A(f"buffer_load_dwordx4 v[{dst+4*t}:{dst+4*t+3}], {vo}, {R4(sr)}, {so} offen offset:{im} sc1")
    if two:
        round_()
        A(f"s_sleep {two}")
    k.label(f"L_{name}")
    round_()
    A(f"s_waitcnt vmcnt({n if two else 0})")
    regs = [f"v{dst+i}" for i in range(4 * n)]
    tmp = ["v60", "v61", "v62", "v63"]
    acc = []
    i = 0
    while len(acc) < 4 and i + 3 <= len(regs):
        A(f"v_max3_u32 {tmp[len(acc)]}, {regs[i]}, {regs[i+1]}, {regs[i+2]}")
        acc.append(tmp[len(acc)]); i += 3
    j = 0
    while i < len(regs):
        if i + 2 <= len(regs):
            A(f"v_max3_u32 {acc[j]}, {acc[j]}, {regs[i]}, {regs[i+1]}"); i += 2
        else:
            A(f"v_max_u32 {acc[j]}, {acc[j]}, {regs[i]}"); i += 1
        j = (j + 1) % len(acc)
    if len(acc) == 4:
        A(f"v_max3_u32 {acc[0]}, {acc[0]}, {acc[1]}, {acc[2]}")
        A(f"v_max_u32 {acc[0]}, {acc[0]}, {acc[3]}")
    else:
        assert len(acc) == 2
        A(f"v_max_u32 {acc[0]}, {acc[0]}, {acc[1]}")
    A("v_cmp_eq_u32 vcc, -1, v60")
    A(f"s_cbranch_vccz L_{name}_done")
    A("s_mov_b64 exec, vcc")
    if sleep:
        A(f"s_sleep {sleep}")
    A("s_add_u32 s12, s12, 1")
    A(f"s_cmp_lt_u32 s12, {SPIN_MAX}")
    A(f"s_cbranch_scc1 L_{name}")
    k.label(f"L_{name}_done")
    A("s_mov_b64 exec, -1")
def round_bf16(r, tmp):
    A(f"v_cvt_pk_bf16_f32 v{tmp}, v{r}, v{r}")
    A(f"v_and_b32 v{r}, s8, v{tmp}")

A(f"s_cmp_lg_u32 {sW}, 0")
A("s_cbranch_scc1 L_a2b")
A("s_waitcnt vmcnt(1)")
A("s_branch L_a2c")
k.label("L_a2b")
A("s_waitcnt vmcnt(0)")
k.label("L_a2c")
stamp(2)
tr_reads(WF, vT01, 0)
A(f"s_mov_b32 {s_last}, 0")
A("s_mov_b32 s84, 0")
A("s_waitcnt lgkmcnt(0)")
tile_gemm(WF, XF, SEL)
put_partial("v39", L_ACC)
arrive(L_CNT, "L_a4")
sum4(WF, vL16, L_ACC, 2048)
A("s_waitcnt lgkmcnt(0)")
sum4b(WF)
A(f"buffer_store_dwordx4 v[{WF}:{WF+3}], {vQst}, {R4(S_WS)}, {s_Qst} offen sc1")
A(f"buffer_store_dwordx4 v[{WF+4}:{WF+7}], {vQst}, {R4(S_WS)}, {s_Qst} offen offset:128 sc1")
A("s_mov_b32 s84, 1")
k.label("L_a4")
stamp(23)
A("s_cmp_lt_u32 s7, 7")
A("s_cselect_b32 s13, 0x700000, 0")
srd(S_WG, 28, "s13")
srd(S_WU, 30, "s13")
srd(S_WD, 32, "s13")
srd(S_WO, 24, 0x800000)
A("s_mov_b32 s28, s10")
A("s_lshl_b32 s12, s99, 2")
A(f"s_add_u32 s12, s12, {sW}")
A(f"s_lshl_b32 {s_XF}, s12, 7")
A(f"s_mul_i32 {s_TF}, s12, {64 * 7168}")
A(f"s_add_u32 {s_TF}, {s_TF}, {s_Hst}")
A("s_lshl_b32 s12, s7, 1")
A("s_lshr_b32 s13, s6, 4")
A("s_add_u32 s12, s12, s13")
A("s_lshl_b32 s12, s12, 2")
A(f"s_add_u32 s12, s12, {sW}")
A(f"s_lshl_b32 {s_TO}, s12, 17")
A("s_and_b32 s13, s6, 15")
A("s_lshl_b32 s29, s13, 7")
A(f"s_add_u32 {s_TO}, {s_TO}, s29")
A(f"s_lshl_b32 {s_Hin}, s12, 7")
A("s_lshr_b32 s13, s12, 1")
A(f"s_lshl_b32 {s_Oin}, s13, 11")
A("s_and_b32 s13, s12, 1")
A("s_lshl_b32 s13, s13, 7")
A(f"s_add_u32 {s_Oin}, {s_Oin}, s13")
A(f"s_add_u32 {s_Oin}, {s_Oin}, 0x{WS_O:x}")
A(f"s_lshl_b32 {s_PAin}, s7, 5")
A(f"s_add_u32 {s_PAin}, {s_PAin}, s6")
A(f"s_lshl_b32 {s_PAin}, {s_PAin}, 12")
A(f"s_add_u32 {s_PAin}, {s_PAin}, 0x{WS_PA:x}")
A("s_lshl_b32 s15, s7, 11")
A("s_add_u32 s15, s15, s29")
A("s_lshr_b32 s13, s6, 4")
A("s_lshl_b32 s13, s13, 6")
A("s_add_u32 s15, s15, s13")
A(f"s_add_u32 s30, {s_PAst}, 0x10000")
A(f"v_mov_b32 {vHUGE}, 0x{HUGE:x}")
A(f"v_lshlrev_b32 {vOut}, 3, v5")
A(f"v_lshl_add_u32 {vOut}, v4, 1, {vOut}")
A(f"v_cndmask_b32 {vOut}, {vOut}, {vHUGE}, {sHI}")
A(f"v_lshlrev_b32 {vML}, 3, v3")
A(f"v_lshlrev_b32 {vAcc}, 3, v2")
A(f"v_lshlrev_b32 {vOg}, 8, v5")
A(f"v_lshl_add_u32 {vOg}, v4, 4, {vOg}")
A(f"v_mul_u32_u24 {vHg}, 7168, v5")
A(f"v_lshl_add_u32 {vHg}, v4, 4, {vHg}")
A(f"s_cmp_lg_u32 {sW}, 0")
A("s_cbranch_scc1 L_a5")
A("s_waitcnt vmcnt(2)")
A("s_cmp_lg_u32 s84, 0")
A("s_cbranch_scc1 L_a4b")
A("s_waitcnt vmcnt(0)")
k.label("L_a4b")
stamp(7)
A("v_readfirstlane_b32 s12, v41")
A("s_nop 1")
A("s_cmp_lg_u32 s12, 7")
A("s_cbranch_scc1 L_a3")
A("v_lshlrev_b32 v62, 7, v2")
A("s_lshl_b32 s13, s6, 10")
A(f"s_add_u32 s13, s13, 0x{WS_MB:x}")
A("s_mov_b64 exec, 0xff")
A(f"buffer_store_dword v61, v62, {R4(S_WS)}, s13 offen sc1")
A("s_mov_b64 exec, 1")
A("v_mov_b32 v41, 1")
A(f"buffer_atomic_add v41, off, {R4(S_DBG)}, 0 offset:{192 if OPT['cnt2'] else 128} sc0 sc1")
A(f"s_mov_b32 {s_last}, 2")
A("s_mov_b64 exec, -1")
k.label("L_a3")
if not OPT['oracle']:
    poll_mb("go1", 0, OPT['slpG'])
stamp(4)
polln("pollQ", GX, [(vL16, S_WS, s_Qin, 1024 * t) for t in range(2)], sleep=1)
for e in range(4):
    A(f"v_add_f32 v{GX+e}, v{GX+e}, v{GX+4+e}")
A("v_and_b32 v63, 31, v2")
A("v_lshlrev_b32 v63, 3, v63")
for e in range(2):
    A(f"v_permlane32_swap_b32 v{GX+e}, v{GX+e+2}")
for e in range(2):
    A(f"v_add_f32 v{GX+e}, v{GX+e}, v{GX+e+2}")
A(f"v_cvt_pk_bf16_f32 v62, v{GX}, v{GX+1}")
A("v_lshrrev_b32 v36, 5, v2")
A("v_lshl_add_u32 v63, v36, 2, v63")
A(f"ds_write_b32 v63, v62 offset:{L_Q}")
A("v_mov_b32 v60, 0")
A("v_mov_b32 v61, 1")
A("s_waitcnt lgkmcnt(0)")
A(f"ds_write_b32 v60, v61 offset:{L_CNT+8}")
A(f"s_cmp_lg_u32 {s_last}, 2")
A("s_cbranch_scc1 L_a5")
A("v_readfirstlane_b32 s12, v41")
A("s_nop 1")
A("s_cmp_lg_u32 s12, 31")
A("s_cbranch_scc1 L_a5")
A("v_lshlrev_b32 v62, 7, v2")
for t in range(4):
    A(f"s_mov_b32 s13, 0x{WS_MB + t*8192:x}")
    A(f"buffer_store_dword v61, v62, {R4(S_WS)}, s13 offen offset:4 sc1")
k.label("L_a5")
A("s_setprio 0")
stamp(5)
if OPT['noaux'] == 1:
    A("s_barrier")
    stamp(11)
    A("s_branch L_fin")
for t in range(2):
    A(f"buffer_load_dwordx4 v[{XF+4*t}:{XF+4*t+3}], {vXF}, {R4(S_X)}, {s_XF} offen offset:{64*t}")
if not OPT['tilesS']:
    for i in range(8):
        dma(S_WG, vTF, s_TF, i * 8 * 7168, 32768 + i * 1024)
    for i in range(8):
        dma(S_WU, vTF, s_TF, i * 8 * 7168, 65536 + i * 1024)
for i in range(8):
    dma(S_WO, vTO, s_TO, i * 8 * 2048, i * 1024)
if not OPT['tilesS']:
    for i in range(8):
        dma(S_WD, vTO, s_TO, i * 8 * 2048, 98304 + i * 1024)
srd(S_WQ, 34, 2048)
A("s_lshl_b32 s13, s7, 11")
A("v_lshlrev_b32 v5, 5, v2")
A(f"buffer_load_dwordx4 v[{GX}:{GX+3}], v5, {R4(S_X)}, s13 offen")
A(f"buffer_load_dwordx4 v[{GX+4}:{GX+7}], v5, {R4(S_X)}, s13 offen offset:16")
A(f"buffer_load_dwordx4 v[{GX+8}:{GX+11}], v5, {R4(S_WQ)}, 0 offen")
A(f"buffer_load_dwordx4 v[{GX+12}:{GX+15}], v5, {R4(S_WQ)}, 0 offen offset:16")
if OPT['tilesS']:
    A(f"s_lshl_b32 s12, {sW}, 2")
    A("v_mov_b32 v62, s12")
    k.label("L_tw")
    A(f"ds_read_b32 v63, v62 offset:{L_CNT+16}")
    A("s_waitcnt lgkmcnt(0)")
    A("v_readfirstlane_b32 s12, v63")
    A("s_nop 1")
    A("s_cmp_lg_u32 s12, 0")
    A("s_cbranch_scc1 L_tw_done")
    A("s_sleep 4")
    A("s_branch L_tw")
    k.label("L_tw_done")
    A("s_waitcnt vmcnt(12)")
else:
    A("s_waitcnt vmcnt(20)")
tr_reads(WF, vT01, 32768)
tr_reads(WF + 32, vT23, 0)
A("s_waitcnt lgkmcnt(0)")
tile_gemm(WF, XF, SEL)
put_partial(vW01, 32768)
tile_gemm(WF + 32, XF, SEL)
put_partial(vW23, 0)
A("s_mov_b32 s84, 0")
arrive(L_CNT + 4, "L_a6")
sum4(WF, vR01, 32768, 8192)
sum4(WF + 32, vR23, 0, 8192)
A("s_waitcnt lgkmcnt(0)")
sum4b(WF)
sum4b(WF + 32)
for t, r in enumerate((WF, WF + 4, WF + 32, WF + 36)):
    A(f"buffer_store_dwordx4 v[{r}:{r+3}], {vL16}, {R4(S_WS1)}, s28 offen offset:{1024*t} sc1")
A("s_mov_b32 s84, 1")
k.label("L_a6")
stamp(3)
A("s_waitcnt vmcnt(0)")
stamp(6)
tr_reads(TF0, vT01, 0)
tr_reads(TF1, vT23, 32768)
srd(S_WU, 36, 16384)
A(f"v_mov_b32 v{VG}, 0")
for r in range(8):
    A(f"v_lshlrev_b32 v60, 16, v{GX+r}")
    A(f"v_and_b32 v61, s8, v{GX+r}")
    A(f"v_lshlrev_b32 v62, 16, v{GX+8+r}")
    A(f"v_and_b32 v63, s8, v{GX+8+r}")
    A("v_mul_f32 v60, v60, v62")
    A("v_mul_f32 v61, v61, v63")
    A("v_cvt_pk_bf16_f32 v60, v60, v61")
    A("v_lshlrev_b32 v61, 16, v60")
    A("v_and_b32 v60, s8, v60")
    A(f"v_add_f32 v{VG}, v{VG}, v61")
    A(f"v_add_f32 v{VG}, v{VG}, v60")
for rot in (8, 4, 2, 1):
    A("s_nop 1")
    A(f"v_add_f32_dpp v{VG}, v{VG}, v{VG} row_ror:{rot} row_mask:0xf bank_mask:0xf")
A(f"v_mov_b32 v60, v{VG}")
A("s_nop 1")
A(f"v_permlane32_swap_b32 v{VG}, v60")
A(f"v_add_f32 v{VG}, v{VG}, v60")
A(f"v_mov_b32 v60, v{VG}")
A("s_nop 1")
A(f"v_permlane16_swap_b32 v{VG}, v60")
A(f"v_add_f32 v{VG}, v{VG}, v60")
round_bf16(VG, 60)
A(f"s_mov_b32 s10, {f32(-LOG2E)}")
A(f"v_mul_f32 v{VG}, s10, v{VG}")
A(f"v_exp_f32 v{VG}, v{VG}")
A("s_nop 0")
A(f"v_add_f32 v{VG}, 1.0, v{VG}")
A(f"v_rcp_f32 v{VG}, v{VG}")
A("s_nop 0")
round_bf16(VG, 60)
A(f"v_sub_f32 v60, 1.0, v{VG}")
round_bf16(60, 61)
A(f"v_cndmask_b32 v{VG}, v{VG}, v60, {sHI}")
for _ in range(OPT['preM']):
    A("s_sleep 127")
poll_mb("go2", 1, OPT['slpM'])
stamp(8)
A("s_cmp_eq_u32 s84, 0")
A("s_cbranch_scc1 L_a6b")
G0, U0, T0 = WF, WF + 32, WF + 8
for p in range(3):
    A(f"s_add_u32 s13, {s_GU}, {4096*p}")
    polln(f"pollG{p}", GX, [(vL16, S_WS0, "s13", 1024 * t) for t in range(4)], sleep=OPT['slpM'])
    for e in range(8):
        A(f"v_add_f32 v{G0+e}, v{G0+e}, v{GX+e}")
        A(f"v_add_f32 v{U0+e}, v{U0+e}, v{GX+8+e}")
for t in range(4):
    A(f"v_cvt_pk_bf16_f32 v{T0+t}, v{G0+2*t}, v{G0+2*t+1}")
    A(f"v_cvt_pk_bf16_f32 v{T0+4+t}, v{U0+2*t}, v{U0+2*t+1}")
for t in range(4):
    A(f"v_lshlrev_b32 v{G0+2*t}, 16, v{T0+t}")
    A(f"v_and_b32 v{G0+2*t+1}, s8, v{T0+t}")
    A(f"v_lshlrev_b32 v{U0+2*t}, 16, v{T0+4+t}")
    A(f"v_and_b32 v{U0+2*t+1}, s8, v{T0+4+t}")
A(f"s_mov_b32 s10, {f32(0.044715)}")
A(f"s_mov_b32 s11, {f32(-2.0*0.7978845608028654*LOG2E)}")
for e in range(8):
    A(f"v_mul_f32 v{T0+e}, v{G0+e}, v{G0+e}")
for e in range(8):
    A(f"v_fma_f32 v{T0+e}, v{T0+e}, s10, 1.0")
for e in range(8):
    A(f"v_mul_f32 v{T0+e}, v{T0+e}, v{G0+e}")
for e in range(8):
    A(f"v_mul_f32 v{T0+e}, s11, v{T0+e}")
for e in range(8):
    A(f"v_exp_f32 v{T0+e}, v{T0+e}")
for e in range(8):
    A(f"v_add_f32 v{T0+e}, 1.0, v{T0+e}")
for e in range(8):
    A(f"v_rcp_f32 v{T0+e}, v{T0+e}")
for e in range(8):
    A(f"v_mul_f32 v{G0+e}, v{G0+e}, v{T0+e}")
for t in range(4):
    A(f"v_cvt_pk_bf16_f32 v{T0+t}, v{G0+2*t}, v{G0+2*t+1}")
for t in range(4):
    A(f"v_lshlrev_b32 v{G0+2*t}, 16, v{T0+t}")
    A(f"v_and_b32 v{G0+2*t+1}, s8, v{T0+t}")
for e in range(8):
    A(f"v_mul_f32 v{G0+e}, v{G0+e}, v{U0+e}")
for t in range(4):
    A(f"v_cvt_pk_bf16_f32 v{PZ+t}, v{G0+2*t}, v{G0+2*t+1}")
for t in range(4):
    A(f"v_min_u32 v{PZ+t}, -2, v{PZ+t}")
A(f"buffer_store_dwordx2 v[{PZ}:{PZ+1}], {vHst}, {R4(S_WS0)}, {s_Hst} offen sc1")
A(f"buffer_store_dwordx2 v[{PZ+2}:{PZ+3}], {vHst}, {R4(S_WS0)}, {s_Hst} offen offset:64 sc1")
k.label("L_a6b")
polln("pollH", GX, [(vHg, S_WSF, s_Hin, 64 * t) for t in range(2)], sleep=OPT['slpM'])
A("s_waitcnt lgkmcnt(0)")
A("s_nop 2")
tile_gemm(TF1, GX, SEL)
put_partial(vW23, 32768)
stamp(9)
A(f"s_mov_b32 s10, {f32(LOG2E)}")
A(f"s_setprio {OPT['prio']}")
A("s_waitcnt lgkmcnt(0)")
A("s_barrier")
stamp(11)
A(f"s_cmp_lg_u32 {sW}, 0")
A("s_cbranch_scc1 L_gatherO")
CA = 96
A(f"ds_read_b64 v[60:61], {vML} offset:{L_ML}")
for s_ in range(16):
    A(f"ds_read_b64 v[{CA+2*s_}:{CA+2*s_+1}], {vAcc} offset:{L_ACC + s_*512}")
A("s_waitcnt lgkmcnt(15)")
A("v_max_f32_dpp v62, v60, v60 row_ror:8 row_mask:0xf bank_mask:0xf")
for rot in (4, 2, 1):
    A("s_nop 1")
    A(f"v_max_f32_dpp v62, v62, v62 row_ror:{rot} row_mask:0xf bank_mask:0xf")
A("v_sub_f32 v60, v60, v62")
A("v_mul_f32 v60, s10, v60")
A("v_exp_f32 v60, v60")
A("s_nop 0")
A("v_mul_f32 v61, v61, v60")
for rot in (8, 4, 2, 1):
    A("s_nop 1")
    A(f"v_add_f32_dpp v61, v61, v61 row_ror:{rot} row_mask:0xf bank_mask:0xf")
A("v_rcp_f32 v61, v61")
A("s_nop 0")
A("v_mul_f32 v60, v60, v61")
A("s_waitcnt lgkmcnt(0)")
A("s_nop 0")
A(f"v_mul_f32_dpp v62, v60, v{CA} row_newbcast:0 row_mask:0xf bank_mask:0xf")
A(f"v_mul_f32_dpp v63, v60, v{CA+1} row_newbcast:0 row_mask:0xf bank_mask:0xf")
for s_ in range(1, 16):
    A(f"v_fmac_f32_dpp v62, v60, v{CA+2*s_} row_newbcast:{s_} row_mask:0xf bank_mask:0xf")
    A(f"v_fmac_f32_dpp v63, v60, v{CA+2*s_+1} row_newbcast:{s_} row_mask:0xf bank_mask:0xf")
A("v_cvt_pk_bf16_f32 v62, v62, v63")
A("v_min_u32 v62, -2, v62")
A(f"buffer_store_dword v62, {vL4}, {R4(S_WS)}, {s_Ost} offen sc1")
k.label("L_gatherO")
stamp(12)
A(f"s_cmp_lg_u32 {sW}, 3")
A("s_cbranch_scc1 L_a6c")
sum4(WF, vR23, 32768, 8192)
A("s_waitcnt lgkmcnt(0)")
sum4b(WF)
A(f"buffer_store_dwordx4 v[{WF}:{WF+3}], {vPst}, {R4(S_WS)}, {s_PAst} offen offset:128 sc1")
A(f"buffer_store_dwordx4 v[{WF+4}:{WF+7}], {vPst}, {R4(S_WS)}, s30 offen offset:128 sc1")
k.label("L_a6c")
polln("pollO", GX, [(vOg, S_WS, s_Oin, 64 * t) for t in range(2)], sleep=OPT['slpO'], two=OPT['dpoll'])
stamp(13)
A("v_mov_b32 v60, 0")
A("v_mov_b32 v61, 1")
A("s_nop 1")
tile_gemm(TF0, GX, SEL)
put_partial(vW01, 0)
arrive(L_CNT + 12, "L_a7")
sum4(WF, vR01, 0, 8192)
A("s_waitcnt lgkmcnt(0)")
sum4b(WF)
A(f"buffer_store_dwordx4 v[{WF}:{WF+3}], {vPst}, {R4(S_WS)}, {s_PAst} offen sc1")
A(f"buffer_store_dwordx4 v[{WF+4}:{WF+7}], {vPst}, {R4(S_WS)}, s30 offen sc1")
k.label("L_a7")
A(f"s_cmp_lg_u32 {sW}, 0")
A("s_cbranch_scc1 L_fin")
stamp(14)
GX = 64
polln("pollA", GX, [(vL16, S_WS, s_PAin, 1024 * t) for t in range(4)], sleep=OPT['slpA'], two=OPT['dpoll'])
stamp(15)
for e in range(8):
    A(f"v_add_f32 v{GX+16+e}, v{GX+e}, v{GX+e+8}")
GX += 16
for e in range(4):
    A(f"v_add_f32 v{GX+e}, v{GX+e}, v{GX+e+4}")
A("s_nop 0")
for e in range(2):
    A(f"v_permlane32_swap_b32 v{GX+e}, v{GX+e+2}")
for e in range(2):
    A(f"v_add_f32 v{GX+e}, v{GX+e}, v{GX+e+2}")
A("s_nop 1")
A(f"v_permlane16_swap_b32 v{GX}, v{GX+1}")
A(f"v_add_f32 v{VOUT}, v{GX}, v{GX+1}")
round_bf16(VOUT, 60)
A(f"v_mul_f32 v{VOUT}, v{VOUT}, v{VG}")
round_bf16(VOUT, 60)
A("s_nop 1")
A(f"v_add_f32_dpp v{VOUT}, v{VOUT}, v{VOUT} row_ror:8 row_mask:0xf bank_mask:0xf")
A(f"v_cvt_pk_bf16_f32 v{VOUT}, v{VOUT}, v{VOUT}")
A(f"buffer_store_short v{VOUT}, {vOut}, {R4(S_WU)}, s15 offen")
stamp(16)
k.label("L_fin")
stamp_dump()
k.label("L_end")
A("s_endpgm")

DOC = r"""
; ---------------------------------------------------------------------------------------------------------------
; Hand-offs through d_ws: each producer first overwrites its own slots with 0xffffffff (a word it never publishes) and
; ---------------------------------------------------------------------------------------------------------------
"""
body = "\n".join(k.L)
ref = open('cdna_kernels/%s.s.ref' % NAME).read().split('\n')
head = [l for l in ref if l.startswith(';') and '@launch' not in l]
out = "\n".join(head) + "\n"
out += f"; @launch grid=(256,1,1) block=(512,1,1) lds={LDS_BYTES}\n"
out += DOC.lstrip("\n")
out += f""".amdgcn_target "amdgcn-amd-amdhsa--gfx950"
.text
.globl {NAME}_kernel
.p2align 8
.type {NAME}_kernel,@function
{NAME}_kernel:
{body}
.section .rodata,"a"
.p2align 6
.amdhsa_kernel {NAME}_kernel
  .amdhsa_next_free_vgpr 256
  .amdhsa_next_free_sgpr 102
  .amdhsa_accum_offset 256
  .amdhsa_group_segment_fixed_size 0
  .amdhsa_kernarg_size 104
  .amdhsa_user_sgpr_count 2
  .amdhsa_user_sgpr_kernarg_segment_ptr 1
  .amdhsa_system_sgpr_workgroup_id_x 1
  .amdhsa_float_denorm_mode_32 3
.end_amdhsa_kernel
"""
open(sys.argv[1], 'w').write(out)
```

```python
import sys, struct

NAME = "gated_mix__mha_block_cached__geglu_ffn__decode"
OPT = dict(stamps=0, nokv=0, slpO=0, slpA=0, slpG=1, prio=3, npre=1, D=8, nocomp=0, noaux=0, empty=0, bar0late=1, D2=0, NE=0, DE=16, kpol=1, vpol=1, wpol=1, trace=0, slpM=127, preM=0, bar0early=0, tilesS=0, cnt2=0, oracle=0, vopt=1, DL=5, DH=10, TA=950, TT=231, dpoll=0, DM=0, T1=120)
for a in sys.argv[2:]:
    kk_, v_ = a.split('=')
    assert kk_ in OPT, kk_
    OPT[kk_] = int(v_)

POL = {0: '', 1: ' nt', 2: ' sc1', 3: ' sc1 nt', 4: ' sc0 sc1', 5: ' sc0 sc1 nt', 6: ' sc0', 7: ' sc0 nt'}
def f32(x):
    return "0x%08x" % struct.unpack('<I', struct.pack('<f', x))[0]

WS_H = 0x0
WS_O = 0x10000
WS_MB = 0x20000
WS_Q = 0x80000
WS_PA = 0x100000
WS_GU = 0x200000
WS_SIZE = 0x2b0000
WS_STAMP = 0x800000
L_Q = 0
L_CNT = 256
L_ML = 512
L_ACC = 4096
L_T = 12288
LDS_BYTES = L_T + 4 * 32768

HUGE = 0x7ffffff0
LOG2E = 1.4426950408889634
SCALE = 128 ** -0.5
SPIN_MAX = 50000

class K:
    def __init__(self):
        self.L = []
    def __call__(self, s):
        self.L.append("    " + s)
    def label(self, s):
        self.L.append(s + ":")
k = K()
A = k

def srd(d, base, nbytes, addlo=None, addhi=None):
    if addlo is None:
        A(f"s_mov_b32 s{d}, s{base}")
        A(f"s_mov_b32 s{d+1}, s{base+1}")
    else:
        A(f"s_add_u32 s{d}, s{base}, {addlo}")
        A(f"s_addc_u32 s{d+1}, s{base+1}, {addhi}")
    A(f"s_mov_b32 s{d+2}, {nbytes}" if isinstance(nbytes, str) else f"s_mov_b32 s{d+2}, 0x{nbytes:x}")
    A(f"s_mov_b32 s{d+3}, 0x00020000")

def stamp_setup():
    if not OPT['stamps']:
        return
    srd(92, 40, WS_STAMP + 0x100000)
    A("s_lshl_b32 s98, s2, 3")
    A("s_add_u32 s98, s98, s3")
    A("s_lshl_b32 s98, s98, 7")
    A(f"s_add_u32 s98, s98, 0x{WS_STAMP:x}")
    A("v_writelane_b32 v255, s100, 31")

def stamp(idx):
    if not OPT['stamps']:
        return
    A("s_memrealtime s[96:97]")
    A("s_waitcnt lgkmcnt(0)")
    A(f"v_writelane_b32 v255, s96, {idx}")

def trace():
    if not OPT['trace']:
        return
    A("s_memrealtime s[96:97]")
    A("s_waitcnt lgkmcnt(0)")
    A("s_mov_b32 m0, s15")
    A("v_writelane_b32 v253, s96, m0")

def stamp_dump():
    if not OPT['stamps']:
        return
    A("v_lshlrev_b32 v254, 2, v2")
    A("v_cmp_gt_u32 vcc, 32, v2")
    A("s_and_saveexec_b64 s[96:97], vcc")
    A("buffer_store_dword v255, v254, s[92:95], s98 offen")
    if OPT['trace']:
        A("s_add_u32 s98, s98, 0x80000")
        A("buffer_store_dword v253, v254, s[92:95], s98 offen")
    A("s_mov_b64 exec, s[96:97]")

if OPT['stamps']:
    A("s_memrealtime s[100:101]")
A("s_cmp_ge_u32 s2, %d" % (0 if OPT['empty'] else 256))
A("s_cbranch_scc1 L_end")
A("s_load_dwordx16 s[16:31], s[0:1], 0")
A("s_load_dwordx8 s[32:39], s[0:1], 64")
A("s_load_dwordx2 s[40:41], s[0:1], 96")
A("v_lshrrev_b32 v1, 6, v0")
A("v_and_b32 v2, 63, v0")
A("v_readfirstlane_b32 s3, v1")
A("s_and_b32 s10, s2, 7")
A("s_lshr_b32 s11, s2, 3")
A("s_and_b32 s6, s11, 3")
A("s_lshl_b32 s7, s10, 2")
A("s_add_u32 s6, s6, s7")
A("s_lshr_b32 s7, s11, 2")
A("s_mul_i32 s15, s10, 7")
A("s_add_u32 s15, s15, s7")
A("s_and_b32 s99, s11, 3")
A("s_mov_b32 s8, 0xffff0000")
A("v_and_b32 v3, 15, v2")
A("v_lshrrev_b32 v4, 4, v2")
if OPT['stamps']:
    A("v_mov_b32 v255, 0")
A("s_cmp_ge_u32 s3, 4")
A("s_cbranch_scc1 L_aux")

NB = 8
NPRE = OPT['npre']
NBLK = 1024 // (4 * NB)
RK = 60
RV = RK + 4 * NB
XB = RV + 4 * NB
VQ = 8
VS = 16
VP = 24
VACC = 32
VM, VL, VMN, VAL = 40, 41, 42, 43
VT = 44
STEP = 4 * NB * 1024
if OPT['DL']:
    A("s_memrealtime s[82:83]")
A("s_lshl_b32 s9, s7, 5")
A("s_add_u32 s9, s9, s6")
A("s_lshl_b32 s10, s9, 20")
A("v_lshlrev_b32 v5, 4, v2")
A(f"s_mul_i32 s12, s3, {NB*1024}")
A("v_add_u32 v5, s12, v5")
NS = NB // 4
DD = OPT['D']
DCUR = [DD]
FIRSTHAVE = [16]
for i in range(NS):
    A(f"s_mov_b32 s{52+i}, {4096*i}")
    A(f"s_mov_b32 s{56+i}, {4096*i + STEP}")
A("v_mov_b32 v6, 0")
A("v_mov_b32 v7, 0")
A(f"ds_write_b64 v6, v[6:7] offset:{L_CNT}")
A(f"ds_write_b64 v6, v[6:7] offset:{L_CNT+8}")
A(f"ds_write_b64 v6, v[6:7] offset:{L_CNT+16}")
A(f"ds_write_b64 v6, v[6:7] offset:{L_CNT+24}")
A("s_waitcnt lgkmcnt(0)")
srd(44, 18, 0 if OPT['nokv'] else 0x100000, "s10", "0")
srd(48, 20, 0 if OPT['nokv'] else 0x100000, "s10", "0")
stamp_setup()
A("s_barrier")

def ldk(base, i, so=52):
    A(f"buffer_load_dwordx4 v[{base+4*i}:{base+4*i+3}], v5, s[44:47], s{so+i//4} offen offset:{(i%4)*1024}{POL[OPT['kpol']]}")
def ldv(base, i, so=52):
    A(f"buffer_load_dwordx4 v[{base+4*i}:{base+4*i+3}], v5, s[48:51], s{so+i//4} offen offset:{(i%4)*1024}{POL[OPT['vpol']]}")
def adv():
    for i in range(NS):
        A(f"s_add_u32 s{52+i}, s{52+i}, 0x{STEP:x}")
        A(f"s_add_u32 s{56+i}, s{56+i}, 0x{STEP:x}")
def issue_after(sq, first=False):
    t = sq + DCUR[0]
    if first and t < FIRSTHAVE[0]:
        return False
    so = 52 if t < 2 * NB else 56
    t %= 2 * NB
    if t < NB:
        ldk(RK, t, so)
    else:
        ldv(RV, t - NB, so)
    return True

DPPM = "row_mask:0xf bank_mask:"
def kphase(base, waits, issue):
    for i in range(NB):
        A(f"s_waitcnt vmcnt({waits(i)})")
        A(f"v_dot2_f32_bf16 v{VS+i}, v{base+4*i}, v{VQ}, 0")
        for r in range(1, 4):
            A(f"v_dot2_f32_bf16 v{VS+i}, v{base+4*i+r}, v{VQ+r}, v{VS+i}")
        if not (issue and issue_after(i, issue == 'first')):
            A("s_nop 0")
        if i >= 3 and i % 2 == 1:
            p = i - 3
            A(f"v_add_f32_dpp v{VS+p}, v{VS+p}, v{VS+p} row_ror:8 {DPPM}0x3")
            A(f"v_add_f32_dpp v{VS+p}, v{VS+p+1}, v{VS+p+1} row_ror:8 {DPPM}0xc")
    A(f"v_add_f32_dpp v{VS}, v{VS}, v{VS} row_ror:12 {DPPM}0x5")
    A(f"v_add_f32_dpp v{VS}, v{VS+2}, v{VS+2} row_ror:4 {DPPM}0xa")
    A(f"v_add_f32_dpp v{VS+6}, v{VS+6}, v{VS+6} row_ror:8 {DPPM}0x3")
    A(f"v_add_f32_dpp v{VS+6}, v{VS+7}, v{VS+7} row_ror:8 {DPPM}0xc")
    A(f"v_add_f32_dpp v{VS+4}, v{VS+4}, v{VS+4} row_ror:12 {DPPM}0x5")
    A(f"v_add_f32_dpp v{VS}, v{VS}, v{VS} quad_perm:[1,0,3,2] {DPPM}0xf")
    A(f"v_add_f32_dpp v{VS+4}, v{VS+6}, v{VS+6} row_ror:4 {DPPM}0xa")
    A("s_nop 0")
    A(f"v_add_f32_dpp v{VS}, v{VS}, v{VS} quad_perm:[2,3,0,1] {DPPM}0xf")
    A(f"v_add_f32_dpp v{VS+4}, v{VS+4}, v{VS+4} quad_perm:[1,0,3,2] {DPPM}0xf")
    A("s_nop 1")
    A(f"v_add_f32_dpp v{VS+4}, v{VS+4}, v{VS+4} quad_perm:[2,3,0,1] {DPPM}0xf")

def softmax():
    W0, W1 = VS, VS + 4
    A(f"v_cvt_pk_bf16_f32 v{VT}, v{W0}, v{W1}")
    A(f"v_lshlrev_b32 v{W0}, 16, v{VT}")
    A(f"v_and_b32 v{W1}, s8, v{VT}")
    A(f"v_mul_f32 v{W0}, s13, v{W0}")
    A(f"v_mul_f32 v{W1}, s13, v{W1}")
    A(f"v_cvt_pk_bf16_f32 v{VT}, v{W0}, v{W1}")
    A(f"v_lshlrev_b32 v{W0}, 16, v{VT}")
    A(f"v_and_b32 v{W1}, s8, v{VT}")
    A(f"v_max3_f32 v{VMN}, v{W0}, v{W1}, v{VM}")
    A("s_nop 1")
    A(f"v_max_f32_dpp v{VMN}, v{VMN}, v{VMN} row_ror:4 {DPPM}0xf")
    A("s_nop 1")
    A(f"v_max_f32_dpp v{VMN}, v{VMN}, v{VMN} row_ror:8 {DPPM}0xf")
    A(f"v_sub_f32 v{VAL}, v{VM}, v{VMN}")
    A(f"v_sub_f32 v{W0}, v{W0}, v{VMN}")
    A(f"v_sub_f32 v{W1}, v{W1}, v{VMN}")
    A(f"v_mul_f32 v{VAL}, s14, v{VAL}")
    A(f"v_mul_f32 v{W0}, s14, v{W0}")
    A(f"v_mul_f32 v{W1}, s14, v{W1}")
    A(f"v_exp_f32 v{W0}, v{W0}")
    A(f"v_exp_f32 v{W1}, v{W1}")
    A(f"v_exp_f32 v{VAL}, v{VAL}")
    A(f"v_mov_b32 v{VM}, v{VMN}")
    for i in range(NB):
        r, q = i >> 2, ((i & 1) << 1) | ((i >> 1) & 1)
        A(f"v_mov_b32_dpp v{VP+i}, v{VS+4*r} row_newbcast:{4*q} {DPPM}0xf")
    A(f"v_fma_f32 v{VL}, v{VL}, v{VAL}, v{W0}")
    for e in range(4):
        A(f"v_pk_mul_f32 v[{VACC+2*e}:{VACC+2*e+1}], v[{VACC+2*e}:{VACC+2*e+1}], v[{VAL-1}:{VAL}] op_sel:[0,1] op_sel_hi:[1,1]")
    A(f"v_add_f32 v{VL}, v{VL}, v{W1}")

def vphase(base, waits, issue):
    for i in range(NB):
        A(f"s_waitcnt vmcnt({waits(i)})")
        tb = VT + 8 * (i & 1)
        for r in range(4):
            A(f"v_lshlrev_b32 v{tb+2*r}, 16, v{base+4*i+r}")
            A(f"v_and_b32 v{tb+2*r+1}, s8, v{base+4*i+r}")
        if issue:
            issue_after(NB + i, issue == 'first')
        pp = VP + (i & ~1)
        sel = "op_sel:[0,1,0] op_sel_hi:[1,1,1]" if i & 1 else "op_sel_hi:[1,0,1]"
        for e in range(4):
            A(f"v_pk_fma_f32 v[{VACC+2*e}:{VACC+2*e+1}], v[{tb+2*e}:{tb+2*e+1}], v[{pp}:{pp+1}], v[{VACC+2*e}:{VACC+2*e+1}] {sel}")

stamp(0)
if OPT['tilesS']:
    A("s_cmp_lt_u32 s7, 7")
    A("s_cselect_b32 s13, 0x700000, 0")
    srd(64, 28, "s13")
    srd(68, 30, "s13")
    srd(72, 32, "s13")
    A("v_lshrrev_b32 v10, 3, v2")
    A("v_and_b32 v11, 7, v2")
    A("v_lshlrev_b32 v11, 4, v11")
    A("v_mul_u32_u24 v12, 7168, v10")
    A("v_add_u32 v12, v12, v11")
    A("v_lshl_add_u32 v13, v10, 11, v11")
    A("s_lshl_b32 s12, s99, 2")
    A("s_add_u32 s12, s12, s3")
    A(f"s_mul_i32 s76, s12, {64 * 7168}")
    A("s_lshl_b32 s12, s15, 7")
    A("s_add_u32 s76, s76, s12")
    A("s_lshl_b32 s12, s7, 1")
    A("s_lshr_b32 s13, s6, 4")
    A("s_add_u32 s12, s12, s13")
    A("s_lshl_b32 s12, s12, 2")
    A("s_add_u32 s12, s12, s3")
    A("s_lshl_b32 s77, s12, 17")
    A("s_and_b32 s13, s6, 15")
    A("s_lshl_b32 s13, s13, 7")
    A("s_add_u32 s77, s77, s13")
    A("s_lshl_b32 s78, s3, 13")
    A(f"s_add_u32 s78, s78, {L_T}")
    for sr, v, so, pitch, reg in ((64, "v12", "s76", 7168, 1), (68, "v12", "s76", 7168, 2), (72, "v13", "s77", 2048, 3)):
        for i in range(8):
            A(f"s_add_u32 m0, s78, {reg*32768 + i*1024}")
            A(f"s_add_u32 s11, {so}, {i*8*pitch}")
            A(f"buffer_load_dwordx4 {v}, s[{sr}:{sr+3}], s11 offen{POL[OPT['wpol']]} lds")
for p in range(NPRE + 1):
    kb = XB + p * 8 * NB if p < NPRE else RK
    vb = kb + 4 * NB
    for i in range(NB):
        ldk(kb, i)
    for i in range(NB):
        ldv(vb, i)
    if p < NPRE:
        adv()
for e in range(8):
    A(f"v_mov_b32 v{VACC+e}, 0")
A(f"v_mov_b32 v{VM}, 0xff61b1e6")
A(f"v_mov_b32 v{VL}, 0")
A(f"s_mov_b32 s13, {f32(SCALE)}")
A(f"s_mov_b32 s14, {f32(LOG2E)}")
A(f"s_mov_b32 s15, {NPRE}")
A("v_lshlrev_b32 v6, 4, v3")
stamp(1)
A("v_mov_b32 v7, 0")
if OPT['tilesS']:
    A(f"s_waitcnt vmcnt({(NPRE + 1) * 2 * NB})")
    A("s_lshl_b32 s12, s3, 2")
    A("v_mov_b32 v12, s12")
    A("v_mov_b32 v13, 1")
    A(f"ds_write_b32 v12, v13 offset:{L_CNT+16}")
k.label("L_qwait")
A(f"ds_read_b32 v12, v7 offset:{L_CNT+8}")
A("s_waitcnt lgkmcnt(0)")
A("v_readfirstlane_b32 s12, v12")
A("s_nop 1")
A("s_cmp_lg_u32 s12, 0")
A("s_cbranch_scc1 L_qdone")
A("s_sleep 1")
A("s_branch L_qwait")
k.label("L_qdone")
A(f"ds_read_b128 v[{VQ}:{VQ+3}], v6 offset:{L_Q}")
A("v_lshlrev_b32 v6, 5, v3")
A("s_waitcnt lgkmcnt(0)")
stamp(2)
tot = (NPRE + 1) * 2 * NB
for p in range(NPRE):
    kb = XB + p * 8 * NB
    kphase(kb, lambda i: tot - 1 - (2 * NB * p + i), False)
    softmax()
    vphase(kb + 4 * NB, lambda i: tot - 1 - (2 * NB * p + NB + i), False)
    if OPT['trace']:
        A("s_memrealtime s[96:97]")
        A("s_waitcnt lgkmcnt(0)")
        A(f"v_writelane_b32 v253, s96, {p}")
def stream_loop(D, tag):
    DCUR[0] = D
    first_wait = lambda sq: 2 * NB - 1 - sq + max(0, sq - (2 * NB - D))
    kphase(RK, first_wait, 'first')
    if D >= NB:
        A(f"s_branch L_mid{tag}")
    else:
        softmax()
        vphase(RV, lambda i: first_wait(NB + i), 'first')
        adv()
        trace()
        A("s_add_u32 s15, s15, 1")
    A(".p2align 6")
    k.label(f"L_loop{tag}")
    kphase(RK, lambda i: D - 1, True)
    k.label(f"L_mid{tag}")
    softmax()
    vphase(RV, lambda i: D - 1, True)
    adv()
    trace()
    A("s_add_u32 s15, s15, 1")
    A(f"s_cmp_lt_u32 s15, {NBLK - OPT['NE']}")
    A(f"s_cbranch_scc1 L_loop{tag}")
    if OPT['NE']:
        DE = OPT['DE']
        for t in range(D, DE):
            if t < NB:
                ldk(RK, t, 52)
            else:
                ldv(RV, t - NB, 52)
        if tag == "b":
            A("s_branch L_loopE")
            return
        DCUR[0] = DE
        k.label("L_loopE")
        kphase(RK, lambda i: DE - 1, True)
        softmax()
        vphase(RV, lambda i: DE - 1, True)
        adv()
        trace()
        A("s_add_u32 s15, s15, 1")
        A(f"s_cmp_lt_u32 s15, {NBLK}")
        A("s_cbranch_scc1 L_loopE")
def paced_loops(levels, thresholds):
    n = len(levels)
    def target(frm, to):
        return f"L_s{to}" if frm == to else f"L_t{frm}_{to}"
    def decide(cur):
        adv()
        trace()
        A("s_add_u32 s15, s15, 1")
        A(f"s_cmp_ge_u32 s15, {NBLK}")
        A("s_cbranch_scc1 L_sdone")
        A("s_waitcnt lgkmcnt(0)")
        A("s_sub_u32 s12, s80, s62")
        A(f"s_add_u32 s62, s62, {OPT['TT']}")
        for i in range(n - 1):
            A(f"s_cmp_lt_i32 s12, {thresholds[i]}")
            A(f"s_cbranch_scc1 {target(cur, i)}")
        A(f"s_branch {target(cur, n - 1)}")
    def body(D, waitsK, waitsV, mode):
        DCUR[0] = D
        kphase(RK, waitsK, mode)
        softmax()
        A("s_memrealtime s[80:81]")
        vphase(RV, waitsV, mode)
    fw = lambda D, have: (lambda sq: have - 1 - sq + max(0, sq - (have - D)))
    A(f"s_add_u32 s62, s82, {OPT['TA'] + OPT['TT'] * NPRE}")
    top = n - 1
    FIRSTHAVE[0] = 2 * NB
    body(levels[top], fw(levels[top], 2 * NB), lambda i: fw(levels[top], 2 * NB)(NB + i), 'first')
    decide(top)
    for to in range(n):
        D = levels[to]
        for frm in range(to):
            k.label(f"L_t{frm}_{to}")
            for t in range(levels[frm], levels[frm + 1]):
                if t < NB:
                    ldk(RK, t, 52)
                else:
                    ldv(RV, t - NB, 52)
        k.label(f"L_s{to}")
        body(D, lambda i: D - 1, lambda i: D - 1, True)
        decide(to)
        for frm in range(to + 1, n):
            k.label(f"L_t{frm}_{to}")
            FIRSTHAVE[0] = levels[frm]
            body(D, fw(D, levels[frm]), lambda i: fw(D, levels[frm])(NB + i), 'first')
            decide(to)
if OPT['DL']:
    if OPT['DM']:
        paced_loops([OPT['DL'], OPT['DM'], OPT['DH']], [0, OPT['T1']])
    else:
        paced_loops([OPT['DL'], OPT['DH']], [0])
else:
    if OPT['D2']:
        A("s_getreg_b32 s12, hwreg(HW_REG_XCC_ID)")
        A("s_and_b32 s12, s12, 1")
        A("s_cmp_eq_u32 s12, 0")
        A("s_cbranch_scc1 L_even")
        stream_loop(OPT['D2'], "b")
        A("s_branch L_sdone")
        k.label("L_even")
    stream_loop(DD, "a")
k.label("L_sdone")
A(f"v_add_f32_dpp v{VL}, v{VL}, v{VL} row_ror:4 {DPPM}0xf")
A("s_lshl_b32 s12, s3, 2")
A("v_add_u32 v7, s12, v4")
A("v_lshlrev_b32 v9, 9, v7")
A("v_add_u32 v9, v9, v6")
A(f"v_add_f32_dpp v{VL}, v{VL}, v{VL} row_ror:8 {DPPM}0xf")
A(f"ds_write_b128 v9, v[{VACC}:{VACC+3}] offset:{L_ACC}")
A(f"ds_write_b128 v9, v[{VACC+4}:{VACC+7}] offset:{L_ACC+16}")
A("v_lshlrev_b32 v7, 3, v7")
A("v_cmp_eq_u32 vcc, 0, v3")
A("s_and_saveexec_b64 s[60:61], vcc")
A(f"ds_write_b64 v7, v[{VM}:{VL}] offset:{L_ML}")
A("s_mov_b64 exec, s[60:61]")
A("s_waitcnt lgkmcnt(0)")
A("s_barrier")
stamp(3)
stamp_dump()
A("s_endpgm")


S_WQ, S_X, S_WS, S_WG, S_WU, S_WD, S_WO, S_WSF, S_DBG = 44, 48, 52, 56, 60, 64, 68, 72, 76
S_WS0, S_WS1 = 16, 20
def R4(n): return f"s[{n}:{n+3}]"
sW = "s9"
s_PAst, s_Ost, s_Qst, s_Hin, s_MB, s_Hst = "s80", "s82", "s83", "s85", "s86", "s87"
s_TQ, s_TF, s_TO, s_LDS, s_Oin, s_last, s_PAin, s_Qin = "s88", "s89", "s90", "s91", "s42", "s43", "s14", "s81"
s_GU, s_XF = "s26", "s27"
sHI = "s[4:5]"
vHUGE, vPst, vQst, vL4, vTQ, vTO, vTF, vXF, vOg, vHg = "v1", "v6", "v7", "v8", "v9", "v10", "v12", "v13", "v14", "v15"
vL16, vOut, vML, vAcc, vHst, vT23, vT01, vR01, vR23, vW01, vW23 = "v40", "v42", "v43", "v0", "v47", "v48", "v49", "v50", "v51", "v11", "v45"
XF = 16
SEL = 24
PZ = 32
DD0 = 208
WF = 96
TF0, TF1 = 160, 64
GX = 192
VG, VOUT = 44, 46

k.label("L_aux")
if OPT['prio']:
    A(f"s_setprio {OPT['prio']}")
A(f"s_sub_u32 {sW}, s3, 4")
A(f"v_cmp_lt_u32 {sHI}, 7, v3")
A("v_and_b32 v5, 7, v3")
A("v_lshrrev_b32 v62, 3, v2")
A("v_lshlrev_b32 v63, 4, v5")
A(f"v_lshl_add_u32 {vTQ}, v62, 13, v63")
A(f"v_mul_u32_u24 {vTF}, 7168, v62")
A(f"v_add_u32 {vTF}, {vTF}, v63")
A(f"v_lshl_add_u32 {vTO}, v62, 11, v63")
A(f"v_lshlrev_b32 {vXF}, 11, v5")
A(f"v_lshl_add_u32 {vXF}, v4, 4, {vXF}")
A("s_lshr_b32 s12, s7, 1")
A("s_lshl_b32 s12, s12, 2")
A(f"s_add_u32 s12, s12, {sW}")
A(f"s_lshl_b32 {s_TQ}, s12, 19")
A("s_lshl_b32 s84, s12, 7")
A("s_lshl_b32 s10, s6, 8")
A(f"s_add_u32 {s_TQ}, {s_TQ}, s10")
A("s_and_b32 s12, s7, 1")
A("s_lshl_b32 s12, s12, 7")
A(f"s_add_u32 {s_TQ}, {s_TQ}, s12")
A(f"s_lshl_b32 {s_LDS}, {sW}, 13")
A(f"s_add_u32 {s_LDS}, {s_LDS}, {L_T}")
if OPT['bar0early']:
    A("s_barrier")
A(f"s_cmp_lg_u32 {sW}, 0")
A("s_waitcnt lgkmcnt(0)")
stamp(20)
srd(S_WS, 40, WS_SIZE)
srd(S_X, 16, 0x4000)
srd(S_WQ, 22, 0x800000)
def dma(sr, v, so, goff, loff):
    A(f"s_add_u32 m0, {s_LDS}, {loff}")
    A(f"s_add_u32 s11, {so}, {goff}")
    A(f"buffer_load_dwordx4 {v}, {R4(sr)}, s11 offen{POL[OPT['wpol']]} lds")
def slot_consts():
    A("v_lshrrev_b32 v62, 3, v3")
    A("v_lshlrev_b32 v63, 5, v62")
    A("v_lshl_add_u32 v63, v4, 3, v63")
    A(f"v_mul_u32_u24 {vHst}, 7168, v5")
    A(f"v_add_u32 {vHst}, {vHst}, v63")
    A("v_lshlrev_b32 v62, 6, v62")
    A("v_lshl_add_u32 v62, v4, 4, v62")
    A(f"v_lshl_add_u32 {vPst}, v5, 17, v62")
    A(f"v_lshl_add_u32 {vQst}, v5, 11, v62")
    A(f"v_lshlrev_b32 {vL4}, 2, v2")
    A(f"v_lshlrev_b32 {vL16}, 4, v2")
    A("s_lshl_b32 s12, s6, 3")
    A("s_add_u32 s12, s12, s7")
    A(f"s_lshl_b32 {s_MB}, s12, 7")
    A(f"s_add_u32 {s_MB}, {s_MB}, 0x{WS_MB:x}")
    A(f"s_lshl_b32 {s_Ost}, s12, 8")
    A(f"s_add_u32 {s_Ost}, {s_Ost}, 0x{WS_O:x}")
    A(f"s_lshl_b32 {s_Qin}, s12, 11")
    A(f"s_add_u32 {s_Qin}, {s_Qin}, 0x{WS_Q:x}")
    A(f"s_lshl_b32 {s_Qst}, s6, 14")
    A("s_lshl_b32 s12, s7, 8")
    A(f"s_add_u32 {s_Qst}, {s_Qst}, s12")
    A(f"s_add_u32 {s_Qst}, {s_Qst}, 0x{WS_Q:x}")
    A("s_and_b32 s12, s6, 15")
    A(f"s_lshl_b32 {s_PAst}, s12, 12")
    A("s_lshl_b32 s12, s7, 1")
    A("s_lshr_b32 s13, s6, 4")
    A("s_add_u32 s12, s12, s13")
    A("s_lshl_b32 s12, s12, 8")
    A(f"s_add_u32 {s_PAst}, {s_PAst}, s12")
    A(f"s_add_u32 {s_PAst}, {s_PAst}, 0x{WS_PA:x}")
    A(f"s_lshl_b32 {s_Hst}, s15, 7")
    A(f"s_mul_i32 {s_GU}, s15, 12288")
    A(f"s_add_u32 {s_GU}, {s_GU}, 0x{WS_GU:x}")
    A("s_cmp_lt_u32 s7, 7")
    A("s_cselect_b32 s13, 0x%x, 0" % WS_SIZE)
    srd(S_WSF, 40, "s13")
    A("s_cmp_eq_u32 s99, 0")
    A("s_cselect_b32 s12, s13, 0")
    A("s_cselect_b32 s13, 0, s13")
    srd(S_WS0, 40, "s12")
    srd(S_WS1, 40, "s13")
    A("s_lshl_b32 s12, s99, 12")
    A(f"s_add_u32 s10, {s_GU}, s12")
    A("s_sub_u32 s10, s10, 4096")
    A(f"s_add_u32 s13, {s_PAst}, 0x10000")
A("s_cbranch_scc1 L_a1")
slot_consts()
for r in range(4):
    A(f"v_mov_b32 v{PZ+r}, -1")
A("v_mov_b32 v60, 0")
A("v_mov_b32 v61, 0")
P = f"v[{PZ}:{PZ+3}]"
A(f"buffer_store_dwordx4 {P}, {vQst}, {R4(S_WS)}, {s_Qst} offen sc1")
A(f"buffer_store_dwordx4 {P}, {vQst}, {R4(S_WS)}, {s_Qst} offen offset:128 sc1")
A(f"buffer_store_dwordx2 v[60:61], off, {R4(S_WS)}, {s_MB} sc1")
A(f"buffer_store_dwordx2 v[{PZ}:{PZ+1}], {vHst}, {R4(S_WS0)}, {s_Hst} offen sc1")
A(f"buffer_store_dwordx2 v[{PZ}:{PZ+1}], {vHst}, {R4(S_WS0)}, {s_Hst} offen offset:64 sc1")
for t in range(4):
    A(f"buffer_store_dwordx4 {P}, {vL16}, {R4(S_WS1)}, s10 offen offset:{1024*t} sc1")
for so in (s_PAst, "s13"):
    A(f"buffer_store_dwordx4 {P}, {vPst}, {R4(S_WS)}, {so} offen sc1")
    A(f"buffer_store_dwordx4 {P}, {vPst}, {R4(S_WS)}, {so} offen offset:128 sc1")
A(f"buffer_store_dword v{PZ}, {vL4}, {R4(S_WS)}, {s_Ost} offen sc1")
k.label("L_a1")
stamp(21)
for t in range(2):
    A(f"buffer_load_dwordx4 v[{XF+4*t}:{XF+4*t+3}], {vXF}, {R4(S_X)}, s84 offen offset:{64*t}")
for i in range(8):
    dma(S_WQ, vTQ, s_TQ, i * 8 * 8192, i * 1024)
stamp(22)
if OPT['bar0late']:
    A(f"s_cmp_lg_u32 {sW}, 0")
    A("s_cbranch_scc1 L_a1b")
    A("s_waitcnt vmcnt(10)")
    k.label("L_a1b")
if not OPT['bar0early']:
    A("s_barrier")
stamp_setup()
stamp(0)
srd(S_DBG, 38, 256)
A("v_mov_b32 v60, 0")
A("v_mov_b32 v61, 1")
A(f"s_cmp_lg_u32 {sW}, 0")
A("s_cbranch_scc1 L_a2")
A("s_waitcnt vmcnt(10)")
if OPT['cnt2']:
    A("s_and_b32 s13, s6, 1")
    A("s_lshl_b32 s13, s13, 7")
    A("s_lshr_b32 s12, s6, 1")
    A("s_lshl_b32 s12, s12, 2")
    A("s_add_u32 s13, s13, s12")
else:
    A("s_lshl_b32 s13, s6, 2")
A("v_mov_b32 v41, 1")
A("s_mov_b64 exec, 1")
A(f"buffer_atomic_add v41, off, {R4(S_DBG)}, s13 sc0 sc1")
A("s_mov_b64 exec, -1")
k.label("L_a2")
stamp(1)
slot_consts()
A("v_bfe_u32 v62, v2, 2, 2")
A("v_and_b32 v63, 3, v2")
A(f"v_lshlrev_b32 {vT01}, 10, v4")
A(f"v_lshl_add_u32 {vT01}, v62, 7, {vT01}")
A(f"v_lshl_add_u32 {vT01}, v63, 3, {vT01}")
A(f"v_add_u32 {vT01}, {s_LDS}, {vT01}")
A(f"v_add_u32 {vT23}, 0x10000, {vT01}")
A(f"v_add_u32 {vW01}, {s_LDS}, {vL16}")
A(f"v_add_u32 {vW23}, 0x10000, {vW01}")
A(f"v_add_u32 {vR01}, {L_T}, {vL16}")
A(f"v_add_u32 {vR23}, 0x10000, {vR01}")
A(f"s_lshl_b32 s13, {sW}, 11")
A(f"v_add_u32 v39, s13, {vL16}")

def tr_reads(base, vaddr, lo):
    for nb in range(4):
        for kk in range(2):
            r = base + (nb * 2 + kk) * 4
            A(f"ds_read_b64_tr_b16 v[{r}:{r+1}], {vaddr} offset:{lo + kk*4096 + nb*32}")
            A(f"ds_read_b64_tr_b16 v[{r+2}:{r+3}], {vaddr} offset:{lo + kk*4096 + 512 + nb*32}")
def tile_gemm(frag, xf, dst):
    for kk in range(2):
        for nb in range(4):
            r = frag + (nb * 2 + kk) * 4
            D = DD0 + 4 * nb
            c = "0" if kk == 0 else f"v[{D}:{D+3}]"
            A(f"v_mfma_f32_16x16x32_bf16 v[{D}:{D+3}], v[{r}:{r+3}], v[{xf+4*kk}:{xf+4*kk+3}], {c}")
    A("s_nop 5")
    for e in range(4):
        A(f"v_cndmask_b32 v{dst+e}, v{DD0+e}, v{DD0+4+e}, {sHI}")
    for e in range(4):
        A(f"v_cndmask_b32 v{dst+4+e}, v{DD0+8+e}, v{DD0+12+e}, {sHI}")
def put_partial(vaddr, lo):
    A(f"ds_write_b128 {vaddr}, v[{SEL}:{SEL+3}] offset:{lo}")
    A(f"ds_write_b128 {vaddr}, v[{SEL+4}:{SEL+7}] offset:{lo+1024}")
def arrive(cnt_off, lab):
    A("s_mov_b64 exec, 1")
    A("s_waitcnt lgkmcnt(0)")
    A(f"ds_add_rtn_u32 v62, v60, v61 offset:{cnt_off}")
    A("s_waitcnt lgkmcnt(0)")
    A("v_readfirstlane_b32 s12, v62")
    A("s_mov_b64 exec, -1")
    A("s_cmp_lg_u32 s12, 3")
    A(f"s_cbranch_scc1 {lab}")
def sum4(dst, vaddr, lo, stride):
    for w in range(4):
        for t in range(2):
            A(f"ds_read_b128 v[{dst+8*w+4*t}:{dst+8*w+4*t+3}], {vaddr} offset:{lo + w*stride + t*1024}")
def sum4b(dst, clean=True):
    for e in range(8):
        A(f"v_add_f32 v{dst+e}, v{dst+e}, v{dst+8+e}")
        A(f"v_add_f32 v{dst+16+e}, v{dst+16+e}, v{dst+24+e}")
    for e in range(8):
        A(f"v_add_f32 v{dst+e}, v{dst+e}, v{dst+16+e}")
    for e in range(8 if clean else 0):
        A(f"v_min_u32 v{dst+e}, -2, v{dst+e}")
def poll_mb(name, dword, sleep):
    A("s_mov_b32 s12, 0")
    k.label(f"L_{name}")
    A(f"buffer_load_dword v62, off, {R4(S_WS)}, {s_MB} offset:{4*dword} sc1")
    A("s_waitcnt vmcnt(0)")
    A("v_readfirstlane_b32 s10, v62")
    A("s_nop 1")
    A("s_cmp_lg_u32 s10, 0")
    A(f"s_cbranch_scc1 L_{name}_done")
    A(f"s_sleep {sleep}")
    A("s_add_u32 s12, s12, 1")
    A(f"s_cmp_lt_u32 s12, {SPIN_MAX if sleep < 32 else SPIN_MAX // 10}")
    A(f"s_cbranch_scc1 L_{name}")
    k.label(f"L_{name}_done")
def polln(name, dst, loads, sleep=2, two=False):
    n = len(loads)
    A("s_mov_b32 s12, 0")
    def round_():
        for t, (vo, sr, so, im) in enumerate(loads):
            A(f"buffer_load_dwordx4 v[{dst+4*t}:{dst+4*t+3}], {vo}, {R4(sr)}, {so} offen offset:{im} sc1")
    if two:
        round_()
        A(f"s_sleep {two}")
    k.label(f"L_{name}")
    round_()
    A(f"s_waitcnt vmcnt({n if two else 0})")
    regs = [f"v{dst+i}" for i in range(4 * n)]
    tmp = ["v60", "v61", "v62", "v63"]
    acc = []
    i = 0
    while len(acc) < 4 and i + 3 <= len(regs):
        A(f"v_max3_u32 {tmp[len(acc)]}, {regs[i]}, {regs[i+1]}, {regs[i+2]}")
        acc.append(tmp[len(acc)]); i += 3
    j = 0
    while i < len(regs):
        if i + 2 <= len(regs):
            A(f"v_max3_u32 {acc[j]}, {acc[j]}, {regs[i]}, {regs[i+1]}"); i += 2
        else:
            A(f"v_max_u32 {acc[j]}, {acc[j]}, {regs[i]}"); i += 1
        j = (j + 1) % len(acc)
    if len(acc) == 4:
        A(f"v_max3_u32 {acc[0]}, {acc[0]}, {acc[1]}, {acc[2]}")
        A(f"v_max_u32 {acc[0]}, {acc[0]}, {acc[3]}")
    else:
        assert len(acc) == 2
        A(f"v_max_u32 {acc[0]}, {acc[0]}, {acc[1]}")
    A("v_cmp_eq_u32 vcc, -1, v60")
    A(f"s_cbranch_vccz L_{name}_done")
    A("s_mov_b64 exec, vcc")
    if sleep:
        A(f"s_sleep {sleep}")
    A("s_add_u32 s12, s12, 1")
    A(f"s_cmp_lt_u32 s12, {SPIN_MAX if sleep < 32 else SPIN_MAX // 10}")
    A(f"s_cbranch_scc1 L_{name}")
    k.label(f"L_{name}_done")
    A("s_mov_b64 exec, -1")
def round_bf16(r, tmp):
    A(f"v_cvt_pk_bf16_f32 v{tmp}, v{r}, v{r}")
    A(f"v_and_b32 v{r}, s8, v{tmp}")

A(f"s_cmp_lg_u32 {sW}, 0")
A("s_cbranch_scc1 L_a2b")
A("s_waitcnt vmcnt(1)")
A("s_branch L_a2c")
k.label("L_a2b")
A("s_waitcnt vmcnt(0)")
k.label("L_a2c")
stamp(2)
tr_reads(WF, vT01, 0)
A(f"s_mov_b32 {s_last}, 0")
A("s_mov_b32 s84, 0")
A("s_waitcnt lgkmcnt(0)")
tile_gemm(WF, XF, SEL)
put_partial("v39", L_ACC)
arrive(L_CNT, "L_a4")
sum4(WF, vL16, L_ACC, 2048)
A("s_waitcnt lgkmcnt(0)")
sum4b(WF)
A(f"buffer_store_dwordx4 v[{WF}:{WF+3}], {vQst}, {R4(S_WS)}, {s_Qst} offen sc1")
A(f"buffer_store_dwordx4 v[{WF+4}:{WF+7}], {vQst}, {R4(S_WS)}, {s_Qst} offen offset:128 sc1")
A("s_mov_b32 s84, 1")
k.label("L_a4")
stamp(23)
A("s_cmp_lt_u32 s7, 7")
A("s_cselect_b32 s13, 0x700000, 0")
srd(S_WG, 28, "s13")
srd(S_WU, 30, "s13")
srd(S_WD, 32, "s13")
srd(S_WO, 24, 0x800000)
A("s_mov_b32 s28, s10")
A("s_lshl_b32 s12, s99, 2")
A(f"s_add_u32 s12, s12, {sW}")
A(f"s_lshl_b32 {s_XF}, s12, 7")
A(f"s_mul_i32 {s_TF}, s12, {64 * 7168}")
A(f"s_add_u32 {s_TF}, {s_TF}, {s_Hst}")
A("s_lshl_b32 s12, s7, 1")
A("s_lshr_b32 s13, s6, 4")
A("s_add_u32 s12, s12, s13")
A("s_lshl_b32 s12, s12, 2")
A(f"s_add_u32 s12, s12, {sW}")
A(f"s_lshl_b32 {s_TO}, s12, 17")
A("s_and_b32 s13, s6, 15")
A("s_lshl_b32 s29, s13, 7")
A(f"s_add_u32 {s_TO}, {s_TO}, s29")
A(f"s_lshl_b32 {s_Hin}, s12, 7")
A("s_lshr_b32 s13, s12, 1")
A(f"s_lshl_b32 {s_Oin}, s13, 11")
A("s_and_b32 s13, s12, 1")
A("s_lshl_b32 s13, s13, 7")
A(f"s_add_u32 {s_Oin}, {s_Oin}, s13")
A(f"s_add_u32 {s_Oin}, {s_Oin}, 0x{WS_O:x}")
A(f"s_lshl_b32 {s_PAin}, s7, 5")
A(f"s_add_u32 {s_PAin}, {s_PAin}, s6")
A(f"s_lshl_b32 {s_PAin}, {s_PAin}, 12")
A(f"s_add_u32 {s_PAin}, {s_PAin}, 0x{WS_PA:x}")
A("s_lshl_b32 s15, s7, 11")
A("s_add_u32 s15, s15, s29")
A("s_lshr_b32 s13, s6, 4")
A("s_lshl_b32 s13, s13, 6")
A("s_add_u32 s15, s15, s13")
A(f"s_add_u32 s30, {s_PAst}, 0x10000")
A(f"v_mov_b32 {vHUGE}, 0x{HUGE:x}")
A(f"v_lshlrev_b32 {vOut}, 3, v5")
A(f"v_lshl_add_u32 {vOut}, v4, 1, {vOut}")
A(f"v_cndmask_b32 {vOut}, {vOut}, {vHUGE}, {sHI}")
A(f"v_lshlrev_b32 {vML}, 3, v3")
A(f"v_lshlrev_b32 {vAcc}, 3, v2")
A(f"v_lshlrev_b32 {vOg}, 8, v5")
A(f"v_lshl_add_u32 {vOg}, v4, 4, {vOg}")
A(f"v_mul_u32_u24 {vHg}, 7168, v5")
A(f"v_lshl_add_u32 {vHg}, v4, 4, {vHg}")
A(f"s_cmp_lg_u32 {sW}, 0")
A("s_cbranch_scc1 L_a5")
A("s_waitcnt vmcnt(2)")
A("s_cmp_lg_u32 s84, 0")
A("s_cbranch_scc1 L_a4b")
A("s_waitcnt vmcnt(0)")
k.label("L_a4b")
stamp(7)
A("v_readfirstlane_b32 s12, v41")
A("s_nop 1")
A("s_and_b32 s12, s12, 7")
A("s_cmp_lg_u32 s12, 7")
A("s_cbranch_scc1 L_a3")
A("v_lshlrev_b32 v62, 7, v2")
A("s_lshl_b32 s13, s6, 10")
A(f"s_add_u32 s13, s13, 0x{WS_MB:x}")
A("s_mov_b64 exec, 0xff")
A(f"buffer_store_dword v61, v62, {R4(S_WS)}, s13 offen sc1")
A("s_mov_b64 exec, 1")
A("v_mov_b32 v41, 1")
A(f"buffer_atomic_add v41, off, {R4(S_DBG)}, 0 offset:{192 if OPT['cnt2'] else 128} sc0 sc1")
A(f"s_mov_b32 {s_last}, 2")
A("s_mov_b64 exec, -1")
k.label("L_a3")
if not OPT['oracle']:
    poll_mb("go1", 0, OPT['slpG'])
stamp(4)
polln("pollQ", GX, [(vL16, S_WS, s_Qin, 1024 * t) for t in range(2)], sleep=1)
for e in range(4):
    A(f"v_add_f32 v{GX+e}, v{GX+e}, v{GX+4+e}")
A("v_and_b32 v63, 31, v2")
A("v_lshlrev_b32 v63, 3, v63")
for e in range(2):
    A(f"v_permlane32_swap_b32 v{GX+e}, v{GX+e+2}")
for e in range(2):
    A(f"v_add_f32 v{GX+e}, v{GX+e}, v{GX+e+2}")
A(f"v_cvt_pk_bf16_f32 v62, v{GX}, v{GX+1}")
A("v_lshrrev_b32 v36, 5, v2")
A("v_lshl_add_u32 v63, v36, 2, v63")
A(f"ds_write_b32 v63, v62 offset:{L_Q}")
A("v_mov_b32 v60, 0")
A("v_mov_b32 v61, 1")
A("s_waitcnt lgkmcnt(0)")
A(f"ds_write_b32 v60, v61 offset:{L_CNT+8}")
A(f"s_cmp_lg_u32 {s_last}, 2")
A("s_cbranch_scc1 L_a5")
A("v_readfirstlane_b32 s12, v41")
A("s_nop 1")
A("s_and_b32 s12, s12, 31")
A("s_cmp_lg_u32 s12, 31")
A("s_cbranch_scc1 L_a5")
A("v_lshlrev_b32 v62, 7, v2")
for t in range(4):
    A(f"s_mov_b32 s13, 0x{WS_MB + t*8192:x}")
    A(f"buffer_store_dword v61, v62, {R4(S_WS)}, s13 offen offset:4 sc1")
k.label("L_a5")
A("s_setprio 0")
stamp(5)
if OPT['noaux'] == 1:
    A("s_barrier")
    stamp(11)
    A("s_branch L_fin")
for t in range(2):
    A(f"buffer_load_dwordx4 v[{XF+4*t}:{XF+4*t+3}], {vXF}, {R4(S_X)}, {s_XF} offen offset:{64*t}")
if not OPT['tilesS']:
    for i in range(8):
        dma(S_WG, vTF, s_TF, i * 8 * 7168, 32768 + i * 1024)
    for i in range(8):
        dma(S_WU, vTF, s_TF, i * 8 * 7168, 65536 + i * 1024)
for i in range(8):
    dma(S_WO, vTO, s_TO, i * 8 * 2048, i * 1024)
if not OPT['tilesS']:
    for i in range(8):
        dma(S_WD, vTO, s_TO, i * 8 * 2048, 98304 + i * 1024)
srd(S_WQ, 34, 2048)
A("s_lshl_b32 s13, s7, 11")
A("v_lshlrev_b32 v5, 5, v2")
A(f"buffer_load_dwordx4 v[{GX}:{GX+3}], v5, {R4(S_X)}, s13 offen")
A(f"buffer_load_dwordx4 v[{GX+4}:{GX+7}], v5, {R4(S_X)}, s13 offen offset:16")
A(f"buffer_load_dwordx4 v[{GX+8}:{GX+11}], v5, {R4(S_WQ)}, 0 offen")
A(f"buffer_load_dwordx4 v[{GX+12}:{GX+15}], v5, {R4(S_WQ)}, 0 offen offset:16")
if OPT['tilesS']:
    A(f"s_lshl_b32 s12, {sW}, 2")
    A("v_mov_b32 v62, s12")
    k.label("L_tw")
    A(f"ds_read_b32 v63, v62 offset:{L_CNT+16}")
    A("s_waitcnt lgkmcnt(0)")
    A("v_readfirstlane_b32 s12, v63")
    A("s_nop 1")
    A("s_cmp_lg_u32 s12, 0")
    A("s_cbranch_scc1 L_tw_done")
    A("s_sleep 4")
    A("s_branch L_tw")
    k.label("L_tw_done")
    A("s_waitcnt vmcnt(12)")
else:
    A("s_waitcnt vmcnt(20)")
tr_reads(WF, vT01, 32768)
tr_reads(WF + 32, vT23, 0)
A("s_waitcnt lgkmcnt(0)")
tile_gemm(WF, XF, SEL)
put_partial(vW01, 32768)
tile_gemm(WF + 32, XF, SEL)
put_partial(vW23, 0)
A("s_mov_b32 s84, 0")
arrive(L_CNT + 4, "L_a6")
sum4(WF, vR01, 32768, 8192)
sum4(WF + 32, vR23, 0, 8192)
A("s_waitcnt lgkmcnt(0)")
sum4b(WF)
sum4b(WF + 32)
for t, r in enumerate((WF, WF + 4, WF + 32, WF + 36)):
    A(f"buffer_store_dwordx4 v[{r}:{r+3}], {vL16}, {R4(S_WS1)}, s28 offen offset:{1024*t} sc1")
A("s_mov_b32 s84, 1")
k.label("L_a6")
stamp(3)
A("s_waitcnt vmcnt(0)")
stamp(6)
tr_reads(TF0, vT01, 0)
tr_reads(TF1, vT23, 32768)
srd(S_WU, 36, 16384)
A(f"v_mov_b32 v{VG}, 0")
for r in range(8):
    A(f"v_lshlrev_b32 v60, 16, v{GX+r}")
    A(f"v_and_b32 v61, s8, v{GX+r}")
    A(f"v_lshlrev_b32 v62, 16, v{GX+8+r}")
    A(f"v_and_b32 v63, s8, v{GX+8+r}")
    A("v_mul_f32 v60, v60, v62")
    A("v_mul_f32 v61, v61, v63")
    A("v_cvt_pk_bf16_f32 v60, v60, v61")
    A("v_lshlrev_b32 v61, 16, v60")
    A("v_and_b32 v60, s8, v60")
    A(f"v_add_f32 v{VG}, v{VG}, v61")
    A(f"v_add_f32 v{VG}, v{VG}, v60")
for rot in (8, 4, 2, 1):
    A("s_nop 1")
    A(f"v_add_f32_dpp v{VG}, v{VG}, v{VG} row_ror:{rot} row_mask:0xf bank_mask:0xf")
A(f"v_mov_b32 v60, v{VG}")
A("s_nop 1")
A(f"v_permlane32_swap_b32 v{VG}, v60")
A(f"v_add_f32 v{VG}, v{VG}, v60")
A(f"v_mov_b32 v60, v{VG}")
A("s_nop 1")
A(f"v_permlane16_swap_b32 v{VG}, v60")
A(f"v_add_f32 v{VG}, v{VG}, v60")
round_bf16(VG, 60)
A(f"s_mov_b32 s10, {f32(-LOG2E)}")
A(f"v_mul_f32 v{VG}, s10, v{VG}")
A(f"v_exp_f32 v{VG}, v{VG}")
A("s_nop 0")
A(f"v_add_f32 v{VG}, 1.0, v{VG}")
A(f"v_rcp_f32 v{VG}, v{VG}")
A("s_nop 0")
round_bf16(VG, 60)
A(f"v_sub_f32 v60, 1.0, v{VG}")
round_bf16(60, 61)
A(f"v_cndmask_b32 v{VG}, v{VG}, v60, {sHI}")
for _ in range(OPT['preM']):
    A("s_sleep 127")
poll_mb("go2", 1, OPT['slpM'])
stamp(8)
A("s_cmp_eq_u32 s84, 0")
A("s_cbranch_scc1 L_a6b")
G0, U0, T0 = WF, WF + 32, WF + 8
for p in range(3):
    A(f"s_add_u32 s13, {s_GU}, {4096*p}")
    polln(f"pollG{p}", GX, [(vL16, S_WS0, "s13", 1024 * t) for t in range(4)], sleep=OPT['slpM'])
    for e in range(8):
        A(f"v_add_f32 v{G0+e}, v{G0+e}, v{GX+e}")
        A(f"v_add_f32 v{U0+e}, v{U0+e}, v{GX+8+e}")
for t in range(4):
    A(f"v_cvt_pk_bf16_f32 v{T0+t}, v{G0+2*t}, v{G0+2*t+1}")
    A(f"v_cvt_pk_bf16_f32 v{T0+4+t}, v{U0+2*t}, v{U0+2*t+1}")
for t in range(4):
    A(f"v_lshlrev_b32 v{G0+2*t}, 16, v{T0+t}")
    A(f"v_and_b32 v{G0+2*t+1}, s8, v{T0+t}")
    A(f"v_lshlrev_b32 v{U0+2*t}, 16, v{T0+4+t}")
    A(f"v_and_b32 v{U0+2*t+1}, s8, v{T0+4+t}")
A(f"s_mov_b32 s10, {f32(0.044715)}")
A(f"s_mov_b32 s11, {f32(-2.0*0.7978845608028654*LOG2E)}")
for e in range(8):
    A(f"v_mul_f32 v{T0+e}, v{G0+e}, v{G0+e}")
for e in range(8):
    A(f"v_fma_f32 v{T0+e}, v{T0+e}, s10, 1.0")
for e in range(8):
    A(f"v_mul_f32 v{T0+e}, v{T0+e}, v{G0+e}")
for e in range(8):
    A(f"v_mul_f32 v{T0+e}, s11, v{T0+e}")
for e in range(8):
    A(f"v_exp_f32 v{T0+e}, v{T0+e}")
for e in range(8):
    A(f"v_add_f32 v{T0+e}, 1.0, v{T0+e}")
for e in range(8):
    A(f"v_rcp_f32 v{T0+e}, v{T0+e}")
for e in range(8):
    A(f"v_mul_f32 v{G0+e}, v{G0+e}, v{T0+e}")
for t in range(4):
    A(f"v_cvt_pk_bf16_f32 v{T0+t}, v{G0+2*t}, v{G0+2*t+1}")
for t in range(4):
    A(f"v_lshlrev_b32 v{G0+2*t}, 16, v{T0+t}")
    A(f"v_and_b32 v{G0+2*t+1}, s8, v{T0+t}")
for e in range(8):
    A(f"v_mul_f32 v{G0+e}, v{G0+e}, v{U0+e}")
for t in range(4):
    A(f"v_cvt_pk_bf16_f32 v{PZ+t}, v{G0+2*t}, v{G0+2*t+1}")
for t in range(4):
    A(f"v_min_u32 v{PZ+t}, -2, v{PZ+t}")
A(f"buffer_store_dwordx2 v[{PZ}:{PZ+1}], {vHst}, {R4(S_WS0)}, {s_Hst} offen sc1")
A(f"buffer_store_dwordx2 v[{PZ+2}:{PZ+3}], {vHst}, {R4(S_WS0)}, {s_Hst} offen offset:64 sc1")
k.label("L_a6b")
polln("pollH", GX, [(vHg, S_WSF, s_Hin, 64 * t) for t in range(2)], sleep=OPT['slpM'])
A("s_waitcnt lgkmcnt(0)")
A("s_nop 2")
tile_gemm(TF1, GX, SEL)
put_partial(vW23, 32768)
stamp(9)
A(f"s_mov_b32 s10, {f32(LOG2E)}")
A(f"s_setprio {OPT['prio']}")
A("s_waitcnt lgkmcnt(0)")
A("s_barrier")
stamp(11)
A(f"s_cmp_lg_u32 {sW}, 0")
A("s_cbranch_scc1 L_gatherO")
CA = 96
A(f"ds_read_b64 v[60:61], {vML} offset:{L_ML}")
for s_ in range(16):
    A(f"ds_read_b64 v[{CA+2*s_}:{CA+2*s_+1}], {vAcc} offset:{L_ACC + s_*512}")
A("s_waitcnt lgkmcnt(15)")
A("v_max_f32_dpp v62, v60, v60 row_ror:8 row_mask:0xf bank_mask:0xf")
for rot in (4, 2, 1):
    A("s_nop 1")
    A(f"v_max_f32_dpp v62, v62, v62 row_ror:{rot} row_mask:0xf bank_mask:0xf")
A("v_sub_f32 v60, v60, v62")
A("v_mul_f32 v60, s10, v60")
A("v_exp_f32 v60, v60")
A("s_nop 0")
A("v_mul_f32 v61, v61, v60")
for rot in (8, 4, 2, 1):
    A("s_nop 1")
    A(f"v_add_f32_dpp v61, v61, v61 row_ror:{rot} row_mask:0xf bank_mask:0xf")
A("v_rcp_f32 v61, v61")
A("s_nop 0")
A("v_mul_f32 v60, v60, v61")
A("s_waitcnt lgkmcnt(0)")
A("s_nop 0")
A(f"v_mul_f32_dpp v62, v60, v{CA} row_newbcast:0 row_mask:0xf bank_mask:0xf")
A(f"v_mul_f32_dpp v63, v60, v{CA+1} row_newbcast:0 row_mask:0xf bank_mask:0xf")
for s_ in range(1, 16):
    A(f"v_fmac_f32_dpp v62, v60, v{CA+2*s_} row_newbcast:{s_} row_mask:0xf bank_mask:0xf")
    A(f"v_fmac_f32_dpp v63, v60, v{CA+2*s_+1} row_newbcast:{s_} row_mask:0xf bank_mask:0xf")
A("v_cvt_pk_bf16_f32 v62, v62, v63")
A("v_min_u32 v62, -2, v62")
A(f"buffer_store_dword v62, {vL4}, {R4(S_WS)}, {s_Ost} offen sc1")
k.label("L_gatherO")
stamp(12)
A(f"s_cmp_lg_u32 {sW}, 3")
A("s_cbranch_scc1 L_a6c")
sum4(WF, vR23, 32768, 8192)
A("s_waitcnt lgkmcnt(0)")
sum4b(WF)
A(f"buffer_store_dwordx4 v[{WF}:{WF+3}], {vPst}, {R4(S_WS)}, {s_PAst} offen offset:128 sc1")
A(f"buffer_store_dwordx4 v[{WF+4}:{WF+7}], {vPst}, {R4(S_WS)}, s30 offen offset:128 sc1")
k.label("L_a6c")
polln("pollO", GX, [(vOg, S_WS, s_Oin, 64 * t) for t in range(2)], sleep=OPT['slpO'], two=OPT['dpoll'])
stamp(13)
A("v_mov_b32 v60, 0")
A("v_mov_b32 v61, 1")
A("s_nop 1")
tile_gemm(TF0, GX, SEL)
put_partial(vW01, 0)
arrive(L_CNT + 12, "L_a7")
sum4(WF, vR01, 0, 8192)
A("s_waitcnt lgkmcnt(0)")
sum4b(WF)
A(f"buffer_store_dwordx4 v[{WF}:{WF+3}], {vPst}, {R4(S_WS)}, {s_PAst} offen sc1")
A(f"buffer_store_dwordx4 v[{WF+4}:{WF+7}], {vPst}, {R4(S_WS)}, s30 offen sc1")
k.label("L_a7")
A(f"s_cmp_lg_u32 {sW}, 0")
A("s_cbranch_scc1 L_fin")
stamp(14)
GX = 64
polln("pollA", GX, [(vL16, S_WS, s_PAin, 1024 * t) for t in range(4)], sleep=OPT['slpA'], two=OPT['dpoll'])
stamp(15)
for e in range(8):
    A(f"v_add_f32 v{GX+16+e}, v{GX+e}, v{GX+e+8}")
GX += 16
for e in range(4):
    A(f"v_add_f32 v{GX+e}, v{GX+e}, v{GX+e+4}")
A("s_nop 0")
for e in range(2):
    A(f"v_permlane32_swap_b32 v{GX+e}, v{GX+e+2}")
for e in range(2):
    A(f"v_add_f32 v{GX+e}, v{GX+e}, v{GX+e+2}")
A("s_nop 1")
A(f"v_permlane16_swap_b32 v{GX}, v{GX+1}")
A(f"v_add_f32 v{VOUT}, v{GX}, v{GX+1}")
round_bf16(VOUT, 60)
A(f"v_mul_f32 v{VOUT}, v{VOUT}, v{VG}")
round_bf16(VOUT, 60)
A("s_nop 1")
A(f"v_add_f32_dpp v{VOUT}, v{VOUT}, v{VOUT} row_ror:8 row_mask:0xf bank_mask:0xf")
A(f"v_cvt_pk_bf16_f32 v{VOUT}, v{VOUT}, v{VOUT}")
A(f"buffer_store_short v{VOUT}, {vOut}, {R4(S_WU)}, s15 offen")
stamp(16)
k.label("L_fin")
stamp_dump()
k.label("L_end")
A("s_endpgm")

DOC = r"""
; ---------------------------------------------------------------------------------------------------------------
; Hand-offs through d_ws: each producer first overwrites its own slots with 0xffffffff (a word it never publishes) and
; ---------------------------------------------------------------------------------------------------------------
"""
body = "\n".join(k.L)
ref = open('cdna_kernels/%s.s.ref' % NAME).read().split('\n')
head = [l for l in ref if l.startswith(';') and '@launch' not in l]
out = "\n".join(head) + "\n"
out += f"; @launch grid=(256,1,1) block=(512,1,1) lds={LDS_BYTES}\n"
out += DOC.lstrip("\n")
out += f""".amdgcn_target "amdgcn-amd-amdhsa--gfx950"
.text
.globl {NAME}_kernel
.p2align 8
.type {NAME}_kernel,@function
{NAME}_kernel:
{body}
.section .rodata,"a"
.p2align 6
.amdhsa_kernel {NAME}_kernel
  .amdhsa_next_free_vgpr 256
  .amdhsa_next_free_sgpr 102
  .amdhsa_accum_offset 256
  .amdhsa_group_segment_fixed_size 0
  .amdhsa_kernarg_size 104
  .amdhsa_user_sgpr_count 2
  .amdhsa_user_sgpr_kernarg_segment_ptr 1
  .amdhsa_system_sgpr_workgroup_id_x 1
  .amdhsa_float_denorm_mode_32 3
.end_amdhsa_kernel
"""
open(sys.argv[1], 'w').write(out)
```

```python
import sys, struct

NAME = "gated_mix__mha_block_cached__geglu_ffn__decode"
OPT = dict(stamps=0, nokv=0, slpO=0, slpA=0, slpG=1, prio=3, npre=1, D=8, nocomp=0, noaux=0, empty=0, bar0late=1, D2=0, NE=0, DE=16, kpol=1, vpol=1, wpol=1, trace=0, slpM=127, preM=0, bar0early=0, tilesS=0, cnt2=0, oracle=0, vopt=1, DL=5, DH=10, TA=950, TT=231, dpoll=0, DM=0, T1=120, J0=0)
for a in sys.argv[2:]:
    kk_, v_ = a.split('=')
    assert kk_ in OPT, kk_
    OPT[kk_] = int(v_)

POL = {0: '', 1: ' nt', 2: ' sc1', 3: ' sc1 nt', 4: ' sc0 sc1', 5: ' sc0 sc1 nt', 6: ' sc0', 7: ' sc0 nt'}
def f32(x):
    return "0x%08x" % struct.unpack('<I', struct.pack('<f', x))[0]

WS_H = 0x0
WS_O = 0x10000
WS_MB = 0x20000
WS_Q = 0x80000
WS_PA = 0x100000
WS_GU = 0x200000
WS_SIZE = 0x2b0000
WS_STAMP = 0x800000
L_Q = 0
L_CNT = 256
L_ML = 512
L_ACC = 4096
L_T = 12288
LDS_BYTES = L_T + 4 * 32768

HUGE = 0x7ffffff0
LOG2E = 1.4426950408889634
SCALE = 128 ** -0.5
SPIN_MAX = 50000

class K:
    def __init__(self):
        self.L = []
    def __call__(self, s):
        self.L.append("    " + s)
    def label(self, s):
        self.L.append(s + ":")
k = K()
A = k

def srd(d, base, nbytes, addlo=None, addhi=None):
    if addlo is None:
        A(f"s_mov_b32 s{d}, s{base}")
        A(f"s_mov_b32 s{d+1}, s{base+1}")
    else:
        A(f"s_add_u32 s{d}, s{base}, {addlo}")
        A(f"s_addc_u32 s{d+1}, s{base+1}, {addhi}")
    A(f"s_mov_b32 s{d+2}, {nbytes}" if isinstance(nbytes, str) else f"s_mov_b32 s{d+2}, 0x{nbytes:x}")
    A(f"s_mov_b32 s{d+3}, 0x00020000")

def stamp_setup():
    if not OPT['stamps']:
        return
    srd(92, 40, WS_STAMP + 0x100000)
    A("s_lshl_b32 s98, s2, 3")
    A("s_add_u32 s98, s98, s3")
    A("s_lshl_b32 s98, s98, 7")
    A(f"s_add_u32 s98, s98, 0x{WS_STAMP:x}")
    A("v_writelane_b32 v255, s100, 31")

def stamp(idx):
    if not OPT['stamps']:
        return
    A("s_memrealtime s[96:97]")
    A("s_waitcnt lgkmcnt(0)")
    A(f"v_writelane_b32 v255, s96, {idx}")

def trace():
    if not OPT['trace']:
        return
    A("s_memrealtime s[96:97]")
    A("s_waitcnt lgkmcnt(0)")
    A("s_mov_b32 m0, s15")
    A("v_writelane_b32 v253, s96, m0")

def stamp_dump():
    if not OPT['stamps']:
        return
    A("v_lshlrev_b32 v254, 2, v2")
    A("v_cmp_gt_u32 vcc, 32, v2")
    A("s_and_saveexec_b64 s[96:97], vcc")
    A("buffer_store_dword v255, v254, s[92:95], s98 offen")
    if OPT['trace']:
        A("s_add_u32 s98, s98, 0x80000")
        A("buffer_store_dword v253, v254, s[92:95], s98 offen")
    A("s_mov_b64 exec, s[96:97]")

if OPT['stamps']:
    A("s_memrealtime s[100:101]")
A("s_cmp_ge_u32 s2, %d" % (0 if OPT['empty'] else 256))
A("s_cbranch_scc1 L_end")
A("s_load_dwordx16 s[16:31], s[0:1], 0")
A("s_load_dwordx8 s[32:39], s[0:1], 64")
A("s_load_dwordx2 s[40:41], s[0:1], 96")
A("v_lshrrev_b32 v1, 6, v0")
A("v_and_b32 v2, 63, v0")
A("v_readfirstlane_b32 s3, v1")
A("s_and_b32 s10, s2, 7")
A("s_lshr_b32 s11, s2, 3")
A("s_and_b32 s6, s11, 3")
A("s_lshl_b32 s7, s10, 2")
A("s_add_u32 s6, s6, s7")
A("s_lshr_b32 s7, s11, 2")
A("s_mul_i32 s15, s10, 7")
A("s_add_u32 s15, s15, s7")
A("s_and_b32 s99, s11, 3")
A("s_mov_b32 s8, 0xffff0000")
A("v_and_b32 v3, 15, v2")
A("v_lshrrev_b32 v4, 4, v2")
if OPT['stamps']:
    A("v_mov_b32 v255, 0")
A("s_cmp_ge_u32 s3, 4")
A("s_cbranch_scc1 L_aux")

NB = 8
NPRE = OPT['npre']
NBLK = 1024 // (4 * NB)
RK = 60
RV = RK + 4 * NB
XB = RV + 4 * NB
VQ = 8
VS = 16
VP = 24
VACC = 32
VM, VL, VMN, VAL = 40, 41, 42, 43
VT = 44
STEP = 4 * NB * 1024
if OPT['DL']:
    A("s_memrealtime s[82:83]")
A("s_lshl_b32 s9, s7, 5")
A("s_add_u32 s9, s9, s6")
A("s_lshl_b32 s10, s9, 20")
A("v_lshlrev_b32 v5, 4, v2")
A(f"s_mul_i32 s12, s3, {NB*1024}")
A("v_add_u32 v5, s12, v5")
NS = NB // 4
DD = OPT['D']
DCUR = [DD]
FIRSTHAVE = [16]
for i in range(NS):
    A(f"s_mov_b32 s{52+i}, {4096*i}")
    A(f"s_mov_b32 s{56+i}, {4096*i + STEP}")
A("v_mov_b32 v6, 0")
A("v_mov_b32 v7, 0")
A(f"ds_write_b64 v6, v[6:7] offset:{L_CNT}")
A(f"ds_write_b64 v6, v[6:7] offset:{L_CNT+8}")
A(f"ds_write_b64 v6, v[6:7] offset:{L_CNT+16}")
A(f"ds_write_b64 v6, v[6:7] offset:{L_CNT+24}")
A("s_waitcnt lgkmcnt(0)")
srd(44, 18, 0 if OPT['nokv'] else 0x100000, "s10", "0")
srd(48, 20, 0 if OPT['nokv'] else 0x100000, "s10", "0")
stamp_setup()
A("s_barrier")

def ldk(base, i, so=52):
    A(f"buffer_load_dwordx4 v[{base+4*i}:{base+4*i+3}], v5, s[44:47], s{so+i//4} offen offset:{(i%4)*1024}{POL[OPT['kpol']]}")
def ldv(base, i, so=52):
    A(f"buffer_load_dwordx4 v[{base+4*i}:{base+4*i+3}], v5, s[48:51], s{so+i//4} offen offset:{(i%4)*1024}{POL[OPT['vpol']]}")
def adv():
    for i in range(NS):
        A(f"s_add_u32 s{52+i}, s{52+i}, 0x{STEP:x}")
        A(f"s_add_u32 s{56+i}, s{56+i}, 0x{STEP:x}")
def issue_after(sq, first=False):
    t = sq + DCUR[0]
    if first and t < FIRSTHAVE[0]:
        return False
    so = 52 if t < 2 * NB else 56
    t %= 2 * NB
    if t < NB:
        ldk(RK, t, so)
    else:
        ldv(RV, t - NB, so)
    return True

DPPM = "row_mask:0xf bank_mask:"
def kphase(base, waits, issue):
    for i in range(NB):
        A(f"s_waitcnt vmcnt({waits(i)})")
        A(f"v_dot2_f32_bf16 v{VS+i}, v{base+4*i}, v{VQ}, 0")
        for r in range(1, 4):
            A(f"v_dot2_f32_bf16 v{VS+i}, v{base+4*i+r}, v{VQ+r}, v{VS+i}")
        if not (issue and issue_after(i, issue == 'first')):
            A("s_nop 0")
        if i >= 3 and i % 2 == 1:
            p = i - 3
            A(f"v_add_f32_dpp v{VS+p}, v{VS+p}, v{VS+p} row_ror:8 {DPPM}0x3")
            A(f"v_add_f32_dpp v{VS+p}, v{VS+p+1}, v{VS+p+1} row_ror:8 {DPPM}0xc")
    A(f"v_add_f32_dpp v{VS}, v{VS}, v{VS} row_ror:12 {DPPM}0x5")
    A(f"v_add_f32_dpp v{VS}, v{VS+2}, v{VS+2} row_ror:4 {DPPM}0xa")
    A(f"v_add_f32_dpp v{VS+6}, v{VS+6}, v{VS+6} row_ror:8 {DPPM}0x3")
    A(f"v_add_f32_dpp v{VS+6}, v{VS+7}, v{VS+7} row_ror:8 {DPPM}0xc")
    A(f"v_add_f32_dpp v{VS+4}, v{VS+4}, v{VS+4} row_ror:12 {DPPM}0x5")
    A(f"v_add_f32_dpp v{VS}, v{VS}, v{VS} quad_perm:[1,0,3,2] {DPPM}0xf")
    A(f"v_add_f32_dpp v{VS+4}, v{VS+6}, v{VS+6} row_ror:4 {DPPM}0xa")
    A("s_nop 0")
    A(f"v_add_f32_dpp v{VS}, v{VS}, v{VS} quad_perm:[2,3,0,1] {DPPM}0xf")
    A(f"v_add_f32_dpp v{VS+4}, v{VS+4}, v{VS+4} quad_perm:[1,0,3,2] {DPPM}0xf")
    A("s_nop 1")
    A(f"v_add_f32_dpp v{VS+4}, v{VS+4}, v{VS+4} quad_perm:[2,3,0,1] {DPPM}0xf")

def softmax():
    W0, W1 = VS, VS + 4
    A(f"v_cvt_pk_bf16_f32 v{VT}, v{W0}, v{W1}")
    A(f"v_lshlrev_b32 v{W0}, 16, v{VT}")
    A(f"v_and_b32 v{W1}, s8, v{VT}")
    A(f"v_mul_f32 v{W0}, s13, v{W0}")
    A(f"v_mul_f32 v{W1}, s13, v{W1}")
    A(f"v_cvt_pk_bf16_f32 v{VT}, v{W0}, v{W1}")
    A(f"v_lshlrev_b32 v{W0}, 16, v{VT}")
    A(f"v_and_b32 v{W1}, s8, v{VT}")
    A(f"v_max3_f32 v{VMN}, v{W0}, v{W1}, v{VM}")
    A("s_nop 1")
    A(f"v_max_f32_dpp v{VMN}, v{VMN}, v{VMN} row_ror:4 {DPPM}0xf")
    A("s_nop 1")
    A(f"v_max_f32_dpp v{VMN}, v{VMN}, v{VMN} row_ror:8 {DPPM}0xf")
    A(f"v_sub_f32 v{VAL}, v{VM}, v{VMN}")
    A(f"v_sub_f32 v{W0}, v{W0}, v{VMN}")
    A(f"v_sub_f32 v{W1}, v{W1}, v{VMN}")
    A(f"v_mul_f32 v{VAL}, s14, v{VAL}")
    A(f"v_mul_f32 v{W0}, s14, v{W0}")
    A(f"v_mul_f32 v{W1}, s14, v{W1}")
    A(f"v_exp_f32 v{W0}, v{W0}")
    A(f"v_exp_f32 v{W1}, v{W1}")
    A(f"v_exp_f32 v{VAL}, v{VAL}")
    A(f"v_mov_b32 v{VM}, v{VMN}")
    for i in range(NB):
        r, q = i >> 2, ((i & 1) << 1) | ((i >> 1) & 1)
        A(f"v_mov_b32_dpp v{VP+i}, v{VS+4*r} row_newbcast:{4*q} {DPPM}0xf")
    A(f"v_fma_f32 v{VL}, v{VL}, v{VAL}, v{W0}")
    for e in range(4):
        A(f"v_pk_mul_f32 v[{VACC+2*e}:{VACC+2*e+1}], v[{VACC+2*e}:{VACC+2*e+1}], v[{VAL-1}:{VAL}] op_sel:[0,1] op_sel_hi:[1,1]")
    A(f"v_add_f32 v{VL}, v{VL}, v{W1}")

def vphase(base, waits, issue):
    for i in range(NB):
        A(f"s_waitcnt vmcnt({waits(i)})")
        tb = VT + 8 * (i & 1)
        for r in range(4):
            A(f"v_lshlrev_b32 v{tb+2*r}, 16, v{base+4*i+r}")
            A(f"v_and_b32 v{tb+2*r+1}, s8, v{base+4*i+r}")
        if issue:
            issue_after(NB + i, issue == 'first')
        pp = VP + (i & ~1)
        sel = "op_sel:[0,1,0] op_sel_hi:[1,1,1]" if i & 1 else "op_sel_hi:[1,0,1]"
        for e in range(4):
            A(f"v_pk_fma_f32 v[{VACC+2*e}:{VACC+2*e+1}], v[{tb+2*e}:{tb+2*e+1}], v[{pp}:{pp+1}], v[{VACC+2*e}:{VACC+2*e+1}] {sel}")

stamp(0)
if OPT['tilesS']:
    A("s_cmp_lt_u32 s7, 7")
    A("s_cselect_b32 s13, 0x700000, 0")
    srd(64, 28, "s13")
    srd(68, 30, "s13")
    srd(72, 32, "s13")
    A("v_lshrrev_b32 v10, 3, v2")
    A("v_and_b32 v11, 7, v2")
    A("v_lshlrev_b32 v11, 4, v11")
    A("v_mul_u32_u24 v12, 7168, v10")
    A("v_add_u32 v12, v12, v11")
    A("v_lshl_add_u32 v13, v10, 11, v11")
    A("s_lshl_b32 s12, s99, 2")
    A("s_add_u32 s12, s12, s3")
    A(f"s_mul_i32 s76, s12, {64 * 7168}")
    A("s_lshl_b32 s12, s15, 7")
    A("s_add_u32 s76, s76, s12")
    A("s_lshl_b32 s12, s7, 1")
    A("s_lshr_b32 s13, s6, 4")
    A("s_add_u32 s12, s12, s13")
    A("s_lshl_b32 s12, s12, 2")
    A("s_add_u32 s12, s12, s3")
    A("s_lshl_b32 s77, s12, 17")
    A("s_and_b32 s13, s6, 15")
    A("s_lshl_b32 s13, s13, 7")
    A("s_add_u32 s77, s77, s13")
    A("s_lshl_b32 s78, s3, 13")
    A(f"s_add_u32 s78, s78, {L_T}")
    for sr, v, so, pitch, reg in ((64, "v12", "s76", 7168, 1), (68, "v12", "s76", 7168, 2), (72, "v13", "s77", 2048, 3)):
        for i in range(8):
            A(f"s_add_u32 m0, s78, {reg*32768 + i*1024}")
            A(f"s_add_u32 s11, {so}, {i*8*pitch}")
            A(f"buffer_load_dwordx4 {v}, s[{sr}:{sr+3}], s11 offen{POL[OPT['wpol']]} lds")
for p in range(NPRE + 1):
    kb = XB + p * 8 * NB if p < NPRE else RK
    vb = kb + 4 * NB
    for i in range(NB):
        ldk(kb, i)
    for i in range(NB):
        ldv(vb, i)
    if p < NPRE:
        adv()
for e in range(8):
    A(f"v_mov_b32 v{VACC+e}, 0")
A(f"v_mov_b32 v{VM}, 0xff61b1e6")
A(f"v_mov_b32 v{VL}, 0")
A(f"s_mov_b32 s13, {f32(SCALE)}")
A(f"s_mov_b32 s14, {f32(LOG2E)}")
A(f"s_mov_b32 s15, {NPRE}")
A("v_lshlrev_b32 v6, 4, v3")
stamp(1)
A("v_mov_b32 v7, 0")
if OPT['tilesS']:
    A(f"s_waitcnt vmcnt({(NPRE + 1) * 2 * NB})")
    A("s_lshl_b32 s12, s3, 2")
    A("v_mov_b32 v12, s12")
    A("v_mov_b32 v13, 1")
    A(f"ds_write_b32 v12, v13 offset:{L_CNT+16}")
k.label("L_qwait")
A(f"ds_read_b32 v12, v7 offset:{L_CNT+8}")
A("s_waitcnt lgkmcnt(0)")
A("v_readfirstlane_b32 s12, v12")
A("s_nop 1")
A("s_cmp_lg_u32 s12, 0")
A("s_cbranch_scc1 L_qdone")
A("s_sleep 1")
A("s_branch L_qwait")
k.label("L_qdone")
A(f"ds_read_b128 v[{VQ}:{VQ+3}], v6 offset:{L_Q}")
A("v_lshlrev_b32 v6, 5, v3")
A("s_waitcnt lgkmcnt(0)")
stamp(2)
tot = (NPRE + 1) * 2 * NB
for p in range(NPRE):
    kb = XB + p * 8 * NB
    kphase(kb, lambda i: tot - 1 - (2 * NB * p + i), False)
    softmax()
    vphase(kb + 4 * NB, lambda i: tot - 1 - (2 * NB * p + NB + i), False)
    if OPT['trace']:
        A("s_memrealtime s[96:97]")
        A("s_waitcnt lgkmcnt(0)")
        A(f"v_writelane_b32 v253, s96, {p}")
def stream_loop(D, tag):
    DCUR[0] = D
    first_wait = lambda sq: 2 * NB - 1 - sq + max(0, sq - (2 * NB - D))
    kphase(RK, first_wait, 'first')
    if D >= NB:
        A(f"s_branch L_mid{tag}")
    else:
        softmax()
        vphase(RV, lambda i: first_wait(NB + i), 'first')
        adv()
        trace()
        A("s_add_u32 s15, s15, 1")
    A(".p2align 6")
    k.label(f"L_loop{tag}")
    kphase(RK, lambda i: D - 1, True)
    k.label(f"L_mid{tag}")
    softmax()
    vphase(RV, lambda i: D - 1, True)
    adv()
    trace()
    A("s_add_u32 s15, s15, 1")
    A(f"s_cmp_lt_u32 s15, {NBLK - OPT['NE']}")
    A(f"s_cbranch_scc1 L_loop{tag}")
    if OPT['NE']:
        DE = OPT['DE']
        for t in range(D, DE):
            if t < NB:
                ldk(RK, t, 52)
            else:
                ldv(RV, t - NB, 52)
        if tag == "b":
            A("s_branch L_loopE")
            return
        DCUR[0] = DE
        k.label("L_loopE")
        kphase(RK, lambda i: DE - 1, True)
        softmax()
        vphase(RV, lambda i: DE - 1, True)
        adv()
        trace()
        A("s_add_u32 s15, s15, 1")
        A(f"s_cmp_lt_u32 s15, {NBLK}")
        A("s_cbranch_scc1 L_loopE")
def paced_loops(levels, thresholds):
    n = len(levels)
    def target(frm, to):
        return f"L_s{to}" if frm == to else f"L_t{frm}_{to}"
    def decide(cur):
        adv()
        trace()
        A("s_add_u32 s15, s15, 1")
        A(f"s_cmp_ge_u32 s15, {NBLK}")
        A("s_cbranch_scc1 L_sdone")
        A("s_waitcnt lgkmcnt(0)")
        A("s_sub_u32 s12, s80, s62")
        A(f"s_add_u32 s62, s62, {OPT['TT']}")
        if OPT['J0']:
            A(f"s_cmp_lt_u32 s15, {OPT['J0']}")
            A(f"s_cbranch_scc1 {target(cur, n - 1)}")
        for i in range(n - 1):
            A(f"s_cmp_lt_i32 s12, {thresholds[i]}")
            A(f"s_cbranch_scc1 {target(cur, i)}")
        A(f"s_branch {target(cur, n - 1)}")
    def body(D, waitsK, waitsV, mode):
        DCUR[0] = D
        kphase(RK, waitsK, mode)
        softmax()
        A("s_memrealtime s[80:81]")
        vphase(RV, waitsV, mode)
    fw = lambda D, have: (lambda sq: have - 1 - sq + max(0, sq - (have - D)))
    A(f"s_add_u32 s62, s82, {OPT['TA'] + OPT['TT'] * NPRE}")
    top = n - 1
    FIRSTHAVE[0] = 2 * NB
    body(levels[top], fw(levels[top], 2 * NB), lambda i: fw(levels[top], 2 * NB)(NB + i), 'first')
    decide(top)
    for to in range(n):
        D = levels[to]
        for frm in range(to):
            k.label(f"L_t{frm}_{to}")
            for t in range(levels[frm], levels[frm + 1]):
                if t < NB:
                    ldk(RK, t, 52)
                else:
                    ldv(RV, t - NB, 52)
        k.label(f"L_s{to}")
        body(D, lambda i: D - 1, lambda i: D - 1, True)
        decide(to)
        for frm in range(to + 1, n):
            k.label(f"L_t{frm}_{to}")
            FIRSTHAVE[0] = levels[frm]
            body(D, fw(D, levels[frm]), lambda i: fw(D, levels[frm])(NB + i), 'first')
            decide(to)
if OPT['DL']:
    if OPT['DM']:
        paced_loops([OPT['DL'], OPT['DM'], OPT['DH']], [0, OPT['T1']])
    else:
        paced_loops([OPT['DL'], OPT['DH']], [0])
else:
    if OPT['D2']:
        A("s_getreg_b32 s12, hwreg(HW_REG_XCC_ID)")
        A("s_and_b32 s12, s12, 1")
        A("s_cmp_eq_u32 s12, 0")
        A("s_cbranch_scc1 L_even")
        stream_loop(OPT['D2'], "b")
        A("s_branch L_sdone")
        k.label("L_even")
    stream_loop(DD, "a")
k.label("L_sdone")
A(f"v_add_f32_dpp v{VL}, v{VL}, v{VL} row_ror:4 {DPPM}0xf")
A("s_lshl_b32 s12, s3, 2")
A("v_add_u32 v7, s12, v4")
A("v_lshlrev_b32 v9, 9, v7")
A("v_add_u32 v9, v9, v6")
A(f"v_add_f32_dpp v{VL}, v{VL}, v{VL} row_ror:8 {DPPM}0xf")
A(f"ds_write_b128 v9, v[{VACC}:{VACC+3}] offset:{L_ACC}")
A(f"ds_write_b128 v9, v[{VACC+4}:{VACC+7}] offset:{L_ACC+16}")
A("v_lshlrev_b32 v7, 3, v7")
A("v_cmp_eq_u32 vcc, 0, v3")
A("s_and_saveexec_b64 s[60:61], vcc")
A(f"ds_write_b64 v7, v[{VM}:{VL}] offset:{L_ML}")
A("s_mov_b64 exec, s[60:61]")
A("s_waitcnt lgkmcnt(0)")
A("s_barrier")
stamp(3)
stamp_dump()
A("s_endpgm")


S_WQ, S_X, S_WS, S_WG, S_WU, S_WD, S_WO, S_WSF, S_DBG = 44, 48, 52, 56, 60, 64, 68, 72, 76
S_WS0, S_WS1 = 16, 20
def R4(n): return f"s[{n}:{n+3}]"
sW = "s9"
s_PAst, s_Ost, s_Qst, s_Hin, s_MB, s_Hst = "s80", "s82", "s83", "s85", "s86", "s87"
s_TQ, s_TF, s_TO, s_LDS, s_Oin, s_last, s_PAin, s_Qin = "s88", "s89", "s90", "s91", "s42", "s43", "s14", "s81"
s_GU, s_XF = "s26", "s27"
sHI = "s[4:5]"
vHUGE, vPst, vQst, vL4, vTQ, vTO, vTF, vXF, vOg, vHg = "v1", "v6", "v7", "v8", "v9", "v10", "v12", "v13", "v14", "v15"
vL16, vOut, vML, vAcc, vHst, vT23, vT01, vR01, vR23, vW01, vW23 = "v40", "v42", "v43", "v0", "v47", "v48", "v49", "v50", "v51", "v11", "v45"
XF = 16
SEL = 24
PZ = 32
DD0 = 208
WF = 96
TF0, TF1 = 160, 64
GX = 192
VG, VOUT = 44, 46

k.label("L_aux")
if OPT['prio']:
    A(f"s_setprio {OPT['prio']}")
A(f"s_sub_u32 {sW}, s3, 4")
A(f"v_cmp_lt_u32 {sHI}, 7, v3")
A("v_and_b32 v5, 7, v3")
A("v_lshrrev_b32 v62, 3, v2")
A("v_lshlrev_b32 v63, 4, v5")
A(f"v_lshl_add_u32 {vTQ}, v62, 13, v63")
A(f"v_mul_u32_u24 {vTF}, 7168, v62")
A(f"v_add_u32 {vTF}, {vTF}, v63")
A(f"v_lshl_add_u32 {vTO}, v62, 11, v63")
A(f"v_lshlrev_b32 {vXF}, 11, v5")
A(f"v_lshl_add_u32 {vXF}, v4, 4, {vXF}")
A("s_lshr_b32 s12, s7, 1")
A("s_lshl_b32 s12, s12, 2")
A(f"s_add_u32 s12, s12, {sW}")
A(f"s_lshl_b32 {s_TQ}, s12, 19")
A("s_lshl_b32 s84, s12, 7")
A("s_lshl_b32 s10, s6, 8")
A(f"s_add_u32 {s_TQ}, {s_TQ}, s10")
A("s_and_b32 s12, s7, 1")
A("s_lshl_b32 s12, s12, 7")
A(f"s_add_u32 {s_TQ}, {s_TQ}, s12")
A(f"s_lshl_b32 {s_LDS}, {sW}, 13")
A(f"s_add_u32 {s_LDS}, {s_LDS}, {L_T}")
if OPT['bar0early']:
    A("s_barrier")
A(f"s_cmp_lg_u32 {sW}, 0")
A("s_waitcnt lgkmcnt(0)")
stamp(20)
srd(S_WS, 40, WS_SIZE)
srd(S_X, 16, 0x4000)
srd(S_WQ, 22, 0x800000)
def dma(sr, v, so, goff, loff):
    A(f"s_add_u32 m0, {s_LDS}, {loff}")
    A(f"s_add_u32 s11, {so}, {goff}")
    A(f"buffer_load_dwordx4 {v}, {R4(sr)}, s11 offen{POL[OPT['wpol']]} lds")
def slot_consts():
    A("v_lshrrev_b32 v62, 3, v3")
    A("v_lshlrev_b32 v63, 5, v62")
    A("v_lshl_add_u32 v63, v4, 3, v63")
    A(f"v_mul_u32_u24 {vHst}, 7168, v5")
    A(f"v_add_u32 {vHst}, {vHst}, v63")
    A("v_lshlrev_b32 v62, 6, v62")
    A("v_lshl_add_u32 v62, v4, 4, v62")
    A(f"v_lshl_add_u32 {vPst}, v5, 17, v62")
    A(f"v_lshl_add_u32 {vQst}, v5, 11, v62")
    A(f"v_lshlrev_b32 {vL4}, 2, v2")
    A(f"v_lshlrev_b32 {vL16}, 4, v2")
    A("s_lshl_b32 s12, s6, 3")
    A("s_add_u32 s12, s12, s7")
    A(f"s_lshl_b32 {s_MB}, s12, 7")
    A(f"s_add_u32 {s_MB}, {s_MB}, 0x{WS_MB:x}")
    A(f"s_lshl_b32 {s_Ost}, s12, 8")
    A(f"s_add_u32 {s_Ost}, {s_Ost}, 0x{WS_O:x}")
    A(f"s_lshl_b32 {s_Qin}, s12, 11")
    A(f"s_add_u32 {s_Qin}, {s_Qin}, 0x{WS_Q:x}")
    A(f"s_lshl_b32 {s_Qst}, s6, 14")
    A("s_lshl_b32 s12, s7, 8")
    A(f"s_add_u32 {s_Qst}, {s_Qst}, s12")
    A(f"s_add_u32 {s_Qst}, {s_Qst}, 0x{WS_Q:x}")
    A("s_and_b32 s12, s6, 15")
    A(f"s_lshl_b32 {s_PAst}, s12, 12")
    A("s_lshl_b32 s12, s7, 1")
    A("s_lshr_b32 s13, s6, 4")
    A("s_add_u32 s12, s12, s13")
    A("s_lshl_b32 s12, s12, 8")
    A(f"s_add_u32 {s_PAst}, {s_PAst}, s12")
    A(f"s_add_u32 {s_PAst}, {s_PAst}, 0x{WS_PA:x}")
    A(f"s_lshl_b32 {s_Hst}, s15, 7")
    A(f"s_mul_i32 {s_GU}, s15, 12288")
    A(f"s_add_u32 {s_GU}, {s_GU}, 0x{WS_GU:x}")
    A("s_cmp_lt_u32 s7, 7")
    A("s_cselect_b32 s13, 0x%x, 0" % WS_SIZE)
    srd(S_WSF, 40, "s13")
    A("s_cmp_eq_u32 s99, 0")
    A("s_cselect_b32 s12, s13, 0")
    A("s_cselect_b32 s13, 0, s13")
    srd(S_WS0, 40, "s12")
    srd(S_WS1, 40, "s13")
    A("s_lshl_b32 s12, s99, 12")
    A(f"s_add_u32 s10, {s_GU}, s12")
    A("s_sub_u32 s10, s10, 4096")
    A(f"s_add_u32 s13, {s_PAst}, 0x10000")
A("s_cbranch_scc1 L_a1")
slot_consts()
for r in range(4):
    A(f"v_mov_b32 v{PZ+r}, -1")
A("v_mov_b32 v60, 0")
A("v_mov_b32 v61, 0")
P = f"v[{PZ}:{PZ+3}]"
A(f"buffer_store_dwordx4 {P}, {vQst}, {R4(S_WS)}, {s_Qst} offen sc1")
A(f"buffer_store_dwordx4 {P}, {vQst}, {R4(S_WS)}, {s_Qst} offen offset:128 sc1")
A(f"buffer_store_dwordx2 v[60:61], off, {R4(S_WS)}, {s_MB} sc1")
A(f"buffer_store_dwordx2 v[{PZ}:{PZ+1}], {vHst}, {R4(S_WS0)}, {s_Hst} offen sc1")
A(f"buffer_store_dwordx2 v[{PZ}:{PZ+1}], {vHst}, {R4(S_WS0)}, {s_Hst} offen offset:64 sc1")
for t in range(4):
    A(f"buffer_store_dwordx4 {P}, {vL16}, {R4(S_WS1)}, s10 offen offset:{1024*t} sc1")
for so in (s_PAst, "s13"):
    A(f"buffer_store_dwordx4 {P}, {vPst}, {R4(S_WS)}, {so} offen sc1")
    A(f"buffer_store_dwordx4 {P}, {vPst}, {R4(S_WS)}, {so} offen offset:128 sc1")
A(f"buffer_store_dword v{PZ}, {vL4}, {R4(S_WS)}, {s_Ost} offen sc1")
k.label("L_a1")
stamp(21)
for t in range(2):
    A(f"buffer_load_dwordx4 v[{XF+4*t}:{XF+4*t+3}], {vXF}, {R4(S_X)}, s84 offen offset:{64*t}")
for i in range(8):
    dma(S_WQ, vTQ, s_TQ, i * 8 * 8192, i * 1024)
stamp(22)
if OPT['bar0late']:
    A(f"s_cmp_lg_u32 {sW}, 0")
    A("s_cbranch_scc1 L_a1b")
    A("s_waitcnt vmcnt(10)")
    k.label("L_a1b")
if not OPT['bar0early']:
    A("s_barrier")
stamp_setup()
stamp(0)
srd(S_DBG, 38, 256)
A("v_mov_b32 v60, 0")
A("v_mov_b32 v61, 1")
A(f"s_cmp_lg_u32 {sW}, 0")
A("s_cbranch_scc1 L_a2")
A("s_waitcnt vmcnt(10)")
if OPT['cnt2']:
    A("s_and_b32 s13, s6, 1")
    A("s_lshl_b32 s13, s13, 7")
    A("s_lshr_b32 s12, s6, 1")
    A("s_lshl_b32 s12, s12, 2")
    A("s_add_u32 s13, s13, s12")
else:
    A("s_lshl_b32 s13, s6, 2")
A("v_mov_b32 v41, 1")
A("s_mov_b64 exec, 1")
A(f"buffer_atomic_add v41, off, {R4(S_DBG)}, s13 sc0 sc1")
A("s_mov_b64 exec, -1")
k.label("L_a2")
stamp(1)
slot_consts()
A("v_bfe_u32 v62, v2, 2, 2")
A("v_and_b32 v63, 3, v2")
A(f"v_lshlrev_b32 {vT01}, 10, v4")
A(f"v_lshl_add_u32 {vT01}, v62, 7, {vT01}")
A(f"v_lshl_add_u32 {vT01}, v63, 3, {vT01}")
A(f"v_add_u32 {vT01}, {s_LDS}, {vT01}")
A(f"v_add_u32 {vT23}, 0x10000, {vT01}")
A(f"v_add_u32 {vW01}, {s_LDS}, {vL16}")
A(f"v_add_u32 {vW23}, 0x10000, {vW01}")
A(f"v_add_u32 {vR01}, {L_T}, {vL16}")
A(f"v_add_u32 {vR23}, 0x10000, {vR01}")
A(f"s_lshl_b32 s13, {sW}, 11")
A(f"v_add_u32 v39, s13, {vL16}")

def tr_reads(base, vaddr, lo):
    for nb in range(4):
        for kk in range(2):
            r = base + (nb * 2 + kk) * 4
            A(f"ds_read_b64_tr_b16 v[{r}:{r+1}], {vaddr} offset:{lo + kk*4096 + nb*32}")
            A(f"ds_read_b64_tr_b16 v[{r+2}:{r+3}], {vaddr} offset:{lo + kk*4096 + 512 + nb*32}")
def tile_gemm(frag, xf, dst):
    for kk in range(2):
        for nb in range(4):
            r = frag + (nb * 2 + kk) * 4
            D = DD0 + 4 * nb
            c = "0" if kk == 0 else f"v[{D}:{D+3}]"
            A(f"v_mfma_f32_16x16x32_bf16 v[{D}:{D+3}], v[{r}:{r+3}], v[{xf+4*kk}:{xf+4*kk+3}], {c}")
    A("s_nop 5")
    for e in range(4):
        A(f"v_cndmask_b32 v{dst+e}, v{DD0+e}, v{DD0+4+e}, {sHI}")
    for e in range(4):
        A(f"v_cndmask_b32 v{dst+4+e}, v{DD0+8+e}, v{DD0+12+e}, {sHI}")
def put_partial(vaddr, lo):
    A(f"ds_write_b128 {vaddr}, v[{SEL}:{SEL+3}] offset:{lo}")
    A(f"ds_write_b128 {vaddr}, v[{SEL+4}:{SEL+7}] offset:{lo+1024}")
def arrive(cnt_off, lab):
    A("s_mov_b64 exec, 1")
    A("s_waitcnt lgkmcnt(0)")
    A(f"ds_add_rtn_u32 v62, v60, v61 offset:{cnt_off}")
    A("s_waitcnt lgkmcnt(0)")
    A("v_readfirstlane_b32 s12, v62")
    A("s_mov_b64 exec, -1")
    A("s_cmp_lg_u32 s12, 3")
    A(f"s_cbranch_scc1 {lab}")
def sum4(dst, vaddr, lo, stride):
    for w in range(4):
        for t in range(2):
            A(f"ds_read_b128 v[{dst+8*w+4*t}:{dst+8*w+4*t+3}], {vaddr} offset:{lo + w*stride + t*1024}")
def sum4b(dst, clean=True):
    for e in range(8):
        A(f"v_add_f32 v{dst+e}, v{dst+e}, v{dst+8+e}")
        A(f"v_add_f32 v{dst+16+e}, v{dst+16+e}, v{dst+24+e}")
    for e in range(8):
        A(f"v_add_f32 v{dst+e}, v{dst+e}, v{dst+16+e}")
    for e in range(8 if clean else 0):
        A(f"v_min_u32 v{dst+e}, -2, v{dst+e}")
def poll_mb(name, dword, sleep):
    A("s_mov_b32 s12, 0")
    k.label(f"L_{name}")
    A(f"buffer_load_dword v62, off, {R4(S_WS)}, {s_MB} offset:{4*dword} sc1")
    A("s_waitcnt vmcnt(0)")
    A("v_readfirstlane_b32 s10, v62")
    A("s_nop 1")
    A("s_cmp_lg_u32 s10, 0")
    A(f"s_cbranch_scc1 L_{name}_done")
    A(f"s_sleep {sleep}")
    A("s_add_u32 s12, s12, 1")
    A(f"s_cmp_lt_u32 s12, {SPIN_MAX if sleep < 32 else SPIN_MAX // 10}")
    A(f"s_cbranch_scc1 L_{name}")
    k.label(f"L_{name}_done")
def polln(name, dst, loads, sleep=2, two=False):
    n = len(loads)
    A("s_mov_b32 s12, 0")
    def round_():
        for t, (vo, sr, so, im) in enumerate(loads):
            A(f"buffer_load_dwordx4 v[{dst+4*t}:{dst+4*t+3}], {vo}, {R4(sr)}, {so} offen offset:{im} sc1")
    if two:
        round_()
        A(f"s_sleep {two}")
    k.label(f"L_{name}")
    round_()
    A(f"s_waitcnt vmcnt({n if two else 0})")
    regs = [f"v{dst+i}" for i in range(4 * n)]
    tmp = ["v60", "v61", "v62", "v63"]
    acc = []
    i = 0
    while len(acc) < 4 and i + 3 <= len(regs):
        A(f"v_max3_u32 {tmp[len(acc)]}, {regs[i]}, {regs[i+1]}, {regs[i+2]}")
        acc.append(tmp[len(acc)]); i += 3
    j = 0
    while i < len(regs):
        if i + 2 <= len(regs):
            A(f"v_max3_u32 {acc[j]}, {acc[j]}, {regs[i]}, {regs[i+1]}"); i += 2
        else:
            A(f"v_max_u32 {acc[j]}, {acc[j]}, {regs[i]}"); i += 1
        j = (j + 1) % len(acc)
    if len(acc) == 4:
        A(f"v_max3_u32 {acc[0]}, {acc[0]}, {acc[1]}, {acc[2]}")
        A(f"v_max_u32 {acc[0]}, {acc[0]}, {acc[3]}")
    else:
        assert len(acc) == 2
        A(f"v_max_u32 {acc[0]}, {acc[0]}, {acc[1]}")
    A("v_cmp_eq_u32 vcc, -1, v60")
    A(f"s_cbranch_vccz L_{name}_done")
    A("s_mov_b64 exec, vcc")
    if sleep:
        A(f"s_sleep {sleep}")
    A("s_add_u32 s12, s12, 1")
    A(f"s_cmp_lt_u32 s12, {SPIN_MAX if sleep < 32 else SPIN_MAX // 10}")
    A(f"s_cbranch_scc1 L_{name}")
    k.label(f"L_{name}_done")
    A("s_mov_b64 exec, -1")
def round_bf16(r, tmp):
    A(f"v_cvt_pk_bf16_f32 v{tmp}, v{r}, v{r}")
    A(f"v_and_b32 v{r}, s8, v{tmp}")

A(f"s_cmp_lg_u32 {sW}, 0")
A("s_cbranch_scc1 L_a2b")
A("s_waitcnt vmcnt(1)")
A("s_branch L_a2c")
k.label("L_a2b")
A("s_waitcnt vmcnt(0)")
k.label("L_a2c")
stamp(2)
tr_reads(WF, vT01, 0)
A(f"s_mov_b32 {s_last}, 0")
A("s_mov_b32 s84, 0")
A("s_waitcnt lgkmcnt(0)")
tile_gemm(WF, XF, SEL)
put_partial("v39", L_ACC)
arrive(L_CNT, "L_a4")
sum4(WF, vL16, L_ACC, 2048)
A("s_waitcnt lgkmcnt(0)")
sum4b(WF)
A(f"buffer_store_dwordx4 v[{WF}:{WF+3}], {vQst}, {R4(S_WS)}, {s_Qst} offen sc1")
A(f"buffer_store_dwordx4 v[{WF+4}:{WF+7}], {vQst}, {R4(S_WS)}, {s_Qst} offen offset:128 sc1")
A("s_mov_b32 s84, 1")
k.label("L_a4")
stamp(23)
A("s_cmp_lt_u32 s7, 7")
A("s_cselect_b32 s13, 0x700000, 0")
srd(S_WG, 28, "s13")
srd(S_WU, 30, "s13")
srd(S_WD, 32, "s13")
srd(S_WO, 24, 0x800000)
A("s_mov_b32 s28, s10")
A("s_lshl_b32 s12, s99, 2")
A(f"s_add_u32 s12, s12, {sW}")
A(f"s_lshl_b32 {s_XF}, s12, 7")
A(f"s_mul_i32 {s_TF}, s12, {64 * 7168}")
A(f"s_add_u32 {s_TF}, {s_TF}, {s_Hst}")
A("s_lshl_b32 s12, s7, 1")
A("s_lshr_b32 s13, s6, 4")
A("s_add_u32 s12, s12, s13")
A("s_lshl_b32 s12, s12, 2")
A(f"s_add_u32 s12, s12, {sW}")
A(f"s_lshl_b32 {s_TO}, s12, 17")
A("s_and_b32 s13, s6, 15")
A("s_lshl_b32 s29, s13, 7")
A(f"s_add_u32 {s_TO}, {s_TO}, s29")
A(f"s_lshl_b32 {s_Hin}, s12, 7")
A("s_lshr_b32 s13, s12, 1")
A(f"s_lshl_b32 {s_Oin}, s13, 11")
A("s_and_b32 s13, s12, 1")
A("s_lshl_b32 s13, s13, 7")
A(f"s_add_u32 {s_Oin}, {s_Oin}, s13")
A(f"s_add_u32 {s_Oin}, {s_Oin}, 0x{WS_O:x}")
A(f"s_lshl_b32 {s_PAin}, s7, 5")
A(f"s_add_u32 {s_PAin}, {s_PAin}, s6")
A(f"s_lshl_b32 {s_PAin}, {s_PAin}, 12")
A(f"s_add_u32 {s_PAin}, {s_PAin}, 0x{WS_PA:x}")
A("s_lshl_b32 s15, s7, 11")
A("s_add_u32 s15, s15, s29")
A("s_lshr_b32 s13, s6, 4")
A("s_lshl_b32 s13, s13, 6")
A("s_add_u32 s15, s15, s13")
A(f"s_add_u32 s30, {s_PAst}, 0x10000")
A(f"v_mov_b32 {vHUGE}, 0x{HUGE:x}")
A(f"v_lshlrev_b32 {vOut}, 3, v5")
A(f"v_lshl_add_u32 {vOut}, v4, 1, {vOut}")
A(f"v_cndmask_b32 {vOut}, {vOut}, {vHUGE}, {sHI}")
A(f"v_lshlrev_b32 {vML}, 3, v3")
A(f"v_lshlrev_b32 {vAcc}, 3, v2")
A(f"v_lshlrev_b32 {vOg}, 8, v5")
A(f"v_lshl_add_u32 {vOg}, v4, 4, {vOg}")
A(f"v_mul_u32_u24 {vHg}, 7168, v5")
A(f"v_lshl_add_u32 {vHg}, v4, 4, {vHg}")
A(f"s_cmp_lg_u32 {sW}, 0")
A("s_cbranch_scc1 L_a5")
A("s_waitcnt vmcnt(2)")
A("s_cmp_lg_u32 s84, 0")
A("s_cbranch_scc1 L_a4b")
A("s_waitcnt vmcnt(0)")
k.label("L_a4b")
stamp(7)
A("v_readfirstlane_b32 s12, v41")
A("s_nop 1")
A("s_and_b32 s12, s12, 7")
A("s_cmp_lg_u32 s12, 7")
A("s_cbranch_scc1 L_a3")
A("v_lshlrev_b32 v62, 7, v2")
A("s_lshl_b32 s13, s6, 10")
A(f"s_add_u32 s13, s13, 0x{WS_MB:x}")
A("s_mov_b64 exec, 0xff")
A(f"buffer_store_dword v61, v62, {R4(S_WS)}, s13 offen sc1")
A("s_mov_b64 exec, 1")
A("v_mov_b32 v41, 1")
A(f"buffer_atomic_add v41, off, {R4(S_DBG)}, 0 offset:{192 if OPT['cnt2'] else 128} sc0 sc1")
A(f"s_mov_b32 {s_last}, 2")
A("s_mov_b64 exec, -1")
k.label("L_a3")
if not OPT['oracle']:
    poll_mb("go1", 0, OPT['slpG'])
stamp(4)
polln("pollQ", GX, [(vL16, S_WS, s_Qin, 1024 * t) for t in range(2)], sleep=1)
for e in range(4):
    A(f"v_add_f32 v{GX+e}, v{GX+e}, v{GX+4+e}")
A("v_and_b32 v63, 31, v2")
A("v_lshlrev_b32 v63, 3, v63")
for e in range(2):
    A(f"v_permlane32_swap_b32 v{GX+e}, v{GX+e+2}")
for e in range(2):
    A(f"v_add_f32 v{GX+e}, v{GX+e}, v{GX+e+2}")
A(f"v_cvt_pk_bf16_f32 v62, v{GX}, v{GX+1}")
A("v_lshrrev_b32 v36, 5, v2")
A("v_lshl_add_u32 v63, v36, 2, v63")
A(f"ds_write_b32 v63, v62 offset:{L_Q}")
A("v_mov_b32 v60, 0")
A("v_mov_b32 v61, 1")
A("s_waitcnt lgkmcnt(0)")
A(f"ds_write_b32 v60, v61 offset:{L_CNT+8}")
A(f"s_cmp_lg_u32 {s_last}, 2")
A("s_cbranch_scc1 L_a5")
A("v_readfirstlane_b32 s12, v41")
A("s_nop 1")
A("s_and_b32 s12, s12, 31")
A("s_cmp_lg_u32 s12, 31")
A("s_cbranch_scc1 L_a5")
A("v_lshlrev_b32 v62, 7, v2")
for t in range(4):
    A(f"s_mov_b32 s13, 0x{WS_MB + t*8192:x}")
    A(f"buffer_store_dword v61, v62, {R4(S_WS)}, s13 offen offset:4 sc1")
k.label("L_a5")
A("s_setprio 0")
stamp(5)
if OPT['noaux'] == 1:
    A("s_barrier")
    stamp(11)
    A("s_branch L_fin")
for t in range(2):
    A(f"buffer_load_dwordx4 v[{XF+4*t}:{XF+4*t+3}], {vXF}, {R4(S_X)}, {s_XF} offen offset:{64*t}")
if not OPT['tilesS']:
    for i in range(8):
        dma(S_WG, vTF, s_TF, i * 8 * 7168, 32768 + i * 1024)
    for i in range(8):
        dma(S_WU, vTF, s_TF, i * 8 * 7168, 65536 + i * 1024)
for i in range(8):
    dma(S_WO, vTO, s_TO, i * 8 * 2048, i * 1024)
if not OPT['tilesS']:
    for i in range(8):
        dma(S_WD, vTO, s_TO, i * 8 * 2048, 98304 + i * 1024)
srd(S_WQ, 34, 2048)
A("s_lshl_b32 s13, s7, 11")
A("v_lshlrev_b32 v5, 5, v2")
A(f"buffer_load_dwordx4 v[{GX}:{GX+3}], v5, {R4(S_X)}, s13 offen")
A(f"buffer_load_dwordx4 v[{GX+4}:{GX+7}], v5, {R4(S_X)}, s13 offen offset:16")
A(f"buffer_load_dwordx4 v[{GX+8}:{GX+11}], v5, {R4(S_WQ)}, 0 offen")
A(f"buffer_load_dwordx4 v[{GX+12}:{GX+15}], v5, {R4(S_WQ)}, 0 offen offset:16")
if OPT['tilesS']:
    A(f"s_lshl_b32 s12, {sW}, 2")
    A("v_mov_b32 v62, s12")
    k.label("L_tw")
    A(f"ds_read_b32 v63, v62 offset:{L_CNT+16}")
    A("s_waitcnt lgkmcnt(0)")
    A("v_readfirstlane_b32 s12, v63")
    A("s_nop 1")
    A("s_cmp_lg_u32 s12, 0")
    A("s_cbranch_scc1 L_tw_done")
    A("s_sleep 4")
    A("s_branch L_tw")
    k.label("L_tw_done")
    A("s_waitcnt vmcnt(12)")
else:
    A("s_waitcnt vmcnt(20)")
tr_reads(WF, vT01, 32768)
tr_reads(WF + 32, vT23, 0)
A("s_waitcnt lgkmcnt(0)")
tile_gemm(WF, XF, SEL)
put_partial(vW01, 32768)
tile_gemm(WF + 32, XF, SEL)
put_partial(vW23, 0)
A("s_mov_b32 s84, 0")
arrive(L_CNT + 4, "L_a6")
sum4(WF, vR01, 32768, 8192)
sum4(WF + 32, vR23, 0, 8192)
A("s_waitcnt lgkmcnt(0)")
sum4b(WF)
sum4b(WF + 32)
for t, r in enumerate((WF, WF + 4, WF + 32, WF + 36)):
    A(f"buffer_store_dwordx4 v[{r}:{r+3}], {vL16}, {R4(S_WS1)}, s28 offen offset:{1024*t} sc1")
A("s_mov_b32 s84, 1")
k.label("L_a6")
stamp(3)
A("s_waitcnt vmcnt(0)")
stamp(6)
tr_reads(TF0, vT01, 0)
tr_reads(TF1, vT23, 32768)
srd(S_WU, 36, 16384)
A(f"v_mov_b32 v{VG}, 0")
for r in range(8):
    A(f"v_lshlrev_b32 v60, 16, v{GX+r}")
    A(f"v_and_b32 v61, s8, v{GX+r}")
    A(f"v_lshlrev_b32 v62, 16, v{GX+8+r}")
    A(f"v_and_b32 v63, s8, v{GX+8+r}")
    A("v_mul_f32 v60, v60, v62")
    A("v_mul_f32 v61, v61, v63")
    A("v_cvt_pk_bf16_f32 v60, v60, v61")
    A("v_lshlrev_b32 v61, 16, v60")
    A("v_and_b32 v60, s8, v60")
    A(f"v_add_f32 v{VG}, v{VG}, v61")
    A(f"v_add_f32 v{VG}, v{VG}, v60")
for rot in (8, 4, 2, 1):
    A("s_nop 1")
    A(f"v_add_f32_dpp v{VG}, v{VG}, v{VG} row_ror:{rot} row_mask:0xf bank_mask:0xf")
A(f"v_mov_b32 v60, v{VG}")
A("s_nop 1")
A(f"v_permlane32_swap_b32 v{VG}, v60")
A(f"v_add_f32 v{VG}, v{VG}, v60")
A(f"v_mov_b32 v60, v{VG}")
A("s_nop 1")
A(f"v_permlane16_swap_b32 v{VG}, v60")
A(f"v_add_f32 v{VG}, v{VG}, v60")
round_bf16(VG, 60)
A(f"s_mov_b32 s10, {f32(-LOG2E)}")
A(f"v_mul_f32 v{VG}, s10, v{VG}")
A(f"v_exp_f32 v{VG}, v{VG}")
A("s_nop 0")
A(f"v_add_f32 v{VG}, 1.0, v{VG}")
A(f"v_rcp_f32 v{VG}, v{VG}")
A("s_nop 0")
round_bf16(VG, 60)
A(f"v_sub_f32 v60, 1.0, v{VG}")
round_bf16(60, 61)
A(f"v_cndmask_b32 v{VG}, v{VG}, v60, {sHI}")
for _ in range(OPT['preM']):
    A("s_sleep 127")
poll_mb("go2", 1, OPT['slpM'])
stamp(8)
A("s_cmp_eq_u32 s84, 0")
A("s_cbranch_scc1 L_a6b")
G0, U0, T0 = WF, WF + 32, WF + 8
for p in range(3):
    A(f"s_add_u32 s13, {s_GU}, {4096*p}")
    polln(f"pollG{p}", GX, [(vL16, S_WS0, "s13", 1024 * t) for t in range(4)], sleep=OPT['slpM'])
    for e in range(8):
        A(f"v_add_f32 v{G0+e}, v{G0+e}, v{GX+e}")
        A(f"v_add_f32 v{U0+e}, v{U0+e}, v{GX+8+e}")
for t in range(4):
    A(f"v_cvt_pk_bf16_f32 v{T0+t}, v{G0+2*t}, v{G0+2*t+1}")
    A(f"v_cvt_pk_bf16_f32 v{T0+4+t}, v{U0+2*t}, v{U0+2*t+1}")
for t in range(4):
    A(f"v_lshlrev_b32 v{G0+2*t}, 16, v{T0+t}")
    A(f"v_and_b32 v{G0+2*t+1}, s8, v{T0+t}")
    A(f"v_lshlrev_b32 v{U0+2*t}, 16, v{T0+4+t}")
    A(f"v_and_b32 v{U0+2*t+1}, s8, v{T0+4+t}")
A(f"s_mov_b32 s10, {f32(0.044715)}")
A(f"s_mov_b32 s11, {f32(-2.0*0.7978845608028654*LOG2E)}")
for e in range(8):
    A(f"v_mul_f32 v{T0+e}, v{G0+e}, v{G0+e}")
for e in range(8):
    A(f"v_fma_f32 v{T0+e}, v{T0+e}, s10, 1.0")
for e in range(8):
    A(f"v_mul_f32 v{T0+e}, v{T0+e}, v{G0+e}")
for e in range(8):
    A(f"v_mul_f32 v{T0+e}, s11, v{T0+e}")
for e in range(8):
    A(f"v_exp_f32 v{T0+e}, v{T0+e}")
for e in range(8):
    A(f"v_add_f32 v{T0+e}, 1.0, v{T0+e}")
for e in range(8):
    A(f"v_rcp_f32 v{T0+e}, v{T0+e}")
for e in range(8):
    A(f"v_mul_f32 v{G0+e}, v{G0+e}, v{T0+e}")
for t in range(4):
    A(f"v_cvt_pk_bf16_f32 v{T0+t}, v{G0+2*t}, v{G0+2*t+1}")
for t in range(4):
    A(f"v_lshlrev_b32 v{G0+2*t}, 16, v{T0+t}")
    A(f"v_and_b32 v{G0+2*t+1}, s8, v{T0+t}")
for e in range(8):
    A(f"v_mul_f32 v{G0+e}, v{G0+e}, v{U0+e}")
for t in range(4):
    A(f"v_cvt_pk_bf16_f32 v{PZ+t}, v{G0+2*t}, v{G0+2*t+1}")
for t in range(4):
    A(f"v_min_u32 v{PZ+t}, -2, v{PZ+t}")
A(f"buffer_store_dwordx2 v[{PZ}:{PZ+1}], {vHst}, {R4(S_WS0)}, {s_Hst} offen sc1")
A(f"buffer_store_dwordx2 v[{PZ+2}:{PZ+3}], {vHst}, {R4(S_WS0)}, {s_Hst} offen offset:64 sc1")
k.label("L_a6b")
polln("pollH", GX, [(vHg, S_WSF, s_Hin, 64 * t) for t in range(2)], sleep=OPT['slpM'])
A("s_waitcnt lgkmcnt(0)")
A("s_nop 2")
tile_gemm(TF1, GX, SEL)
put_partial(vW23, 32768)
stamp(9)
A(f"s_mov_b32 s10, {f32(LOG2E)}")
A(f"s_setprio {OPT['prio']}")
A("s_waitcnt lgkmcnt(0)")
A("s_barrier")
stamp(11)
A(f"s_cmp_lg_u32 {sW}, 0")
A("s_cbranch_scc1 L_gatherO")
CA = 96
A(f"ds_read_b64 v[60:61], {vML} offset:{L_ML}")
for s_ in range(16):
    A(f"ds_read_b64 v[{CA+2*s_}:{CA+2*s_+1}], {vAcc} offset:{L_ACC + s_*512}")
A("s_waitcnt lgkmcnt(15)")
A("v_max_f32_dpp v62, v60, v60 row_ror:8 row_mask:0xf bank_mask:0xf")
for rot in (4, 2, 1):
    A("s_nop 1")
    A(f"v_max_f32_dpp v62, v62, v62 row_ror:{rot} row_mask:0xf bank_mask:0xf")
A("v_sub_f32 v60, v60, v62")
A("v_mul_f32 v60, s10, v60")
A("v_exp_f32 v60, v60")
A("s_nop 0")
A("v_mul_f32 v61, v61, v60")
for rot in (8, 4, 2, 1):
    A("s_nop 1")
    A(f"v_add_f32_dpp v61, v61, v61 row_ror:{rot} row_mask:0xf bank_mask:0xf")
A("v_rcp_f32 v61, v61")
A("s_nop 0")
A("v_mul_f32 v60, v60, v61")
A("s_waitcnt lgkmcnt(0)")
A("s_nop 0")
A(f"v_mul_f32_dpp v62, v60, v{CA} row_newbcast:0 row_mask:0xf bank_mask:0xf")
A(f"v_mul_f32_dpp v63, v60, v{CA+1} row_newbcast:0 row_mask:0xf bank_mask:0xf")
for s_ in range(1, 16):
    A(f"v_fmac_f32_dpp v62, v60, v{CA+2*s_} row_newbcast:{s_} row_mask:0xf bank_mask:0xf")
    A(f"v_fmac_f32_dpp v63, v60, v{CA+2*s_+1} row_newbcast:{s_} row_mask:0xf bank_mask:0xf")
A("v_cvt_pk_bf16_f32 v62, v62, v63")
A("v_min_u32 v62, -2, v62")
A(f"buffer_store_dword v62, {vL4}, {R4(S_WS)}, {s_Ost} offen sc1")
k.label("L_gatherO")
stamp(12)
A(f"s_cmp_lg_u32 {sW}, 3")
A("s_cbranch_scc1 L_a6c")
sum4(WF, vR23, 32768, 8192)
A("s_waitcnt lgkmcnt(0)")
sum4b(WF)
A(f"buffer_store_dwordx4 v[{WF}:{WF+3}], {vPst}, {R4(S_WS)}, {s_PAst} offen offset:128 sc1")
A(f"buffer_store_dwordx4 v[{WF+4}:{WF+7}], {vPst}, {R4(S_WS)}, s30 offen offset:128 sc1")
k.label("L_a6c")
polln("pollO", GX, [(vOg, S_WS, s_Oin, 64 * t) for t in range(2)], sleep=OPT['slpO'], two=OPT['dpoll'])
stamp(13)
A("v_mov_b32 v60, 0")
A("v_mov_b32 v61, 1")
A("s_nop 1")
tile_gemm(TF0, GX, SEL)
put_partial(vW01, 0)
arrive(L_CNT + 12, "L_a7")
sum4(WF, vR01, 0, 8192)
A("s_waitcnt lgkmcnt(0)")
sum4b(WF)
A(f"buffer_store_dwordx4 v[{WF}:{WF+3}], {vPst}, {R4(S_WS)}, {s_PAst} offen sc1")
A(f"buffer_store_dwordx4 v[{WF+4}:{WF+7}], {vPst}, {R4(S_WS)}, s30 offen sc1")
k.label("L_a7")
A(f"s_cmp_lg_u32 {sW}, 0")
A("s_cbranch_scc1 L_fin")
stamp(14)
GX = 64
polln("pollA", GX, [(vL16, S_WS, s_PAin, 1024 * t) for t in range(4)], sleep=OPT['slpA'], two=OPT['dpoll'])
stamp(15)
for e in range(8):
    A(f"v_add_f32 v{GX+16+e}, v{GX+e}, v{GX+e+8}")
GX += 16
for e in range(4):
    A(f"v_add_f32 v{GX+e}, v{GX+e}, v{GX+e+4}")
A("s_nop 0")
for e in range(2):
    A(f"v_permlane32_swap_b32 v{GX+e}, v{GX+e+2}")
for e in range(2):
    A(f"v_add_f32 v{GX+e}, v{GX+e}, v{GX+e+2}")
A("s_nop 1")
A(f"v_permlane16_swap_b32 v{GX}, v{GX+1}")
A(f"v_add_f32 v{VOUT}, v{GX}, v{GX+1}")
round_bf16(VOUT, 60)
A(f"v_mul_f32 v{VOUT}, v{VOUT}, v{VG}")
round_bf16(VOUT, 60)
A("s_nop 1")
A(f"v_add_f32_dpp v{VOUT}, v{VOUT}, v{VOUT} row_ror:8 row_mask:0xf bank_mask:0xf")
A(f"v_cvt_pk_bf16_f32 v{VOUT}, v{VOUT}, v{VOUT}")
A(f"buffer_store_short v{VOUT}, {vOut}, {R4(S_WU)}, s15 offen")
stamp(16)
k.label("L_fin")
stamp_dump()
k.label("L_end")
A("s_endpgm")

DOC = r"""
; ---------------------------------------------------------------------------------------------------------------
; Hand-offs through d_ws: each producer first overwrites its own slots with 0xffffffff (a word it never publishes) and
; ---------------------------------------------------------------------------------------------------------------
"""
body = "\n".join(k.L)
ref = open('cdna_kernels/%s.s.ref' % NAME).read().split('\n')
head = [l for l in ref if l.startswith(';') and '@launch' not in l]
out = "\n".join(head) + "\n"
out += f"; @launch grid=(256,1,1) block=(512,1,1) lds={LDS_BYTES}\n"
out += DOC.lstrip("\n")
out += f""".amdgcn_target "amdgcn-amd-amdhsa--gfx950"
.text
.globl {NAME}_kernel
.p2align 8
.type {NAME}_kernel,@function
{NAME}_kernel:
{body}
.section .rodata,"a"
.p2align 6
.amdhsa_kernel {NAME}_kernel
  .amdhsa_next_free_vgpr 256
  .amdhsa_next_free_sgpr 102
  .amdhsa_accum_offset 256
  .amdhsa_group_segment_fixed_size 0
  .amdhsa_kernarg_size 104
  .amdhsa_user_sgpr_count 2
  .amdhsa_user_sgpr_kernarg_segment_ptr 1
  .amdhsa_system_sgpr_workgroup_id_x 1
  .amdhsa_float_denorm_mode_32 3
.end_amdhsa_kernel
"""
open(sys.argv[1], 'w').write(out)
```
